```python
import torch

def _softmax(x, axis=-1):
    return torch.softmax(x, dim=axis)
def _gelu(x):
    return torch.nn.functional.gelu(x, approximate="tanh")
def _silu(x):
    return torch.nn.functional.silu(x)
def _sigmoid(x):
    return torch.sigmoid(x)
def _layernorm(x, axis=-1, eps=1e-5):
    m = x.mean(dim=axis, keepdim=True)
    v = x.var(dim=axis, keepdim=True, unbiased=False)
    return (x - m) / torch.sqrt(v + eps)
def _scatter_add(tgt, idx, src, axis=0):
    return tgt.clone().index_add_(axis, idx, src)
def _segment_sum(src, seg, n):
    out = torch.zeros((n,) + src.shape[1:], dtype=src.dtype)
    return out.index_add_(0, seg, src)
def _pad(x, pw):
    flat = tuple(v for pair in reversed(pw) for v in pair)
    return torch.nn.functional.pad(x, flat)

kernel_name = 'recurrent_scan__linear_kernel_hedgehog__dense_activation_gelu__prompt'

def setup_inputs():

    _w = (lambda a: (lambda t: t.to(torch.bfloat16) if t.is_floating_point() else t)(torch.as_tensor(a)))
    def _A_setup():
        B, S, D, H = 1, 2048, 1024, 32
        Dh = D // H
        return {
            "x": _w((lambda *s: torch.randn(*s, dtype=torch.bfloat16) * 0.05)(B, S, D)),
            "wqkv": _w((lambda *s: torch.randn(*s, dtype=torch.bfloat16) * 0.4)(D, 3 * D)),
            "w_phi": _w((lambda *s: torch.randn(*s, dtype=torch.bfloat16) * 0.4)(H, Dh, Dh) * (Dh ** -0.5)),
            "wo": _w((lambda *s: torch.randn(*s, dtype=torch.bfloat16) * 0.2)(D, D)),
        }
    _A_in = _A_setup()

    def _B_setup():
        B, S, D, F = 1, 2048, 1024, 3584
        return {
            "x": _w((lambda *s: torch.randn(*s, dtype=torch.bfloat16) * 0.05)(B, S, D)),
            "w1": _w((lambda *s: torch.randn(*s, dtype=torch.bfloat16) * 0.4)(D, F) * (D ** -0.5)),
            "b1": _w((lambda *s: torch.randn(*s, dtype=torch.bfloat16) * 12.8)(F) * 0.01),
            "w2": _w((lambda *s: torch.randn(*s, dtype=torch.bfloat16) * 0.1)(F, D) * (F ** -0.5)),
            "b2": _w((lambda *s: torch.randn(*s, dtype=torch.bfloat16) * 0.8)(D) * 0.01),
        }
    _B_in = _B_setup()

    return {
        "A_x": _A_in["x"],
        "A_wqkv": _A_in["wqkv"],
        "A_w_phi": _A_in["w_phi"],
        "A_wo": _A_in["wo"],
        "B_x": _B_in["x"],
        "B_w1": _B_in["w1"],
        "B_b1": _B_in["b1"],
        "B_w2": _B_in["w2"],
        "B_b2": _B_in["b2"],
    }

def reference(A_x, A_wqkv, A_w_phi, A_wo, B_x, B_w1, B_b1, B_w2, B_b2):
    def _A_ref(x, wqkv, w_phi, wo):
        B, S, D = x.shape
        H = 32; Dh = D // H
        qkv = (lambda x, *d: x.permute(*d))((x @ wqkv).reshape(B, S, 3, H, Dh), 2, 0, 3, 1, 4)
        q, k, v = qkv[0], qkv[1], qkv[2]
        pq = torch.einsum("bhsd,hdf->bhsf", q, w_phi)
        pk = torch.einsum("bhsd,hdf->bhsf", k, w_phi)
        phi_q = torch.concatenate([_softmax(pq, axis=-1), _softmax(-pq, axis=-1)], axis=-1)
        phi_k = torch.concatenate([_softmax(pk, axis=-1), _softmax(-pk, axis=-1)], axis=-1)
        kv = torch.einsum("bhsf,bhsd->bhfd", phi_k, v)
        z  = torch.einsum("bhsf->bhf", phi_k)
        num = torch.einsum("bhqf,bhfd->bhqd", phi_q, kv)
        den = torch.einsum("bhqf,bhf->bhq", phi_q, z)[..., None] + 1e-6
        o = num / den
        return (lambda x, *d: x.permute(*d))(o, 0, 2, 1, 3).reshape(B, S, D) @ wo

    def _B_ref(x, w1, b1, w2, b2):
        h = torch.einsum("bsd,df->bsf", x, w1) + b1
        h = _gelu(h)
        return torch.einsum("bsf,fd->bsd", h, w2) + b2

    x = A_x
    xn = _layernorm(x, axis=-1)
    s = _A_ref(xn, A_wqkv, A_w_phi, A_wo)
    g = _silu(_B_ref(xn, B_w1, B_b1, B_w2, B_b2))
    return x + s * g
```

```python
class Asm:
    def __init__(self):
        self.lines = []
        self._lbl = 0
    def __call__(self, s=""):
        for l in s.split("\n"):
            l = l.strip()
            if not l:
                continue
            if l.endswith(":"):
                self.lines.append(l)
            else:
                self.lines.append("    " + l)
    def label(self, base="L"):
        self._lbl += 1
        return f".{base}_{self._lbl}"
    def text(self):
        return "\n".join(self.lines) + "\n"

HEADER = """; Kernarg layout for this problem (96 bytes, ptrs only, base s[0:1]):
"""

def build_file(kernels, launches):
    out = [HEADER.rstrip("\n")]
    for (lab, g, b, lds) in launches:
        out.append(f"; @launch kernel={lab} grid=({g[0]},{g[1]},{g[2]}) block=({b[0]},{b[1]},{b[2]}) lds={lds}")
    out.append('.amdgcn_target "amdgcn-amd-amdhsa--gfx950"')
    out.append(".text")
    for (lab, body, nv, acc, ns) in kernels:
        out.append(f".globl {lab}")
        out.append(".p2align 8")
        out.append(f".type {lab},@function")
        out.append(f"{lab}:")
        out.append(body.rstrip("\n"))
        out.append("s_endpgm")
    out.append('.section .rodata,"a"')
    for (lab, body, nv, acc, ns) in kernels:
        out.append(".p2align 6")
        out.append(f".amdhsa_kernel {lab}")
        out.append(f"  .amdhsa_next_free_vgpr {nv}")
        out.append(f"  .amdhsa_next_free_sgpr {ns}")
        out.append(f"  .amdhsa_accum_offset {acc}")
        out.append("  .amdhsa_group_segment_fixed_size 0")
        out.append("  .amdhsa_kernarg_size 96")
        out.append("  .amdhsa_user_sgpr_count 2")
        out.append("  .amdhsa_user_sgpr_kernarg_segment_ptr 1")
        out.append("  .amdhsa_system_sgpr_workgroup_id_x 1")
        out.append(".end_amdhsa_kernel")
    return "\n".join(out) + "\n"
```

```python
import re
TRANS = ("v_exp_", "v_log_", "v_rcp_", "v_rsq_", "v_sqrt_", "v_sin_", "v_cos_")
def regs(tok):
    tok = tok.strip().lstrip("-").strip("|")
    m = re.fullmatch(r"([vsa])(\d+)", tok)
    if m: return {(m.group(1), int(m.group(2)))}
    m = re.fullmatch(r"([vsa])\[(\d+):(\d+)\]", tok)
    if m: return {(m.group(1), i) for i in range(int(m.group(2)), int(m.group(3))+1)}
    if tok == "vcc": return {("s", "vcc")}
    if tok in ("vcc_lo", "vcc_hi"): return {("s", "vcc")}
    if tok == "m0": return {("s", "m0")}
    if tok.startswith("exec"): return {("s", "exec")}
    return set()
class I:
    def __init__(self, text):
        self.text = text
        t = text.split(";")[0].strip()
        self.label = t[:-1] if t.endswith(":") else None
        self.op = "" if self.label else t.split()[0]
        rest = "" if self.label else t[len(self.op):].strip()
        ops = [o.strip() for o in rest.split(",")] if rest else []
        mods = ""
        if ops:
            p = ops[-1].split(None, 1)
            ops[-1] = p[0]
            mods = p[1] if len(p) > 1 else ""
        self.ops = ops; self.mods = mods
        op = self.op
        self.kind = None; self.dst = set(); self.src = set(); self.ws = 1
        self.A = self.B = self.C = set(); self.passes = 0
        self.data = set(); self.lds = False; self.dpp = False
        self.target = None
        if self.label: self.ws = 0; return
        R = [regs(o) for o in ops]
        U = lambda l: set().union(*l) if l else set()
        if op.startswith("v_mfma"):
            self.kind = "mfma"; self.dst = R[0]; self.A, self.B, self.C = R[1], R[2], R[3]
            self.src = R[1] | R[2] | R[3]
            self.passes = 8 if "32x32x16" in op else 4 if "16x16x32" in op else 16
        elif op.startswith("v_"):
            self.kind = "valu"; self.dst = R[0]; self.src = U(R[1:])
            if "fmac" in op or "_mac_" in op or op.startswith("v_pk_fmac"): self.src |= R[0]
            if "permlane" in op and "swap" in op:
                self.dst = R[0] | R[1]; self.src = R[0] | R[1]
            if "_dpp" in op or "quad_perm" in mods or "row_" in mods:
                self.dpp = True; self.src |= R[0]
            if "_co_" in op: self.dst = R[0] | R[1]; self.src = U(R[2:])
        elif op.startswith("buffer_") or op.startswith("global_"):
            self.kind = "vmem"
            self.lds = " lds" in (" " + mods) or "load_lds" in op
            if "load" in op and not self.lds:
                self.dst = R[0]; self.src = U(R[1:])
            elif self.lds:
                self.src = U(R) | {("s", "m0")}
            else:
                self.src = U(R)
                d = R[0] if op.startswith("buffer_") else R[1]
                if len(d) >= 3: self.data = d
                if "atomic" in op and ("sc0" in mods or "glc" in mods): self.dst = R[0]
        elif op.startswith("ds_"):
            self.kind = "ds"
            if "read" in op or "bpermute" in op or "permute" in op or "swizzle" in op:
                self.dst = R[0]; self.src = U(R[1:])
            else:
                self.src = U(R)
        elif op.startswith("s_"):
            self.kind = "salu"
            if op == "s_nop": self.ws = int(ops[0], 0) + 1
            elif op.startswith("s_cbranch") or op == "s_branch": self.target = ops[0]
            elif op.startswith("s_cmp") or op in ("s_waitcnt", "s_barrier", "s_setprio", "s_endpgm", "s_sleep", "s_bitcmp1_b32", "s_bitcmp0_b32"):
                self.src = U(R)
            elif op.startswith("s_load") or op in ("s_memtime", "s_memrealtime"):
                self.kind = "smem"; self.dst = R[0]; self.src = U(R[1:])
            else:
                self.dst = R[0]; self.src = U(R[1:])
                if "saveexec" in op: self.dst |= {("s", "exec")}
        else:
            raise ValueError("unknown instr " + text)
    def vg(self, s): return {r for r in s if r[0] in "va"}
    def sg(self, s): return {r for r in s if r[0] == "s"}

def need(p, c):
    n = 0
    if p.kind == "valu":
        ps = p.sg(p.dst) - {("s", "exec")}; pv = p.vg(p.dst)
        if ps:
            if c.kind in ("valu", "mfma") and (ps & c.src): n = max(n, 2)
            if c.kind == "vmem" and (ps & c.src): n = max(n, 5)
        if pv:
            if c.kind == "valu":
                if c.op.startswith(("v_readfirstlane", "v_readlane")) and (pv & c.src): n = max(n, 1)
                if (c.dpp or "permlane" in c.op) and (pv & c.src): n = max(n, 2)
                if p.op.startswith(TRANS) and (pv & c.src) and not c.op.startswith(TRANS): n = max(n, 1)
            if c.kind == "mfma" and (pv & c.src): n = max(n, 2)
    if p.kind == "salu" and ("s", "m0") in p.dst and c.kind == "vmem" and c.lds: n = max(n, 1)
    if p.kind == "vmem" and p.data:
        if c.kind in ("valu", "mfma") and (p.data & c.dst): n = max(n, 2)
        elif p.data & c.dst: n = max(n, 1)
    if p.kind == "mfma":
        big = {4: 8, 8: 12, 16: 20}[p.passes]
        if c.kind == "mfma":
            if p.dst & (c.A | c.B): n = max(n, big)
            if p.dst & c.C and not (p.dst == c.C and p.passes == c.passes): n = max(n, big - 2)
            if p.dst & c.dst and not (p.dst == c.dst and p.passes == c.passes): n = max(n, big)
        else:
            if c.kind == "valu" and (p.dst & (c.src | c.dst)): n = max(n, big)
            if c.kind in ("vmem", "ds") and (p.dst & (c.src | c.dst)): n = max(n, big)
            if c.kind == "valu" and (p.C & c.dst): n = max(n, {4: 3, 8: 7, 16: 15}[p.passes])
    return n

def fix(text, verbose=False):
    ins = [I(l) for l in text.split("\n") if l.strip()]
    total = 0
    while True:
        lab = {x.label: k for k, x in enumerate(ins) if x.label}
        preds = [[] for _ in ins]
        for k, x in enumerate(ins):
            if k + 1 < len(ins) and x.op not in ("s_branch", "s_endpgm"): preds[k+1].append(k)
            if x.target and x.target in lab: preds[lab[x.target]].append(k)
        changed = False
        for k, c in enumerate(ins):
            if c.label or c.kind == "salu" and not c.dst: continue
            worst = 0; who = None
            stack = [(p, 0) for p in preds[k]]; seen = {}
            while stack:
                j, d = stack.pop()
                if d >= 20 or seen.get(j, 99) <= d: continue
                seen[j] = d
                p = ins[j]
                if not p.label:
                    r = need(p, c) - d
                    if r > worst: worst = r; who = p
                for q in preds[j]: stack.append((q, d + p.ws))
            if worst > 0:
                if verbose: print(f"pad {worst}: {who.text.strip()}  ->  {c.text.strip()}")
                w = worst; new = []
                while w > 0:
                    t = min(w, 16); new.append(I(f"    s_nop {t-1}")); w -= t
                ins[k:k] = new; total += worst; changed = True
                break
        if not changed: break
    return "\n".join(x.text for x in ins) + "\n"
```

```python
import sys, struct, math
from asmlib import *
import hazard

MB = 1 << 20
XN_OFF = 0
HO_OFF = 8 * MB
KVP_OFF = 32 * MB
ZP_OFF = 36 * MB
MP_OFF = 40 * MB
FLG_OFF = 48 * MB
TS_OFF = 200 * MB
BIG = 0x10000000
LOG2E = 1.4426950408889634

def f2u(x):
    return struct.unpack("<I", struct.pack("<f", x))[0]
def hx(x):
    return "0x%08x" % (x & 0xffffffff)
def vr(b, n):
    return f"v[{b}:{b+n-1}]" if n > 1 else f"v{b}"

OPT = dict(stamp=False, k4_depth=4, k4_n0=36, spin=200000)

def srd(a, d, ptr, size):
    if ptr != d:
        a(f"s_mov_b32 s{d}, s{ptr}")
        a(f"s_mov_b32 s{d+1}, s{ptr+1}")
    a(f"s_mov_b32 s{d+2}, {hx(size)}")
    a(f"s_mov_b32 s{d+3}, 0x00020000")

def stamp(a, idx, kern, srdws, vt, st):
    if not OPT["stamp"]:
        return
    a(f"s_memtime s[{st}:{st+1}]")
    a(f"s_lshl_b32 s{st+2}, s2, 3")
    a(f"s_add_u32 s{st+2}, s{st+2}, s3")
    a(f"s_lshl_b32 s{st+2}, s{st+2}, 7")
    a(f"s_add_u32 s{st+2}, s{st+2}, {hx(TS_OFF + kern*MB + idx*8)}")
    a("s_waitcnt lgkmcnt(0)")
    a(f"v_mov_b32 v{vt}, s{st}")
    a(f"v_mov_b32 v{vt+1}, s{st+1}")
    a(f"v_mov_b32 v{vt+2}, 0")
    a(f"buffer_store_dwordx2 v[{vt}:{vt+1}], v{vt+2}, s[{srdws}:{srdws+3}], s{st+2} offen")

def wave_sum(a, v, t):
    for m in ["quad_perm:[1,0,3,2]", "quad_perm:[2,3,0,1]", "row_half_mirror", "row_mirror"]:
        a("s_nop 1")
        a(f"v_add_f32_dpp v{v}, v{v}, v{v} {m} row_mask:0xf bank_mask:0xf")
    for op in ["v_permlane16_swap_b32", "v_permlane32_swap_b32"]:
        a(f"v_mov_b32 v{t}, v{v}")
        a("s_nop 1")
        a(f"{op} v{v}, v{t}")
        a("s_nop 1")
        a(f"v_add_f32 v{v}, v{v}, v{t}")

def k1():
    a = Asm()
    a(f"""
    s_cmp_ge_u32 s2, 512
    s_cbranch_scc1 .Lk1_end
    s_load_dwordx2 s[4:5], s[0:1], 0
    s_load_dwordx2 s[8:9], s[0:1], 88
    v_lshrrev_b32 v1, 6, v0
    v_and_b32 v2, 63, v0
    s_lshl_b32 s3, s2, 2
    v_add_u32 v1, s3, v1
    v_lshlrev_b32 v1, 11, v1
    v_lshl_add_u32 v1, v2, 4, v1
    s_mov_b32 s6, {hx(4*MB)}
    s_mov_b32 s7, 0x00020000
    s_mov_b32 s10, {hx(256*MB)}
    s_mov_b32 s11, 0x00020000
    s_mov_b32 s12, 0xffff0000
    s_waitcnt lgkmcnt(0)
    buffer_load_dwordx4 v[4:7], v1, s[4:7], 0 offen
    buffer_load_dwordx4 v[8:11], v1, s[4:7], 0 offen offset:1024
    """)
    a(f"""
    s_cmp_ge_u32 s2, 128
    s_cbranch_scc1 .Lk1_noflag
    v_cmp_eq_u32 vcc, 0, v0
    s_and_saveexec_b64 s[14:15], vcc
    s_lshl_b32 s13, s2, 7
    s_add_u32 s13, s13, {hx(FLG_OFF)}
    v_mov_b32 v3, 0
    buffer_store_dword v3, v3, s[8:11], s13 offen
    s_mov_b64 exec, s[14:15]
    s_waitcnt vmcnt(1)
    s_branch .Lk1_go
    .Lk1_noflag:
    s_waitcnt vmcnt(0)
    .Lk1_go:
    """)
    for i in range(8):
        a(f"v_lshlrev_b32 v{12+2*i}, 16, v{4+i}")
        a(f"v_and_b32 v{13+2*i}, s12, v{4+i}")
    for i in range(8):
        a(f"v_add_f32 v{28+i}, v{12+2*i}, v{13+2*i}")
    for i in range(4):
        a(f"v_add_f32 v{28+i}, v{28+i}, v{32+i}")
    a("v_add_f32 v28, v28, v30\n v_add_f32 v29, v29, v31\n v_add_f32 v28, v28, v29")
    wave_sum(a, 28, 29)
    a(f"v_mul_f32 v28, {hx(f2u(1.0/1024))}, v28")
    for i in range(16):
        a(f"v_sub_f32 v{12+i}, v{12+i}, v28")
    for i in range(4):
        a(f"v_mul_f32 v{30+i}, v{12+i}, v{12+i}")
    for i in range(4, 16):
        a(f"v_fmac_f32 v{30+(i&3)}, v{12+i}, v{12+i}")
    a("v_add_f32 v30, v30, v32\n v_add_f32 v31, v31, v33\n v_add_f32 v30, v30, v31")
    wave_sum(a, 30, 31)
    a(f"v_mov_b32 v31, {hx(f2u(1e-5))}")
    a(f"v_fmac_f32 v31, {hx(f2u(1.0/1024))}, v30")
    a("v_rsq_f32 v31, v31")
    a("s_nop 0")
    for i in range(16):
        a(f"v_mul_f32 v{12+i}, v{12+i}, v31")
    for i in range(8):
        a(f"v_cvt_pk_bf16_f32 v{4+i}, v{12+2*i}, v{13+2*i}")
    a("""
    buffer_store_dwordx4 v[4:7], v1, s[8:11], 0 offen
    buffer_store_dwordx4 v[8:11], v1, s[8:11], 0 offen offset:1024
    s_waitcnt vmcnt(0)
    .Lk1_end:
    """)
    return a.text()

BRING = 98304
SLOTB_M = 14464
SLOTB_A = 12288
WPHI_L = 147456
K2_LDS = 156160

S_W = 3
SRD_A = 4
SRD_B = 8
SRD_WS = 12
SRD_T = 16
S_I = 20
S_JN = 21
S_TG = 22
S_CH = 23
S_CUR, S_NXT, S_PRV = 24, 25, 26
S_BPAR = 27
S_AROW = 28
S_KA = 29
S_BOFF = 30
S_M0A = 31
S_M0B = 32
S_CNT = 33
S_BIG = 34
S_T0, S_T1, S_T2, S_T3 = 36, 37, 38, 39
S_EXB = 40
S_ST = 44
S_C0, S_C1 = 48, 49

class Pipe:
    pass

def k2_dma_A(a, vA, half, slot_sreg, ks_expr_add):
    ins = []
    pre = []
    pre.append(f"s_add_u32 s{S_T0}, s{S_KA}, {ks_expr_add}")
    pre.append(f"s_cmp_lt_u32 s{S_T0}, 2048")
    pre.append(f"s_cselect_b32 s{S_T1}, s{S_AROW}, s{S_BIG}")
    pre.append(f"s_add_u32 s{S_T0}, s{S_T0}, s{S_T1}")
    if half:
        pre.append(f"s_add_u32 s{S_T0}, s{S_T0}, 262144")
    pre.append(f"s_add_u32 s{S_T1}, s{slot_sreg}, s{S_M0A}")
    pre.append(f"s_add_u32 m0, s{S_T1}, {16384*half}")
    pre.append("s_nop 0")
    ins.append("\n".join(pre) + f"\nbuffer_load_dwordx4 v{vA}, s[{SRD_A}:{SRD_A+3}], s{S_T0} offen lds")
    ins.append(f"buffer_load_dwordx4 v{vA+1}, s[{SRD_A}:{SRD_A+3}], s{S_T0} offen offset:1024 lds")
    return ins

def k2_dma_B(a, vB, slot_add, e1off, rowbytes):
    s = []
    s.append(f"s_add_u32 s{S_T1}, s{S_M0B}, s{S_BPAR}")
    s.append(f"s_add_u32 m0, s{S_T1}, {slot_add}")
    s.append(f"s_mov_b64 exec, s[{S_EXB}:{S_EXB+1}]")
    s.append(f"buffer_load_dwordx4 v{vB}, s[{SRD_B}:{SRD_B+3}], s{S_BOFF} offen lds")
    s.append(f"buffer_load_dwordx4 v{vB+1}, s[{SRD_B}:{SRD_B+3}], s{S_BOFF} offen offset:{e1off} lds")
    s.append("s_mov_b64 exec, -1")
    s.append(f"s_add_u32 s{S_BOFF}, s{S_BOFF}, {32*rowbytes}")
    return ["\n".join(s)]

def interleave(a, mf, fill, npre, pre_bar):
    for m in mf[:npre]:
        a(m)
    a(pre_bar)
    rest = mf[npre:]
    for p, t in fill:
        if p < 0:
            a(t)
    for i, m in enumerate(rest):
        a(m)
        for p, t in fill:
            if p == i:
                a(t)
    for p, t in fill:
        if p >= len(rest):
            a(t)

def k2_main(a, tag, mfmas, reads, upd, vDA, vDB, slotb, e1off, rowbytes, npre, rpos, dpos):
    a(f"s_mov_b32 s{S_KA}, 0\n s_mov_b32 s{S_BPAR}, 0")
    for t in k2_dma_A(a, vDA, 0, S_CUR, 0): a(t)
    for t in k2_dma_A(a, vDA, 1, S_CUR, 0): a(t)
    for t in k2_dma_B(a, vDB, 0, e1off, rowbytes): a(t)
    for t in k2_dma_A(a, vDA, 0, S_NXT, 128): a(t)
    for t in k2_dma_B(a, vDB, slotb, e1off, rowbytes): a(t)
    for t in k2_dma_A(a, vDA, 1, S_NXT, 128): a(t)
    for t in k2_dma_B(a, vDB, 2*slotb, e1off, rowbytes): a(t)
    for t in k2_dma_A(a, vDA, 0, S_PRV, 256): a(t)
    for t in k2_dma_B(a, vDB, 3*slotb, e1off, rowbytes): a(t)
    a(f"s_mov_b32 s{S_KA}, 256")
    yield "prologue"
    a("s_waitcnt vmcnt(12)\n s_barrier")
    for t in reads(0, 0, 0): a(t)
    a(f"s_mov_b32 s{S_CNT}, 16")
    a(f".Lk2_{tag}_loop:")
    a("s_waitcnt lgkmcnt(0)")
    rd = reads(1, 1, slotb)
    dm = k2_dma_A(a, vDA, 1, S_PRV, 0) + k2_dma_B(a, vDB, 0, e1off, rowbytes)
    fill = [(rpos(i), t) for i, t in enumerate(rd)] + [(dpos[i], t) for i, t in enumerate(dm)]
    interleave(a, mfmas(0), fill, npre, "s_waitcnt vmcnt(8)\n s_barrier")
    a("s_waitcnt lgkmcnt(0)")
    rd = reads(0, 0, 0)
    dm = k2_dma_A(a, vDA, 0, S_CUR, 128) + k2_dma_B(a, vDB, slotb, e1off, rowbytes)
    fill = [(rpos(i), t) for i, t in enumerate(rd)] + [(dpos[i], t) for i, t in enumerate(dm)]
    interleave(a, mfmas(1), fill, npre, upd + "\n s_waitcnt vmcnt(8)\n s_barrier")
    a(f"""
    s_xor_b32 s{S_BPAR}, s{S_BPAR}, {2*slotb}
    s_mov_b32 s{S_T0}, s{S_CUR}
    s_mov_b32 s{S_CUR}, s{S_NXT}
    s_mov_b32 s{S_NXT}, s{S_PRV}
    s_mov_b32 s{S_PRV}, s{S_T0}
    s_add_u32 s{S_KA}, s{S_KA}, 128
    s_sub_u32 s{S_CNT}, s{S_CNT}, 1
    s_cmp_lg_u32 s{S_CNT}, 0
    s_cbranch_scc1 .Lk2_{tag}_loop
    """)
    yield "done"

def k2():
    a = Asm()
    VL = 240
    VT = 241
    a(f"""
    s_cmp_ge_u32 s2, 256
    s_cbranch_scc1 .Lk2_end
    s_load_dwordx2 s[{SRD_A}:{SRD_A+1}], s[0:1], 88
    s_load_dwordx2 s[{SRD_WS}:{SRD_WS+1}], s[0:1], 88
    v_lshrrev_b32 v1, 6, v0
    v_and_b32 v{VL}, 63, v0
    s_and_b32 s{S_T0}, s2, 7
    v_readfirstlane_b32 s{S_W}, v1
    s_lshr_b32 s{S_T1}, s2, 3
    s_and_b32 s{S_I}, s{S_T1}, 7
    s_lshr_b32 s{S_T1}, s{S_T1}, 3
    s_lshl_b32 s{S_JN}, s{S_T0}, 1
    s_lshr_b32 s{S_T2}, s{S_T1}, 1
    s_add_u32 s{S_JN}, s{S_JN}, s{S_T2}
    s_and_b32 s{S_T3}, s{S_T1}, 1
    s_and_b32 s{S_TG}, s{S_W}, 3
    s_lshr_b32 s{S_CH}, s{S_W}, 2
    s_mov_b32 s{S_CUR}, 0
    s_mov_b32 s{S_NXT}, 32768
    s_mov_b32 s{S_PRV}, 65536
    s_lshl_b32 s{S_AROW}, s{S_I}, 19
    s_mov_b32 s{S_BOFF}, 0
    s_lshl_b32 s{S_M0A}, s{S_W}, 11
    s_mov_b32 s{S_BIG}, {hx(BIG)}
    s_mov_b32 s{SRD_A+2}, {hx(4*MB)}
    s_mov_b32 s{SRD_A+3}, 0x00020000
    s_mov_b32 s{SRD_WS+2}, {hx(256*MB)}
    s_mov_b32 s{SRD_WS+3}, 0x00020000
    """)
    VDA, VDB = 236, 238
    a(f"""
    v_lshrrev_b32 v{VT}, 3, v{VL}
    s_lshl_b32 s{S_T0}, s{S_W}, 4
    v_add_u32 v{VT}, s{S_T0}, v{VT}
    v_lshlrev_b32 v{VT}, 11, v{VT}
    v_and_b32 v{VT+1}, 7, v{VL}
    v_lshrrev_b32 v{VT+2}, 4, v{VL}
    v_xor_b32 v{VT+1}, v{VT+1}, v{VT+2}
    v_lshl_add_u32 v{VDA}, v{VT+1}, 4, v{VT}
    v_xor_b32 v{VDA+1}, 64, v{VDA}
    v_add_u32 v{VDA+1}, {8*2048-1024}, v{VDA+1}
    s_cmp_eq_u32 s{S_T3}, 0
    s_cbranch_scc1 .Lk2_att
    """)
    k2_mlp(a, VL, VT, VDA, VDB)
    a("s_branch .Lk2_end")
    a(".Lk2_att:")
    k2_att(a, VL, VT, VDA, VDB)
    a(".Lk2_end:")
    return a.text()

def k2_mlp(a, VL, VT, VDA, VDB):
    SET = [112, 156]
    VA0, VA1, VA0C, VA1C, VB, VBC = 200, 201, 202, 203, 204, 205
    VBIAS = 206
    a(f"""
    s_load_dwordx2 s[{SRD_B}:{SRD_B+1}], s[0:1], 40
    s_load_dwordx2 s[{SRD_T}:{SRD_T+1}], s[0:1], 48
    s_mov_b32 s{SRD_B+2}, {hx(1024*7168)}
    s_mov_b32 s{SRD_B+3}, 0x00020000
    s_mov_b32 s{SRD_T+2}, 7168
    s_mov_b32 s{SRD_T+3}, 0x00020000
    s_mov_b32 s{S_EXB}, -1
    s_mov_b32 s{S_EXB+1}, 0x00ffffff
    """)
    a(f"""
    v_cmp_le_u32 vcc, 28, v{VL}
    v_cndmask_b32 v{VT}, 0, 1, vcc
    v_mul_u32_u24 v{VT+1}, 28, v{VT}
    v_sub_u32 v{VT+1}, v{VL}, v{VT+1}
    v_lshrrev_b32 v{VT+2}, 1, v{VT+1}
    v_and_b32 v{VT+1}, 1, v{VT+1}
    v_add_u32 v{VT+3}, -1, v{VT+2}
    v_cmp_gt_u32 vcc, 6, v{VT+2}
    v_cndmask_b32 v{VT+3}, v{VT+3}, v{VT+2}, vcc
    v_cmp_eq_u32 vcc, 6, v{VT+2}
    v_cndmask_b32 v{VT+3}, v{VT+3}, 12, vcc
    v_cmp_le_u32 vcc, 13, v{VT+2}
    v_cndmask_b32 v{VT+3}, v{VT+3}, 13, vcc
    v_lshlrev_b32 v{VT+3}, 5, v{VT+3}
    v_lshl_add_u32 v{VT+3}, v{VT+1}, 4, v{VT+3}
    s_lshl_b32 s{S_T0}, s{S_W}, 2
    v_add_u32 v{VT}, s{S_T0}, v{VT}
    v_mul_u32_u24 v{VT}, 7168, v{VT}
    v_add_u32 v{VT}, v{VT}, v{VT+3}
    s_mul_i32 s{S_T0}, s{S_JN}, 448
    v_add_u32 v{VDB}, s{S_T0}, v{VT}
    v_add_u32 v{VDB+1}, {2*7168-896}, v{VDB}
    s_mul_i32 s{S_M0B}, s{S_W}, 1792
    s_lshr_b32 s{S_T0}, s{S_W}, 1
    s_lshl_b32 s{S_T0}, s{S_T0}, 5
    s_add_u32 s{S_M0B}, s{S_M0B}, s{S_T0}
    s_add_u32 s{S_M0B}, s{S_M0B}, {BRING}
    """)
    a(f"""
    v_and_b32 v{VT}, 15, v{VL}
    v_lshrrev_b32 v{VT+1}, 1, v{VT}
    v_lshrrev_b32 v{VT+2}, 4, v{VL}
    v_xor_b32 v{VT+1}, v{VT+1}, v{VT+2}
    s_lshl_b32 s{S_T0}, s{S_TG}, 6
    v_add_u32 v{VT}, s{S_T0}, v{VT}
    v_lshlrev_b32 v{VT}, 7, v{VT}
    v_lshl_add_u32 v{VA0C}, v{VT+1}, 4, v{VT}
    v_xor_b32 v{VA1C}, 64, v{VA0C}
    v_mov_b32 v{VA0}, v{VA0C}
    v_mov_b32 v{VA1}, v{VA1C}
    v_bfe_u32 v{VT}, v{VL}, 2, 2
    v_lshl_add_u32 v{VT}, v{VT+2}, 3, v{VT}
    v_mul_u32_u24 v{VT}, 448, v{VT}
    v_lshl_add_u32 v{VT}, v{VT+2}, 5, v{VT}
    v_and_b32 v{VT+1}, 3, v{VL}
    v_lshl_add_u32 v{VT}, v{VT+1}, 3, v{VT}
    s_mul_i32 s{S_T0}, s{S_CH}, 224
    s_add_u32 s{S_T0}, s{S_T0}, {BRING}
    v_add_u32 v{VBC}, s{S_T0}, v{VT}
    v_mov_b32 v{VB}, v{VBC}
    """)
    a(f"""
    s_mul_i32 s{S_T0}, s{S_JN}, 448
    s_mul_i32 s{S_T1}, s{S_CH}, 192
    s_add_u32 s{S_T1}, s{S_T1}, s{S_T0}
    s_lshl_b32 s{S_T2}, s{S_CH}, 5
    s_add_u32 s{S_T2}, s{S_T2}, s{S_T0}
    v_lshlrev_b32 v{VT}, 3, v{VT+2}
    s_waitcnt lgkmcnt(0)
    """)
    stamp(a, 0, 1, SRD_WS, 250, S_ST)
    for c in range(6):
        a(f"buffer_load_dwordx2 v[{VBIAS+2*c}:{VBIAS+2*c+1}], v{VT}, s[{SRD_T}:{SRD_T+3}], s{S_T1} offen offset:{32*c}")
    a(f"buffer_load_dwordx2 v[{VBIAS+12}:{VBIAS+13}], v{VT}, s[{SRD_T}:{SRD_T+3}], s{S_T2} offen offset:384")

    def acc(c, tt): return (c*4+tt)*4
    def mfmas(s):
        b = SET[s]
        return [f"v_mfma_f32_16x16x32_bf16 {vr(acc(c,tt),4)}, {vr(b+16+4*c,4)}, {vr(b+4*tt,4)}, {vr(acc(c,tt),4)}"
                for c in range(7) for tt in range(4)]
    def reads(s, sub, bimm):
        b = SET[s]
        va = VA1 if sub else VA0
        r = []
        def w(c):
            for i in range(2):
                r.append(f"ds_read_b64_tr_b16 {vr(b+16+4*c+2*i,2)}, v{VB} offset:{bimm+i*1792+c*32}")
        w(0)
        for tt in range(4):
            r.append(f"ds_read_b128 {vr(b+4*tt,4)}, v{va} offset:{tt*2048}")
        for c in range(1, 7):
            w(c)
        return r
    upd = f"""
    s_xor_b32 s{S_T2}, s{S_BPAR}, {2*SLOTB_M}
    v_add_u32 v{VA0}, s{S_NXT}, v{VA0C}
    v_add_u32 v{VA1}, s{S_NXT}, v{VA1C}
    v_add_u32 v{VB}, s{S_T2}, v{VBC}
    """
    g = k2_main(a, "mlp", mfmas, reads, upd, VDA, VDB, SLOTB_M, 896, 7168, 4,
                lambda i: i - 1, [18, 20, 22])
    next(g)
    a("s_waitcnt vmcnt(18)")
    a(f"s_mov_b32 s{S_T0}, 0xffff0000")
    for c in range(7):
        for j in range(2):
            a(f"v_lshlrev_b32 v{acc(c,0)+2*j}, 16, v{VBIAS+2*c+j}")
            a(f"v_and_b32 v{acc(c,0)+2*j+1}, s{S_T0}, v{VBIAS+2*c+j}")
        for tt in range(1, 4):
            for r in range(4):
                a(f"v_mov_b32 v{acc(c,tt)+r}, v{acc(c,0)+r}")
    next(g)
    stamp(a, 1, 1, SRD_WS, 250, S_ST)
    c0 = -2.0*math.sqrt(2.0/math.pi)*LOG2E
    c1 = c0*0.044715
    a(f"""
    s_mov_b32 s{S_C0}, {hx(f2u(c0))}
    s_mov_b32 s{S_C1}, {hx(f2u(c1))}
    v_mov_b32 v{VT+4}, s{S_C0}
    s_lshl_b32 s{S_T0}, s{S_I}, 1
    s_lshr_b32 s{S_T1}, s{S_TG}, 1
    s_add_u32 s{S_T0}, s{S_T0}, s{S_T1}
    s_mul_i32 s{S_T0}, s{S_T0}, 144
    s_mul_i32 s{S_T1}, s{S_JN}, 7
    s_add_u32 s{S_T0}, s{S_T0}, s{S_T1}
    s_add_u32 s{S_T1}, s{S_T0}, 6
    s_mul_i32 s{S_T2}, s{S_CH}, 3
    s_add_u32 s{S_T0}, s{S_T0}, s{S_T2}
    s_lshl_b32 s{S_T0}, s{S_T0}, 13
    s_lshl_b32 s{S_T1}, s{S_T1}, 13
    s_add_u32 s{S_T0}, s{S_T0}, {hx(HO_OFF)}
    s_add_u32 s{S_T1}, s{S_T1}, {hx(HO_OFF)}
    s_lshl_b32 s{S_T2}, s{S_CH}, 3
    s_add_u32 s{S_T1}, s{S_T1}, s{S_T2}
    v_lshrrev_b32 v{VT}, 4, v{VL}
    v_lshlrev_b32 v{VT}, 11, v{VT}
    v_and_b32 v{VT+1}, 15, v{VL}
    v_lshl_add_u32 v{VT}, v{VT+1}, 4, v{VT}
    s_and_b32 s{S_T2}, s{S_TG}, 1
    s_lshl_b32 s{S_T2}, s{S_T2}, 10
    v_add_u32 v{VT}, s{S_T2}, v{VT}
    s_waitcnt lgkmcnt(0)
    s_nop 7
    """)
    T = 112
    def gelu4(regs, tb):
        n = len(regs)
        for k, u in enumerate(regs): a(f"v_mul_f32 v{tb+k}, v{u}, v{u}")
        for k, u in enumerate(regs): a(f"v_fma_f32 v{tb+k}, v{tb+k}, s{S_C1}, v{VT+4}")
        for k, u in enumerate(regs): a(f"v_mul_f32 v{tb+k}, v{tb+k}, v{u}")
        for k, u in enumerate(regs): a(f"v_exp_f32 v{tb+k}, v{tb+k}")
        for k, u in enumerate(regs): a(f"v_add_f32 v{tb+k}, 1.0, v{tb+k}")
        for k, u in enumerate(regs): a(f"v_rcp_f32 v{tb+k}, v{tb+k}")
        for k, u in enumerate(regs): a(f"v_mul_f32 v{tb+k}, v{tb+k}, v{u}")
    k = 0
    for b in range(3):
        for tt in range(4):
            regs = [acc(2*b, tt)+r for r in range(4)] + [acc(2*b+1, tt)+r for r in range(4)]
            tb = T + 8*(k & 1); pb = T + 16 + 4*(k & 3); k += 1
            gelu4(regs, tb)
            for j in range(4):
                a(f"v_cvt_pk_bf16_f32 v{pb+j}, v{tb+2*j}, v{tb+2*j+1}")
            a(f"buffer_store_dwordx4 {vr(pb,4)}, v{VT}, s[{SRD_WS}:{SRD_WS+3}], s{S_T0} offen offset:{tt*256}")
        if b < 2:
            a(f"s_add_u32 s{S_T0}, s{S_T0}, 8192")
    for t2 in range(2):
        regs = [acc(6, 2*t2)+r for r in range(4)] + [acc(6, 2*t2+1)+r for r in range(4)]
        tb = T + 8*(k & 1); pb = T + 16 + 4*(k & 3); k += 1
        gelu4(regs, tb)
        for j in range(4):
            a(f"v_cvt_pk_bf16_f32 v{pb+j}, v{tb+2*j}, v{tb+2*j+1}")
        a(f"buffer_store_dwordx2 {vr(pb,2)}, v{VT}, s[{SRD_WS}:{SRD_WS+3}], s{S_T1} offen offset:{(2*t2)*256}")
        a(f"buffer_store_dwordx2 {vr(pb+2,2)}, v{VT}, s[{SRD_WS}:{SRD_WS+3}], s{S_T1} offen offset:{(2*t2+1)*256}")
    stamp(a, 2, 1, SRD_WS, 250, S_ST)
    a("s_waitcnt vmcnt(0)")
    stamp(a, 3, 1, SRD_WS, 250, S_ST)
    a("s_waitcnt vmcnt(0)")

def mf32(d, A, B, C):
    c = vr(C, 16) if isinstance(C, int) and C >= 0 else "0"
    return f"v_mfma_f32_32x32x16_bf16 {vr(d,16)}, {vr(A,4)}, {vr(B,4)}, {c}"

def k2_att(a, VL, VT, VDA, VDB):
    ACC = dict(Q=[0, 16], K=[32, 48], V=[64, 80])
    SET = [96, 136]
    VA = [176, 177, 178, 179]; VAC = [180, 181, 182, 183]; VB, VBC = 184, 185
    a(f"""
    s_load_dwordx2 s[{SRD_B}:{SRD_B+1}], s[0:1], 8
    s_load_dwordx2 s[{SRD_T}:{SRD_T+1}], s[0:1], 16
    s_mov_b32 s{SRD_B+2}, {hx(1024*6144)}
    s_mov_b32 s{SRD_B+3}, 0x00020000
    s_mov_b32 s{SRD_T+2}, 65536
    s_mov_b32 s{SRD_T+3}, 0x00020000
    s_mov_b32 s{S_EXB}, -1
    s_mov_b32 s{S_EXB+1}, 0x0000ffff
    """)
    a(f"""
    v_cmp_le_u32 vcc, 24, v{VL}
    v_cndmask_b32 v{VT}, 0, 1, vcc
    v_mul_u32_u24 v{VT+1}, 24, v{VT}
    v_sub_u32 v{VT+1}, v{VL}, v{VT+1}
    v_lshrrev_b32 v{VT+2}, 3, v{VT+1}
    v_min_u32 v{VT+2}, 2, v{VT+2}
    v_and_b32 v{VT+1}, 7, v{VT+1}
    v_lshlrev_b32 v{VT+2}, 11, v{VT+2}
    v_lshl_add_u32 v{VT+2}, v{VT+1}, 4, v{VT+2}
    s_lshl_b32 s{S_T0}, s{S_W}, 2
    v_add_u32 v{VT}, s{S_T0}, v{VT}
    v_mul_u32_u24 v{VT}, 6144, v{VT}
    s_lshl_b32 s{S_T0}, s{S_JN}, 7
    v_add_u32 v{VT}, s{S_T0}, v{VT}
    v_add_u32 v{VDB}, v{VT}, v{VT+2}
    v_xor_b32 v{VT+2}, 64, v{VT+2}
    v_add_u32 v{VDB+1}, v{VT}, v{VT+2}
    v_add_u32 v{VDB+1}, {2*6144-768}, v{VDB+1}
    s_mul_i32 s{S_M0B}, s{S_W}, 1536
    s_add_u32 s{S_M0B}, s{S_M0B}, {BRING}
    """)
    a(f"""
    v_and_b32 v{VT}, 31, v{VL}
    v_bfe_u32 v{VT+1}, v{VL}, 1, 3
    v_lshrrev_b32 v{VT+2}, 5, v{VL}
    v_xor_b32 v{VT+1}, v{VT+1}, v{VT+2}
    s_lshl_b32 s{S_T0}, s{S_TG}, 6
    v_add_u32 v{VT}, s{S_T0}, v{VT}
    v_lshlrev_b32 v{VT}, 7, v{VT}
    v_lshl_add_u32 v{VAC[0]}, v{VT+1}, 4, v{VT}
    v_xor_b32 v{VAC[1]}, 32, v{VAC[0]}
    v_xor_b32 v{VAC[2]}, 64, v{VAC[0]}
    v_xor_b32 v{VAC[3]}, 0x60, v{VAC[0]}
    v_mov_b32 v{VA[0]}, v{VAC[0]}
    v_mov_b32 v{VA[1]}, v{VAC[1]}
    v_mov_b32 v{VA[2]}, v{VAC[2]}
    v_mov_b32 v{VA[3]}, v{VAC[3]}
    v_bfe_u32 v{VT}, v{VL}, 2, 2
    v_lshl_add_u32 v{VT}, v{VT+2}, 3, v{VT}
    v_mul_u32_u24 v{VT}, 384, v{VT}
    v_bfe_u32 v{VT+1}, v{VL}, 3, 1
    v_xor_b32 v{VT+1}, s{S_CH}, v{VT+1}
    v_lshl_add_u32 v{VT}, v{VT+1}, 6, v{VT}
    v_bfe_u32 v{VT+1}, v{VL}, 4, 1
    v_lshl_add_u32 v{VT}, v{VT+1}, 5, v{VT}
    v_and_b32 v{VT+1}, 3, v{VL}
    v_lshl_add_u32 v{VT}, v{VT+1}, 3, v{VT}
    v_add_u32 v{VBC}, {BRING}, v{VT}
    v_mov_b32 v{VB}, v{VBC}
    """)
    a(f"""
    s_lshl_b32 s{S_T0}, s{S_JN}, 12
    s_lshl_b32 s{S_T1}, s{S_W}, 9
    s_add_u32 s{S_T0}, s{S_T0}, s{S_T1}
    s_add_u32 m0, s{S_T1}, {WPHI_L}
    v_lshlrev_b32 v{VT}, 4, v{VL}
    s_waitcnt lgkmcnt(0)
    """)
    stamp(a, 0, 1, SRD_WS, 250, S_ST)
    a(f"""
    s_mov_b32 exec_hi, 0
    buffer_load_dwordx4 v{VT}, s[{SRD_T}:{SRD_T+3}], s{S_T0} offen lds
    s_mov_b64 exec, -1
    """)
    def mfmas(s):
        b = SET[s]
        r = []
        for st in range(2):
            for m, nm in enumerate("QKV"):
                for tt in range(2):
                    wf = b + 16 + (st*3+m)*4
                    tf = b + (st*2+tt)*4
                    d = ACC[nm][tt]
                    if nm == "V":
                        r.append(mf32(d, tf, wf, d))
                    else:
                        r.append(mf32(d, wf, tf, d))
        return r
    def reads(s, sub, bimm):
        b = SET[s]
        r = []
        for st in range(2):
            va = VA[2*sub+st]
            def w(m):
                for i in range(2):
                    r.append(f"ds_read_b64_tr_b16 {vr(b+16+(st*3+m)*4+2*i,2)}, v{VB} offset:{bimm+st*6144+i*1536+m*128}")
            w(0)
            for tt in range(2):
                r.append(f"ds_read_b128 {vr(b+(st*2+tt)*4,4)}, v{va} offset:{tt*4096}")
            w(1); w(2)
        return r
    upd = f"s_xor_b32 s{S_T2}, s{S_BPAR}, {2*SLOTB_A}\n" + \
        "\n".join(f"v_add_u32 v{VA[k]}, s{S_NXT}, v{VAC[k]}" for k in range(4)) + \
        f"\nv_add_u32 v{VB}, s{S_T2}, v{VBC}"
    g = k2_main(a, "att", mfmas, reads, upd, VDA, VDB, SLOTB_A, 768, 6144, 2,
                lambda i: (i // 2) - 1, [7, 8, 9])
    next(g)
    for r in range(96):
        a(f"v_mov_b32 v{r}, 0")
    next(g)
    stamp(a, 1, 1, SRD_WS, 250, S_ST)
    WF = 186
    IDF = 194
    ONE = 202
    KV = [96, 112]
    ZA = [128, 144]
    P = 160
    E = [206, 220]
    EP, EM = 206, 222
    TR = 160
    MX, MN, SP, SM, TT = 241, 242, 243, 244, 245
    a(f"""
    s_mov_b32 s{S_C0}, {hx(f2u(LOG2E))}
    s_waitcnt vmcnt(0) lgkmcnt(0)
    s_barrier
    """)
    a(f"""
    v_lshrrev_b32 v{TT}, 5, v{VL}
    v_bfe_u32 v{TT+1}, v{VL}, 2, 2
    v_lshl_add_u32 v{TT+1}, v{TT}, 2, v{TT+1}
    v_lshlrev_b32 v{TT+1}, 6, v{TT+1}
    v_bfe_u32 v{TT+2}, v{VL}, 4, 1
    v_lshl_add_u32 v{TT+1}, v{TT+2}, 5, v{TT+1}
    v_and_b32 v{TT+2}, 3, v{VL}
    v_lshl_add_u32 v{TT+1}, v{TT+2}, 3, v{TT+1}
    s_lshl_b32 s{S_T0}, s{S_CH}, 11
    s_add_u32 s{S_T0}, s{S_T0}, {WPHI_L}
    v_add_u32 v{TT+1}, s{S_T0}, v{TT+1}
    """)
    for s in range(2):
        for i in range(2):
            a(f"ds_read_b64_tr_b16 {vr(WF+4*s+2*i,2)}, v{TT+1} offset:{(16*s+8*i)*64}")
    a(f"""
    v_and_b32 v{TT+2}, 31, v{VL}
    v_lshlrev_b32 v{TT}, 2, v{TT}
    v_sub_u32 v{TT+2}, v{TT+2}, v{TT}
    v_mov_b32 v{TT}, 0x3f80
    v_mov_b32 v{TT+3}, 0x3f800000
    """)
    for s in range(2):
        for k in range(4):
            base = 16*s + 8*(k >> 1) + 2*(k & 1)
            d = IDF + 4*s + k
            a(f"v_cmp_eq_u32 vcc, {base}, v{TT+2}")
            a(f"v_cndmask_b32 v{d}, 0, v{TT}, vcc")
            a(f"v_cmp_eq_u32 vcc, {base+1}, v{TT+2}")
            a(f"v_cndmask_b32 v{d}, v{d}, v{TT+3}, vcc")
    for k in range(4):
        a(f"v_mov_b32 v{ONE+k}, 0x3f803f80")

    def pack(dst, src, n=8):
        for j in range(n):
            a(f"v_cvt_pk_bf16_f32 v{dst+j}, v{src+2*j}, v{src+2*j+1}")

    def xhalf(op, v, t):
        a(f"v_mov_b32 v{t}, v{v}")
        a("s_nop 1")
        a(f"v_permlane32_swap_b32 v{v}, v{t}")
        a("s_nop 1")
        a(f"{op} v{v}, v{v}, v{t}")

    def softmax(src, outp, outm):
        pack(src, src)
        a("s_nop 1")
        a(mf32(P, WF, src, None))
        a(mf32(P, WF+4, src+4, P))
        a("s_nop 15\n s_nop 3")
        a(f"v_max3_f32 v{MX}, v{P}, v{P+1}, v{P+2}")
        a(f"v_min3_f32 v{MN}, v{P}, v{P+1}, v{P+2}")
        for k in range(3, 15, 2):
            a(f"v_max3_f32 v{MX}, v{MX}, v{P+k}, v{P+k+1}")
            a(f"v_min3_f32 v{MN}, v{MN}, v{P+k}, v{P+k+1}")
        a(f"v_max_f32 v{MX}, v{MX}, v{P+15}")
        a(f"v_min_f32 v{MN}, v{MN}, v{P+15}")
        a(f"v_mov_b32 v{TT}, v{MX}\n v_mov_b32 v{TT+1}, v{MN}\n s_nop 1")
        a(f"v_permlane32_swap_b32 v{MX}, v{TT}\n v_permlane32_swap_b32 v{MN}, v{TT+1}\n s_nop 1")
        a(f"v_max_f32 v{MX}, v{MX}, v{TT}\n v_min_f32 v{MN}, v{MN}, v{TT+1}")
        a(f"v_mul_f32 v{MX}, s{S_C0}, v{MX}\n v_mul_f32 v{MN}, s{S_C0}, v{MN}")
        for k in range(16):
            a(f"v_fma_f32 v{EP+k}, v{P+k}, s{S_C0}, -v{MX}")
            a(f"v_fma_f32 v{EM+k}, -v{P+k}, s{S_C0}, v{MN}")
        for k in range(16):
            a(f"v_exp_f32 v{EP+k}, v{EP+k}")
            a(f"v_exp_f32 v{EM+k}, v{EM+k}")
        a(f"v_add_f32 v{SP}, v{EP}, v{EP+1}\n v_add_f32 v{SM}, v{EM}, v{EM+1}")
        a(f"v_add_f32 v{TT}, v{EP+2}, v{EP+3}\n v_add_f32 v{TT+1}, v{EM+2}, v{EM+3}")
        for k in range(4, 16, 2):
            a(f"v_add_f32 v{SP}, v{SP}, v{EP+k}\n v_add_f32 v{SM}, v{SM}, v{EM+k}")
            a(f"v_add_f32 v{TT}, v{TT}, v{EP+k+1}\n v_add_f32 v{TT+1}, v{TT+1}, v{EM+k+1}")
        a(f"v_add_f32 v{SP}, v{SP}, v{TT}\n v_add_f32 v{SM}, v{SM}, v{TT+1}")
        a(f"v_mov_b32 v{TT}, v{SP}\n v_mov_b32 v{TT+1}, v{SM}\n s_nop 1")
        a(f"v_permlane32_swap_b32 v{SP}, v{TT}\n v_permlane32_swap_b32 v{SM}, v{TT+1}\n s_nop 1")
        a(f"v_add_f32 v{SP}, v{SP}, v{TT}\n v_add_f32 v{SM}, v{SM}, v{TT+1}")
        a(f"v_rcp_f32 v{SP}, v{SP}\n v_rcp_f32 v{SM}, v{SM}\n s_nop 0")
        for k in range(16):
            a(f"v_mul_f32 v{EP+k}, v{EP+k}, v{SP}")
            a(f"v_mul_f32 v{EM+k}, v{EM+k}, v{SM}")
        pack(outp, EP)
        pack(outm, EM)

    a("s_waitcnt lgkmcnt(0)")
    for tt in range(2):
        pack(ACC["V"][tt], ACC["V"][tt])
    for tt in range(2):
        src = ACC["K"][tt]
        softmax(src, src, src+8)
        for pm in range(2):
            ph = src + 8*pm
            a("s_nop 1")
            a(mf32(TR, ph, IDF, None))
            a(mf32(TR, ph+4, IDF+4, TR))
            a("s_nop 15\n s_nop 3")
            pack(EP, TR)
            a("s_nop 1")
            v = ACC["V"][tt]
            first = (tt == 0)
            a(mf32(KV[pm], EP, v, None if first else KV[pm]))
            a(mf32(ZA[pm], ONE, EP, None if first else ZA[pm]))
            a(mf32(KV[pm], EP+4, v+4, KV[pm]))
            a(mf32(ZA[pm], ONE, EP+4, ZA[pm]))
            a("s_nop 7")
    a("s_nop 15\n s_nop 3")
    VW = TT
    a(f"""
    s_lshl_b32 s{S_T0}, s{S_W}, 13
    v_lshlrev_b32 v{VW+1}, 4, v{VL}
    v_add_u32 v{VW}, s{S_T0}, v{VW+1}
    v_cmp_gt_u32 vcc, 32, v{VL}
    v_cndmask_b32 v{VW+2}, v{ZA[1]}, v{ZA[0]}, vcc
    s_lshl_b32 s{S_T0}, s{S_W}, 8
    s_add_u32 s{S_T0}, s{S_T0}, 65536
    v_lshlrev_b32 v{VW+3}, 2, v{VL}
    v_add_u32 v{VW+4}, s{S_T0}, v{VW+3}
    """)
    for i in range(8):
        a(f"ds_write_b128 v{VW}, {vr(KV[i>>2]+4*(i&3),4)} offset:{i*1024}")
    a(f"ds_write_b32 v{VW+4}, v{VW+2}")
    a(f"""
    s_lshl_b32 s{S_T0}, s{S_CH}, 15
    s_lshl_b32 s{S_T1}, s{S_TG}, 11
    s_add_u32 s{S_T0}, s{S_T0}, s{S_T1}
    v_add_u32 v{VW}, s{S_T0}, v{VW+1}
    s_lshl_b32 s{S_T0}, s{S_CH}, 10
    s_add_u32 s{S_T0}, s{S_T0}, 65536
    v_add_u32 v{VW+4}, s{S_T0}, v{VW+3}
    s_waitcnt lgkmcnt(0)
    s_barrier
    """)
    R = 96
    for k in range(4):
        for e in range(2):
            a(f"ds_read_b128 {vr(R+(k*2+e)*4,4)}, v{VW} offset:{k*8192+e*1024}")
    ZR = 128
    for k in range(4):
        a(f"ds_read_b32 v{ZR+k}, v{VW+4} offset:{k*256}")
    S_KVP, S_ZP, S_HEAD = 50, 51, 52
    a(f"""
    s_lshl_b32 s{S_HEAD}, s{S_JN}, 1
    s_add_u32 s{S_HEAD}, s{S_HEAD}, s{S_CH}
    s_lshl_b32 s{S_T0}, s{S_HEAD}, 3
    s_add_u32 s{S_T0}, s{S_T0}, s{S_I}
    s_lshl_b32 s{S_ZP}, s{S_T0}, 8
    s_add_u32 s{S_ZP}, s{S_ZP}, {hx(ZP_OFF)}
    s_lshl_b32 s{S_KVP}, s{S_T0}, 13
    s_lshl_b32 s{S_T1}, s{S_TG}, 11
    s_add_u32 s{S_KVP}, s{S_KVP}, s{S_T1}
    s_add_u32 s{S_KVP}, s{S_KVP}, {hx(KVP_OFF)}
    s_waitcnt lgkmcnt(0)
    """)
    for j in range(8):
        a(f"v_add_f32 v{R+j}, v{R+j}, v{R+8+j}")
        a(f"v_add_f32 v{R+16+j}, v{R+16+j}, v{R+24+j}")
    a(f"v_add_f32 v{ZR}, v{ZR}, v{ZR+1}\n v_add_f32 v{ZR+2}, v{ZR+2}, v{ZR+3}")
    for j in range(8):
        a(f"v_add_f32 v{R+j}, v{R+j}, v{R+16+j}")
    a(f"v_add_f32 v{ZR}, v{ZR}, v{ZR+2}")
    VO16, VO4 = 238, 239
    a(f"v_mov_b32 v{VO16}, v{VW+1}\n v_mov_b32 v{VO4}, v{VW+3}")
    for e in range(2):
        a(f"buffer_store_dwordx4 {vr(R+4*e,4)}, v{VO16}, s[{SRD_WS}:{SRD_WS+3}], s{S_KVP} offen offset:{e*1024} sc1")
    a(f"""
    s_cmp_lg_u32 s{S_TG}, 0
    s_cbranch_scc1 .Lk2_noz
    buffer_store_dword v{ZR}, v{VO4}, s[{SRD_WS}:{SRD_WS+3}], s{S_ZP} offen sc1
    .Lk2_noz:
    s_load_dwordx2 s[{SRD_T}:{SRD_T+1}], s[0:1], 80
    s_mov_b32 s{SRD_T+2}, 256
    """)
    stamp(a, 2, 1, SRD_WS, 250, S_ST)
    softmax(ACC["Q"][0], ACC["Q"][0], ACC["Q"][0]+8)
    a(f"""
    s_waitcnt vmcnt(0) lgkmcnt(0)
    s_barrier
    s_lshl_b32 s{S_T3}, s{S_JN}, 4
    s_cmp_lg_u32 s{S_W}, 0
    s_cbranch_scc1 .Lk2_nosig
    v_mov_b32 v{TT}, 1
    v_mov_b32 v{TT+1}, 0
    s_mov_b64 exec, 1
    buffer_atomic_add v{TT}, v{TT+1}, s[{SRD_T}:{SRD_T+3}], s{S_T3} offen sc1
    s_mov_b64 exec, -1
    .Lk2_nosig:
    """)
    softmax(ACC["Q"][1], ACC["Q"][1], ACC["Q"][1]+8)
    stamp(a, 3, 1, SRD_WS, 250, S_ST)
    a(f"""
    s_cmp_lg_u32 s{S_W}, 0
    s_cbranch_scc1 .Lk2_polled
    s_mov_b32 s{S_CNT}, {OPT['spin']}
    v_mov_b32 v{TT+1}, 0
    .Lk2_poll:
    buffer_load_dword v{TT}, v{TT+1}, s[{SRD_T}:{SRD_T+3}], s{S_T3} offen sc1
    s_waitcnt vmcnt(0)
    v_readfirstlane_b32 s{S_T0}, v{TT}
    s_sub_u32 s{S_CNT}, s{S_CNT}, 1
    s_cmp_eq_u32 s{S_CNT}, 0
    s_cbranch_scc1 .Lk2_polled
    s_cmp_lt_u32 s{S_T0}, 8
    s_cbranch_scc1 .Lk2_poll
    .Lk2_polled:
    s_barrier
    """)
    stamp(a, 4, 1, SRD_WS, 250, S_ST)
    a(f"""
    s_lshl_b32 s{S_T0}, s{S_HEAD}, 16
    s_lshl_b32 s{S_T1}, s{S_TG}, 11
    s_add_u32 s{S_T0}, s{S_T0}, s{S_T1}
    s_add_u32 s{S_T0}, s{S_T0}, {hx(KVP_OFF)}
    s_lshl_b32 s{S_T1}, s{S_HEAD}, 11
    s_add_u32 s{S_T1}, s{S_T1}, {hx(ZP_OFF)}
    """)
    L = 96
    ZL = 160
    for k in range(8):
        for e in range(2):
            a(f"buffer_load_dwordx4 {vr(L+(k*2+e)*4,4)}, v{VO16}, s[{SRD_WS}:{SRD_WS+3}], s{S_T0} offen offset:{e*1024} sc1")
        if k < 7:
            a(f"s_add_u32 s{S_T0}, s{S_T0}, 8192")
    for k in range(8):
        a(f"buffer_load_dword v{ZL+k}, v{VO4}, s[{SRD_WS}:{SRD_WS+3}], s{S_T1} offen offset:{k*256} sc1")
    KVF, ZF = 67584, 75776
    a(f"""
    s_lshl_b32 s{S_T0}, s{S_W}, 10
    s_add_u32 s{S_T0}, s{S_T0}, {KVF}
    v_add_u32 v{TT}, s{S_T0}, v{VO16}
    s_lshl_b32 s{S_T0}, s{S_W}, 7
    s_add_u32 s{S_T0}, s{S_T0}, {ZF}
    v_lshlrev_b32 v{TT+1}, 1, v{VL}
    v_add_u32 v{TT+1}, s{S_T0}, v{TT+1}
    v_lshrrev_b32 v{TT+2}, 5, v{VL}
    v_lshlrev_b32 v{TT+2}, 3, v{TT+2}
    v_add_u32 v{TT+2}, s{S_T0}, v{TT+2}
    s_lshl_b32 s{S_T0}, s{S_CH}, 12
    s_add_u32 s{S_T0}, s{S_T0}, {KVF}
    v_add_u32 v{MX}, s{S_T0}, v{VO16}
    """)
    for k in range(1, 8):
        a(f"s_waitcnt vmcnt({8 + 2*(7-k)})")
        for j in range(8):
            a(f"v_add_f32 v{L+j}, v{L+j}, v{L+8*k+j}")
    pack(L, L, 4)
    a(f"ds_write_b128 v{TT}, {vr(L,4)}")
    a("s_waitcnt vmcnt(0)")
    for k in range(4):
        a(f"v_add_f32 v{ZL+k}, v{ZL+k}, v{ZL+4+k}")
    a(f"v_add_f32 v{ZL}, v{ZL}, v{ZL+2}\n v_add_f32 v{ZL+1}, v{ZL+1}, v{ZL+3}\n v_add_f32 v{ZL}, v{ZL}, v{ZL+1}")
    a(f"v_cvt_pk_bf16_f32 v{ZL}, v{ZL}, v{ZL}")
    a(f"ds_write_b16 v{TT+1}, v{ZL}")
    a("s_waitcnt lgkmcnt(0)\n s_barrier")
    KF = 96
    ZFR = 112
    for k in range(4):
        a(f"ds_read_b128 {vr(KF+4*k,4)}, v{MX} offset:{k*1024}")
    for k in range(4):
        a(f"ds_read2_b64 {vr(ZFR+4*k,4)}, v{TT+2} offset0:{4*k} offset1:{4*k+2}")
    a(f"""
    s_lshl_b32 s{S_T0}, s{S_I}, 1
    s_lshr_b32 s{S_T1}, s{S_TG}, 1
    s_add_u32 s{S_T0}, s{S_T0}, s{S_T1}
    s_mul_i32 s{S_T0}, s{S_T0}, 144
    s_add_u32 s{S_T0}, s{S_T0}, s{S_HEAD}
    s_add_u32 s{S_T0}, s{S_T0}, 112
    s_lshl_b32 s{S_T0}, s{S_T0}, 13
    s_add_u32 s{S_T0}, s{S_T0}, {hx(HO_OFF)}
    s_and_b32 s{S_T1}, s{S_TG}, 1
    s_lshl_b32 s{S_T1}, s{S_T1}, 10
    s_add_u32 s{S_T0}, s{S_T0}, s{S_T1}
    s_add_u32 s{S_T1}, s{S_T0}, 4096
    v_lshrrev_b32 v{TT}, 5, v{VL}
    v_lshlrev_b32 v{TT}, 11, v{TT}
    v_and_b32 v{TT+1}, 31, v{VL}
    v_lshl_add_u32 v{TT}, v{TT+1}, 4, v{TT}
    s_waitcnt lgkmcnt(0)
    """)
    NUM = [128, 144]; DEN = [160, 206]
    for tt in range(2):
        q = ACC["Q"][tt]
        for k in range(4):
            a(mf32(DEN[tt], ZFR+4*k, q+4*k, None if k == 0 else DEN[tt]))
            a(mf32(NUM[tt], KF+4*k, q+4*k, None if k == 0 else NUM[tt]))
    a("s_nop 15\n s_nop 3")
    O = 32
    for tt in range(2):
        d = DEN[tt]
        a(f"v_add_f32 v{d}, {hx(f2u(1e-6))}, v{d}")
        a(f"v_rcp_f32 v{d}, v{d}")
        a("s_nop 0")
        for k in range(16):
            a(f"v_mul_f32 v{NUM[tt]+k}, v{NUM[tt]+k}, v{d}")
        ob = O + 8*tt
        for aa in range(4):
            dst = ob + 4*(aa & 1) + 2*(aa >> 1)
            for j in range(2):
                a(f"v_cvt_pk_bf16_f32 v{dst+j}, v{NUM[tt]+4*aa+2*j}, v{NUM[tt]+4*aa+2*j+1}")
        a(f"buffer_store_dwordx4 {vr(ob,4)}, v{TT}, s[{SRD_WS}:{SRD_WS+3}], s{S_T0} offen offset:{tt*512}")
        a(f"buffer_store_dwordx4 {vr(ob+4,4)}, v{TT}, s[{SRD_WS}:{SRD_WS+3}], s{S_T1} offen offset:{tt*512}")
    stamp(a, 5, 1, SRD_WS, 250, S_ST)
    a("s_waitcnt vmcnt(0)")

def k4():
    D = OPT["k4_depth"]; N0 = OPT["k4_n0"]
    a = Asm()
    SA, SB, SWS, SX = 4, 8, 12, 16
    S_MT, S_NT, S_KH, S_TG4, S_CH4 = 20, 21, 22, 23, 24
    S_AO, S_BO, S_DST, S_END, S_SW, S_SR, S_M0, S_N, S_BG = 25, 26, 27, 28, 29, 30, 31, 32, 33
    T0, T1, T2, T3 = 36, 37, 38, 39
    S_WO = 40
    S_TILE = 42
    ACCM, ACCS = 0, 32
    X, Y = 64, 88
    XR = 112
    VTOK, VW0, VW1, VTOKC, VW0C, VW1C, VDA, VDB0, VDB1, VL, VXO, VT = 128, 129, 130, 131, 132, 133, 134, 135, 136, 137, 138, 140
    a(f"""
    s_cmp_ge_u32 s2, 256
    s_cbranch_scc1 .Lk4_end
    s_load_dwordx2 s[{SA}:{SA+1}], s[0:1], 88
    s_load_dwordx2 s[{SWS}:{SWS+1}], s[0:1], 88
    s_load_dwordx2 s[{SB}:{SB+1}], s[0:1], 56
    s_load_dwordx2 s[{S_WO}:{S_WO+1}], s[0:1], 24
    s_load_dwordx2 s[{SX}:{SX+1}], s[0:1], 64
    v_lshrrev_b32 v1, 6, v0
    v_and_b32 v{VL}, 63, v0
    v_mov_b32 v{VXO}, 0
    s_and_b32 s{T0}, s2, 7
    v_readfirstlane_b32 s3, v1
    s_lshr_b32 s{T1}, s2, 3
    s_and_b32 s{S_KH}, s{T0}, 1
    s_bfe_u32 s{T2}, s{T0}, 0x10001
    s_lshl_b32 s{T2}, s{T2}, 3
    s_and_b32 s{S_MT}, s{T1}, 7
    s_add_u32 s{S_MT}, s{S_MT}, s{T2}
    s_lshr_b32 s{T2}, s{T0}, 2
    s_lshl_b32 s{T2}, s{T2}, 2
    s_lshr_b32 s{S_NT}, s{T1}, 3
    s_add_u32 s{S_NT}, s{S_NT}, s{T2}
    s_lshl_b32 s{S_TILE}, s{S_MT}, 3
    s_add_u32 s{S_TILE}, s{S_TILE}, s{S_NT}
    s_and_b32 s{S_TG4}, s3, 3
    s_lshr_b32 s{S_CH4}, s3, 2
    s_mov_b32 s{SA+2}, {hx(32*MB)}
    s_mov_b32 s{SA+3}, 0x00020000
    s_mov_b32 s{SWS+2}, {hx(256*MB)}
    s_mov_b32 s{SWS+3}, 0x00020000
    s_mov_b32 s{SB+2}, {hx(3584*2048)}
    s_mov_b32 s{SB+3}, 0x00020000
    s_mov_b32 s{SX+2}, 2048
    s_mov_b32 s{SX+3}, 0x00020000
    s_mov_b32 s{S_BG}, {hx(BIG)}
    s_mul_i32 s{S_DST}, s{S_KH}, {N0}
    s_cmp_eq_u32 s{S_KH}, 0
    s_cselect_b32 s{S_END}, {N0}, 72
    s_cselect_b32 s{S_N}, {N0}, {56-N0}
    s_mul_i32 s{S_AO}, s{S_MT}, {144*8192}
    s_lshl_b32 s{T0}, s{S_DST}, 14
    s_add_u32 s{S_AO}, s{S_AO}, s{T0}
    s_add_u32 s{S_AO}, s{S_AO}, {hx(HO_OFF-2048)}
    s_lshl_b32 s{S_BO}, s{S_DST}, 17
    s_lshl_b32 s{S_M0}, s3, 12
    s_mov_b32 s{S_SW}, 0
    s_mov_b32 s{S_SR}, 0
    """)
    a(f"""
    s_lshl_b32 s{T0}, s3, 11
    v_lshlrev_b32 v{VT}, 4, v{VL}
    v_add_u32 v{VDA}, s{T0}, v{VT}
    v_lshrrev_b32 v{VT}, 4, v{VL}
    v_and_b32 v{VT+1}, 15, v{VL}
    v_lshlrev_b32 v{VT+2}, 2, v{VT}
    v_xor_b32 v{VT+1}, v{VT+1}, v{VT+2}
    s_lshl_b32 s{T0}, s3, 3
    v_add_u32 v{VT}, s{T0}, v{VT}
    v_lshlrev_b32 v{VT}, 11, v{VT}
    v_lshl_add_u32 v{VT}, v{VT+1}, 4, v{VT}
    s_lshl_b32 s{T0}, s{S_NT}, 8
    v_add_u32 v{VDB0}, s{T0}, v{VT}
    v_add_u32 v{VDB1}, {4*2048-1024}, v{VDB0}
    """)
    a(f"""
    v_lshrrev_b32 v{VT}, 5, v{VL}
    v_and_b32 v{VT+1}, 31, v{VL}
    s_lshl_b32 s{T0}, s{S_TG4}, 5
    v_add_u32 v{VT+1}, s{T0}, v{VT+1}
    v_lshlrev_b32 v{VT+1}, 4, v{VT+1}
    v_lshl_add_u32 v{VTOKC}, v{VT}, 12, v{VT+1}
    v_bfe_u32 v{VT+1}, v{VL}, 2, 2
    v_lshl_add_u32 v{VT+2}, v{VT}, 2, v{VT+1}
    v_lshlrev_b32 v{VT+2}, 8, v{VT+2}
    s_lshl_b32 s{T0}, s{S_CH4}, 1
    v_xor_b32 v{VT+1}, s{T0}, v{VT+1}
    v_lshl_add_u32 v{VT+2}, v{VT+1}, 6, v{VT+2}
    v_bfe_u32 v{VT+1}, v{VL}, 4, 1
    v_lshl_add_u32 v{VT+2}, v{VT+1}, 5, v{VT+2}
    v_and_b32 v{VT+1}, 3, v{VL}
    v_lshl_add_u32 v{VW0C}, v{VT+1}, 3, v{VT+2}
    v_xor_b32 v{VW1C}, 64, v{VW0C}
    v_mov_b32 v{VTOK}, v{VTOKC}
    v_mov_b32 v{VW0}, v{VW0C}
    v_mov_b32 v{VW1}, v{VW1C}
    s_waitcnt lgkmcnt(0)
    """)
    stamp(a, 0, 2, SWS, 144, 44)
    a(f"""
    s_cmp_eq_u32 s{S_KH}, 0
    s_cbranch_scc1 .Lk4_nob
    s_lshl_b32 s{T0}, s{S_NT}, 8
    s_lshl_b32 s{T1}, s{S_CH4}, 7
    s_add_u32 s{T0}, s{T0}, s{T1}
    v_lshlrev_b32 v{VT+1}, 3, v{VT}
    """)
    for ct in range(2):
        for aa in range(4):
            k = ct*4+aa
            a(f"buffer_load_dwordx2 {vr(Y+2*k,2)}, v{VT+1}, s[{SX}:{SX+3}], s{T0} offen offset:{ct*64+aa*16}")
    a(f"""
    s_load_dwordx2 s[{SX}:{SX+1}], s[0:1], 0
    s_lshl_b32 s{T1}, s{S_MT}, 7
    s_lshl_b32 s{T2}, s{S_TG4}, 5
    s_add_u32 s{T1}, s{T1}, s{T2}
    v_lshrrev_b32 v{VT+1}, 3, v{VL}
    v_add_u32 v{VT+1}, s{T1}, v{VT+1}
    v_lshlrev_b32 v{VT+1}, 11, v{VT+1}
    v_and_b32 v{VT+2}, 7, v{VL}
    v_lshl_add_u32 v{VT+1}, v{VT+2}, 4, v{VT+1}
    v_add_u32 v{VXO}, s{T0}, v{VT+1}
    s_mov_b32 s{T1}, 16384
    s_mov_b32 s{T2}, 32768
    s_mov_b32 s{T3}, 49152
    s_waitcnt lgkmcnt(0)
    s_mov_b32 s{SX+2}, {hx(4*MB)}
    buffer_load_dwordx4 {vr(XR,4)}, v{VXO}, s[{SX}:{SX+3}], 0 offen
    buffer_load_dwordx4 {vr(XR+4,4)}, v{VXO}, s[{SX}:{SX+3}], s{T1} offen
    buffer_load_dwordx4 {vr(XR+8,4)}, v{VXO}, s[{SX}:{SX+3}], s{T2} offen
    buffer_load_dwordx4 {vr(XR+12,4)}, v{VXO}, s[{SX}:{SX+3}], s{T3} offen
    .Lk4_nob:
    """)
    def dma(sw_check, lab=None):
        s = []
        if sw_check:
            s.append(f"s_cmp_eq_u32 s{S_DST}, 56\n s_cbranch_scc0 {lab}")
            s.append(f"s_mov_b32 s{SB}, s{S_WO}\n s_mov_b32 s{SB+1}, s{S_WO+1}\n s_mov_b32 s{SB+2}, {hx(2*MB)}\n s_mov_b32 s{S_BO}, 0")
            s.append(f"{lab}:")
        s.append(f"s_cmp_lt_u32 s{S_DST}, s{S_END}")
        s.append(f"s_cselect_b32 s{T0}, s{S_AO}, s{S_BG}")
        s.append(f"s_cselect_b32 s{T1}, s{S_BO}, s{S_BG}")
        s.append(f"s_add_u32 m0, s{S_SW}, s{S_M0}")
        s.append(f"s_add_u32 s{S_AO}, s{S_AO}, 16384")
        s.append(f"buffer_load_dwordx4 v{VDB0}, s[{SB}:{SB+3}], s{T1} offen lds")
        p = ["\n".join(s)]
        p.append(f"buffer_load_dwordx4 v{VDB1}, s[{SB}:{SB+3}], s{T1} offen offset:1024 lds")
        p.append(f"buffer_load_dwordx4 v{VDA}, s[{SA}:{SA+3}], s{T0} offen offset:2048 lds")
        p.append(f"""buffer_load_dwordx4 v{VDA}, s[{SA}:{SA+3}], s{T0} offen offset:3072 lds
        s_add_u32 s{S_BO}, s{S_BO}, {64*2048}
        s_add_u32 s{S_DST}, s{S_DST}, 1
        s_add_u32 s{S_SW}, s{S_SW}, 32768
        s_cmp_ge_u32 s{S_SW}, {32768*D}
        s_cselect_b32 s{S_SW}, 0, s{S_SW}""")
        return p
    for d in range(D):
        for t in dma(False): a(t)
    a(f"""
    s_cmp_eq_u32 s{S_KH}, 0
    s_cbranch_scc1 .Lk4_z
    s_waitcnt vmcnt({4*D+4})
    s_mov_b32 s{T0}, 0xffff0000
    """)
    for k in range(16):
        a(f"v_lshlrev_b32 v{ACCM+2*k}, 16, v{Y+k}")
        a(f"v_and_b32 v{ACCM+2*k+1}, s{T0}, v{Y+k}")
    for k in range(32):
        a(f"v_mov_b32 v{ACCS+k}, 0")
    a("s_branch .Lk4_i\n .Lk4_z:")
    for k in range(32):
        a(f"v_mov_b32 v{ACCM+k}, 0")
    a(".Lk4_i:")
    def reads(b, blk):
        r = []
        for s in range(2):
            for ct in range(2):
                w = b + 8 + (s*2+ct)*4
                for hf in range(2):
                    r.append(f"ds_read_b64_tr_b16 {vr(w+2*hf,2)}, v{VW1 if ct else VW0} offset:{(4*blk+s+2*hf)*4096}")
                if ct == 0:
                    r.append(f"ds_read_b128 {vr(b+4*s,4)}, v{VTOK} offset:{(4*blk+2*s)*4096+2048}")
        return r
    def mf(b, acc):
        return [mf32(acc+16*ct, b+8+(s*2+ct)*4, b+4*s, acc+16*ct) for s in range(2) for ct in range(2)]
    a(f"s_waitcnt vmcnt({4*(D-1)})\n s_barrier")
    for t in reads(X, 0): a(t)
    def loop(tag, acc, sw):
        a(f".Lk4_{tag}:")
        for t in reads(Y, 1): a(t)
        a("s_waitcnt lgkmcnt(10)")
        for t in mf(X, acc): a(t)
        a(f"""
        s_add_u32 s{S_SR}, s{S_SR}, 32768
        s_cmp_ge_u32 s{S_SR}, {32768*D}
        s_cselect_b32 s{S_SR}, 0, s{S_SR}
        s_waitcnt lgkmcnt(0)
        v_add_u32 v{VTOK}, s{S_SR}, v{VTOKC}
        v_add_u32 v{VW0}, s{S_SR}, v{VW0C}
        v_add_u32 v{VW1}, s{S_SR}, v{VW1C}
        s_waitcnt vmcnt({4*(D-2)})
        s_barrier
        """)
        for t in reads(X, 0): a(t)
        dm = dma(sw, f".Lk4_{tag}_sw")
        m = mf(Y, acc)
        for i in range(4):
            a(m[i]); a(dm[i])
        a(f"""
        s_sub_u32 s{S_N}, s{S_N}, 1
        s_cmp_lg_u32 s{S_N}, 0
        s_cbranch_scc1 .Lk4_{tag}
        """)
    loop("lm", ACCM, True)
    a(f"""
    s_lshl_b32 s{T2}, s{S_TILE}, 16
    s_lshl_b32 s{T3}, s3, 13
    s_add_u32 s{T2}, s{T2}, s{T3}
    s_add_u32 s{T2}, s{T2}, {hx(MP_OFF)}
    s_add_u32 s{T3}, s{T2}, 4096
    s_lshl_b32 s{S_TILE}, s{S_TILE}, 7
    s_add_u32 s{S_TILE}, s{S_TILE}, {hx(FLG_OFF)}
    v_lshlrev_b32 v{VT}, 4, v{VL}
    s_cmp_eq_u32 s{S_KH}, 0
    s_cbranch_scc0 .Lk4_p1
    """)
    stamp(a, 1, 2, SWS, 144, 44)
    a("s_nop 15\n s_nop 3")
    for i in range(8):
        a(f"buffer_store_dwordx4 {vr(ACCM+4*i,4)}, v{VT}, s[{SWS}:{SWS+3}], s{T2 if i<4 else T3} offen offset:{(i&3)*1024} sc1")
    a(f"""
    s_waitcnt vmcnt(0) lgkmcnt(0)
    s_barrier
    s_cmp_lg_u32 s3, 0
    s_cbranch_scc1 .Lk4_end
    v_mov_b32 v{VT}, 1
    v_mov_b32 v{VT+1}, 0
    s_mov_b64 exec, 1
    buffer_store_dword v{VT}, v{VT+1}, s[{SWS}:{SWS+3}], s{S_TILE} offen sc1
    s_mov_b64 exec, -1
    """)
    stamp(a, 2, 2, SWS, 144, 44)
    a(f"""
    s_waitcnt vmcnt(0)
    s_branch .Lk4_end
    .Lk4_p1:
    s_mov_b32 s{S_N}, 16
    s_mov_b32 s50, s{T2}
    s_mov_b32 s51, s{T3}
    """)
    loop("ls", ACCS, False)
    stamp(a, 1, 2, SWS, 144, 44)
    a(f"""
    s_load_dwordx2 s[{SX}:{SX+1}], s[0:1], 72
    s_waitcnt vmcnt(0)
    s_cmp_lg_u32 s3, 0
    s_cbranch_scc1 .Lk4_polled
    s_mov_b32 s{S_N}, {OPT['spin']}
    v_mov_b32 v{VT+1}, 0
    .Lk4_poll:
    buffer_load_dword v{VT+2}, v{VT+1}, s[{SWS}:{SWS+3}], s{S_TILE} offen sc1
    s_waitcnt vmcnt(0)
    v_readfirstlane_b32 s{T0}, v{VT+2}
    s_sub_u32 s{S_N}, s{S_N}, 1
    s_cmp_eq_u32 s{S_N}, 0
    s_cbranch_scc1 .Lk4_polled
    s_cmp_eq_u32 s{T0}, 0
    s_cbranch_scc1 .Lk4_poll
    .Lk4_polled:
    s_waitcnt lgkmcnt(0)
    s_barrier
    """)
    stamp(a, 2, 2, SWS, 144, 44)
    PB = 64
    for i in range(8):
        a(f"buffer_load_dwordx4 {vr(PB+4*i,4)}, v{VT}, s[{SWS}:{SWS+3}], s{50 if i<4 else 51} offen offset:{(i&3)*1024} sc1")
    VWR, VRD = VT+1, VT+2
    a(f"""
    s_mul_i32 s{T0}, s3, 4608
    v_and_b32 v{VWR}, 31, v{VL}
    v_mul_u32_u24 v{VWR}, 144, v{VWR}
    v_lshrrev_b32 v{VT+3}, 5, v{VL}
    v_lshl_add_u32 v{VWR}, v{VT+3}, 3, v{VWR}
    v_add_u32 v{VWR}, s{T0}, v{VWR}
    v_lshrrev_b32 v{VRD}, 3, v{VL}
    v_mul_u32_u24 v{VRD}, 144, v{VRD}
    v_and_b32 v{VT+3}, 7, v{VL}
    v_lshl_add_u32 v{VRD}, v{VT+3}, 4, v{VRD}
    v_add_u32 v{VRD}, s{T0}, v{VRD}
    s_mov_b32 s{T0}, {hx(f2u(-LOG2E))}
    s_mov_b32 s{T1}, 16384
    s_mov_b32 s{T2}, 32768
    s_mov_b32 s{T3}, 49152
    s_mov_b32 s52, 0xffff0000
    """)
    TM = 96
    for i in range(0, 8, 2):
        a(f"s_waitcnt vmcnt({6-i})")
        n = 8
        m = [ACCM+4*i+k for k in range(n)]
        p = [PB+4*i+k for k in range(n)]
        s_ = [ACCS+4*i+k for k in range(n)]
        t = [TM+k for k in range(n)]
        for k in range(n): a(f"v_add_f32 v{m[k]}, v{m[k]}, v{p[k]}")
        for k in range(n): a(f"v_mul_f32 v{t[k]}, s{T0}, v{m[k]}")
        for k in range(n): a(f"v_exp_f32 v{t[k]}, v{t[k]}")
        for k in range(n): a(f"v_mul_f32 v{m[k]}, v{m[k]}, v{s_[k]}")
        for k in range(n): a(f"v_add_f32 v{t[k]}, 1.0, v{t[k]}")
        for k in range(n): a(f"v_rcp_f32 v{t[k]}, v{t[k]}")
        a("s_nop 0")
        for k in range(n): a(f"v_mul_f32 v{m[k]}, v{m[k]}, v{t[k]}")
        pk = TM + 8 + (i & 2)*2
        for k in range(4): a(f"v_cvt_pk_bf16_f32 v{pk+k}, v{m[2*k]}, v{m[2*k+1]}")
        for k in range(2):
            ii = i + k
            a(f"ds_write_b64 v{VWR}, {vr(pk+2*k,2)} offset:{(ii>>2)*64+(ii&3)*16}")
    a("s_waitcnt lgkmcnt(0)")
    for i in range(4):
        a(f"ds_read_b128 {vr(PB+4*i,4)}, v{VRD} offset:{i*1152}")
    so = ["0", f"s{T1}", f"s{T2}", f"s{T3}"]
    for i in range(4):
        a(f"s_waitcnt lgkmcnt({3-i})")
        for k in range(4):
            y = PB+4*i+k; x = XR+4*i+k; t = TM + 4*(k & 3)
            a(f"v_lshlrev_b32 v{t}, 16, v{y}")
            a(f"v_and_b32 v{t+1}, s52, v{y}")
            a(f"v_lshlrev_b32 v{t+2}, 16, v{x}")
            a(f"v_and_b32 v{t+3}, s52, v{x}")
            a(f"v_add_f32 v{t}, v{t}, v{t+2}")
            a(f"v_add_f32 v{t+1}, v{t+1}, v{t+3}")
            a(f"v_cvt_pk_bf16_f32 v{y}, v{t}, v{t+1}")
        a(f"buffer_store_dwordx4 {vr(PB+4*i,4)}, v{VXO}, s[{SX}:{SX+3}], {so[i]} offen")
    stamp(a, 3, 2, SWS, 144, 44)
    a("s_waitcnt vmcnt(0)")
    a(".Lk4_end:")
    return a.text()

def build(path):
    ks = [("ln_kernel", k1(), 40, 40, 24),
          ("mid_kernel", k2(), 256, 256, 64),
          ("fin_kernel", k4(), 152, 152, 64)]
    ks = [(l, hazard.fix(b, OPT.get("v", 0)), x, y, z) for (l, b, x, y, z) in ks]
    ls = [("ln_kernel", (512,1,1), (256,1,1), 0),
          ("mid_kernel", (256,1,1), (512,1,1), K2_LDS),
          ("fin_kernel", (256,1,1), (512,1,1), 32768*OPT["k4_depth"])]
    open(path, "w").write(build_file(ks, ls))

if __name__ == "__main__":
    out = sys.argv[1]
    for kv in sys.argv[2:]:
        k, v = kv.split("=")
        OPT[k] = int(v)
    build(out)
```

```python
from asmlib import *
import gen as G
from gen import hx, f2u, vr, MB, HO_OFF, MP_OFF, FLG_OFF, LOG2E, stamp

NSLOT = 5
SLOT = 32768
K4_LDS = NSLOT * SLOT

def mf16(d, A, B):
    return f"v_mfma_f32_16x16x32_bf16 {vr(d,4)}, {vr(A,4)}, {vr(B,4)}, {vr(d,4)}"

def weave(a, mf, fill):
    for p, t in fill:
        if p < 0: a(t)
    for i, m in enumerate(mf):
        a(m)
        for p, t in fill:
            if p == i: a(t)
    for p, t in fill:
        if p >= len(mf): a(t)

def k4():
    OPT = G.OPT
    a = Asm()
    SWS, SB, SO, SX, SBI = 4, 8, 12, 16, 20
    S_MT, S_NT, S_P, S_WM, S_WN, S_TILE = 24, 25, 26, 27, 28, 29
    S_SLOT, S_DLT, S_CNT, S_AO, S_BO, S_M0A, S_M0B = 30, 31, 32, 33, 34, 35, 36
    T0, T1, T2, T3 = 40, 41, 42, 43
    S_PO0, S_PO1, S_PP0, S_PP1, S_FO, S_FP, S_MSK, S_C, S_HI, S_X1 = 44, 45, 46, 47, 48, 49, 50, 51, 52, 53
    ST = 56
    ACCM, ACCS, X, Y, XR = 0, 64, 96, 128, 160
    VTA, VTB, VTS, VW, VL, VXO, VL16, VZ = 176, 177, 178, 180, 184, 185, 186, 187
    VT = 188
    VST = 200
    TFLAG, TPOLL, TCHK, TEND = OPT.get("k4_tflag", 3), OPT.get("k4_tpoll", 6), OPT.get("k4_tchk", 9), 12
    BPOS = OPT.get("k4_bpos", 13)
    def tcap(i):
        return f"s_memtime s[{64+2*i}:{65+2*i}]" if OPT["stamp"] else ""
    def tdump(n):
        if not OPT["stamp"]: return
        a("s_waitcnt lgkmcnt(0)")
        for i in range(n):
            a(f"v_mov_b32 v{VST}, s{64+2*i}\n v_mov_b32 v{VST+1}, s{65+2*i}\n s_add_u32 s{ST+4}, s{ST+4}, 16")
            a(f"buffer_store_dwordx4 v[{VST}:{VST+3}], v{VST+4}, s[{SWS}:{SWS+3}], s{ST+4} offen")
    a(f"""
    s_cmp_ge_u32 s2, 256
    s_cbranch_scc1 .Lk4_end
    s_load_dwordx2 s[{SWS}:{SWS+1}], s[0:1], 88
    s_load_dwordx2 s[{SB}:{SB+1}], s[0:1], 56
    s_load_dwordx2 s[{SO}:{SO+1}], s[0:1], 24
    s_load_dwordx2 s[{SX}:{SX+1}], s[0:1], 0
    s_load_dwordx2 s[{SBI}:{SBI+1}], s[0:1], 64
    v_lshrrev_b32 v1, 6, v0
    v_and_b32 v{VL}, 63, v0
    s_and_b32 s{T0}, s2, 7
    v_readfirstlane_b32 s3, v1
    s_lshr_b32 s{T1}, s2, 3
    s_and_b32 s{S_P}, s{T0}, 1
    s_bfe_u32 s{T2}, s{T0}, 0x10001
    s_lshl_b32 s{T2}, s{T2}, 3
    s_and_b32 s{S_MT}, s{T1}, 7
    s_add_u32 s{S_MT}, s{S_MT}, s{T2}
    s_lshr_b32 s{T2}, s{T0}, 2
    s_lshl_b32 s{T2}, s{T2}, 2
    s_lshr_b32 s{S_NT}, s{T1}, 3
    s_add_u32 s{S_NT}, s{S_NT}, s{T2}
    s_mov_b32 s{SWS+2}, {hx(256*MB)}
    s_mov_b32 s{SWS+3}, 0x00020000
    s_mov_b32 s{SB+2}, {hx(3584*2048)}
    s_mov_b32 s{SB+3}, 0x00020000
    s_mov_b32 s{SO+2}, {hx(2*MB)}
    s_mov_b32 s{SO+3}, 0x00020000
    s_mov_b32 s{SX+2}, {hx(4*MB)}
    s_mov_b32 s{SX+3}, 0x00020000
    s_mov_b32 s{SBI+2}, 2048
    s_mov_b32 s{SBI+3}, 0x00020000
    s_mov_b32 s{S_SLOT}, 0
    s_cmp_lt_u32 s3, 4
    s_cbranch_scc1 .Lk4_cons
    """)
    VA, VAS, VB = 2, 3, 8
    a(f"""
    s_and_b32 s{S_WM}, s3, 3
    s_lshl_b32 s{S_M0A}, s{S_WM}, 12
    s_add_u32 s{S_M0B}, s{S_M0A}, 16384
    v_lshlrev_b32 v{VA}, 4, v{VL}
    v_add_u32 v{VA}, s{S_M0A}, v{VA}
    s_mul_i32 s{S_AO}, s{S_MT}, {144*8192}
    s_add_u32 s{S_AO}, s{S_AO}, {hx(HO_OFF)}
    s_add_u32 s{S_X1}, s{S_AO}, {112*8192}
    s_mul_i32 s{T0}, s{S_P}, {28*16384}
    s_add_u32 s{S_AO}, s{S_AO}, s{T0}
    s_mul_i32 s{S_BO}, s{S_P}, {28*131072}
    v_lshrrev_b32 v{VT}, 4, v{VL}
    v_and_b32 v{VT+1}, 15, v{VL}
    v_lshlrev_b32 v{VT+2}, 1, v{VT}
    v_xor_b32 v{VT+1}, v{VT+1}, v{VT+2}
    s_lshl_b32 s{T0}, s{S_WM}, 4
    v_add_u32 v{VT}, s{T0}, v{VT}
    v_lshlrev_b32 v{VT}, 11, v{VT}
    v_lshl_add_u32 v{VT}, v{VT+1}, 4, v{VT}
    s_lshl_b32 s{T0}, s{S_NT}, 8
    v_add_u32 v{VB}, s{T0}, v{VT}
    v_xor_b32 v{VB+1}, 128, v{VB}
    v_add_u32 v{VB+2}, {2*(8192-1024)}, v{VB}
    v_add_u32 v{VB+3}, {3*(8192-1024)}, v{VB+1}
    v_add_u32 v{VB+1}, {8192-1024}, v{VB+1}
    v_lshrrev_b32 v{VT}, 5, v{VL}
    v_and_b32 v{VT+1}, 31, v{VL}
    v_lshl_add_u32 v{VT}, v{VT}, 6, v{VT+1}
    s_lshl_b32 s{T0}, s{S_P}, 5
    v_add_u32 v{VT}, s{T0}, v{VT}
    v_lshlrev_b32 v{VT}, 4, v{VT}
    v_add_u32 v{VAS}, s{S_M0A}, v{VT}
    v_add_u32 v{VAS+1}, 1024, v{VAS}
    s_waitcnt lgkmcnt(0)
    """)
    def adv():
        return f"""
        s_add_u32 s{S_AO}, s{S_AO}, 16384
        s_add_u32 s{S_BO}, s{S_BO}, 131072
        s_add_u32 s{S_SLOT}, s{S_SLOT}, {SLOT}
        s_cmp_ge_u32 s{S_SLOT}, {K4_LDS}
        s_cselect_b32 s{S_SLOT}, 0, s{S_SLOT}
        """
    def dma_m():
        a(f"s_add_u32 m0, s{S_SLOT}, s{S_M0B}")
        for i in range(4):
            a(f"buffer_load_dwordx4 v{VB+i}, s[{SB}:{SB+3}], s{S_BO} offen offset:{i*1024} lds")
        a(f"s_add_u32 m0, s{S_SLOT}, s{S_M0A}")
        for i in range(4):
            a(f"buffer_load_dwordx4 v{VA}, s[{SWS}:{SWS+3}], s{S_AO} offen offset:{i*1024} lds")
        a(adv())
    def dma_s():
        a(f"s_add_u32 m0, s{S_SLOT}, s{S_M0B}")
        for i in range(4):
            a(f"buffer_load_dwordx4 v{VB+i}, s[{SO}:{SO+3}], s{S_BO} offen offset:{i*1024} lds")
        a(f"s_add_u32 m0, s{S_SLOT}, s{S_M0A}")
        for i in range(2):
            a(f"buffer_load_dwordx4 v{VAS+i}, s[{SWS}:{SWS+3}], s{S_AO} offen offset:{i*1024} lds")
        a(adv())
    a(f"s_mov_b32 s{S_CNT}, {NSLOT}\n .Lk4_pp:")
    dma_m()
    a(f"s_sub_u32 s{S_CNT}, s{S_CNT}, 1\n s_cmp_lg_u32 s{S_CNT}, 0\n s_cbranch_scc1 .Lk4_pp")
    stamp(a, 0, 2, SWS, VST, ST)
    a(f"s_waitcnt vmcnt({8*(NSLOT-1)})")
    stamp(a, 1, 2, SWS, VST, ST)
    a(f"s_barrier\n s_mov_b32 s{S_CNT}, {28-NSLOT}\n .Lk4_pm:")
    a(f"s_waitcnt vmcnt({8*(NSLOT-2)})\n s_barrier")
    dma_m()
    a(f"s_sub_u32 s{S_CNT}, s{S_CNT}, 1\n s_cmp_lg_u32 s{S_CNT}, 0\n s_cbranch_scc1 .Lk4_pm")
    a(f"""
    s_mov_b32 s{S_AO}, s{S_X1}
    s_mov_b32 s{S_BO}, 0
    s_lshr_b32 s{S_M0A}, s{S_M0A}, 1
    s_mov_b32 s{S_CNT}, 16
    .Lk4_ps:
    s_waitcnt vmcnt({6*(NSLOT-2)})
    s_barrier
    """)
    dma_s()
    a(f"s_sub_u32 s{S_CNT}, s{S_CNT}, 1\n s_cmp_lg_u32 s{S_CNT}, 0\n s_cbranch_scc1 .Lk4_ps")
    for k in range(NSLOT-2, -1, -1):
        a(f"s_waitcnt vmcnt({6*k})\n s_barrier")
    stamp(a, 2, 2, SWS, VST, ST)
    a("s_waitcnt vmcnt(0)\n s_branch .Lk4_end")
    a(f"""
    .Lk4_cons:
    s_and_b32 s{S_WM}, s3, 1
    s_lshr_b32 s{S_WN}, s3, 1
    s_lshl_b32 s{S_TILE}, s{S_MT}, 3
    s_add_u32 s{S_TILE}, s{S_TILE}, s{S_NT}
    v_lshrrev_b32 v{VT}, 4, v{VL}
    v_and_b32 v{VT+1}, 15, v{VL}
    v_lshlrev_b32 v{VL16}, 4, v{VL}
    v_mov_b32 v{VZ}, 0
    s_lshl_b32 s{T0}, s{S_NT}, 8
    s_lshl_b32 s{T1}, s{S_WN}, 7
    s_add_u32 s{T0}, s{T0}, s{T1}
    v_lshlrev_b32 v{VT+2}, 3, v{VT}
    s_lshl_b32 s{T1}, s{S_MT}, 7
    s_lshl_b32 s{T2}, s{S_WM}, 6
    s_lshl_b32 s{T3}, s{S_P}, 5
    s_add_u32 s{T2}, s{T2}, s{T3}
    s_add_u32 s{T1}, s{T1}, s{T2}
    v_add_u32 v{VXO}, s{T1}, v{VT+1}
    v_lshlrev_b32 v{VXO}, 11, v{VXO}
    v_and_b32 v{VT+3}, 1, v{VT}
    v_lshl_add_u32 v{VXO}, v{VT+3}, 5, v{VXO}
    v_lshrrev_b32 v{VT+3}, 1, v{VT}
    v_lshl_add_u32 v{VXO}, v{VT+3}, 4, v{VXO}
    v_add_u32 v{VXO}, s{T0}, v{VXO}
    s_mov_b32 s{S_X1}, 32768
    s_waitcnt lgkmcnt(0)
    """)
    for j in range(4):
        a(f"buffer_load_dwordx2 {vr(Y+2*j,2)}, v{VT+2}, s[{SBI}:{SBI+3}], s{T0} offen offset:{32*j}")
    for i in range(2):
        for jp in range(2):
            a(f"buffer_load_dwordx4 {vr(XR+(i*2+jp)*4,4)}, v{VXO}, s[{SX}:{SX+3}], {'0' if i==0 else 's%d'%S_X1} offen offset:{64*jp}")
    stamp(a, 0, 2, SWS, VST, ST)
    a(f"""
    s_load_dwordx2 s[{SX}:{SX+1}], s[0:1], 72
    v_add_u32 v{VTA}, s{T2}, v{VT+1}
    v_lshlrev_b32 v{VTA}, 4, v{VTA}
    v_lshl_add_u32 v{VTA}, v{VT}, 11, v{VTA}
    v_xor_b32 v{VTB}, 512, v{VTA}
    s_lshl_b32 s{T1}, s{S_WM}, 5
    v_add_u32 v{VTS}, s{T1}, v{VT+1}
    v_lshlrev_b32 v{VTS}, 4, v{VTS}
    v_lshl_add_u32 v{VTS}, v{VT}, 10, v{VTS}
    v_add_u32 v{VTS}, {(28 % NSLOT)*SLOT}, v{VTS}
    v_lshrrev_b32 v{VT+1}, 2, v{VL}
    v_and_b32 v{VT+2}, 7, v{VT+1}
    v_lshlrev_b32 v{VT+2}, 5, v{VT+2}
    v_lshlrev_b32 v{VT+1}, 8, v{VT+1}
    v_and_b32 v{VT+3}, 3, v{VL}
    v_lshlrev_b32 v{VT+3}, 3, v{VT+3}
    s_lshl_b32 s{T1}, s{S_WN}, 7
    v_or_b32 v{VT+3}, s{T1}, v{VT+3}
    v_xor_b32 v{VT+3}, v{VT+3}, v{VT+2}
    v_add_u32 v{VT+1}, 16384, v{VT+1}
    v_add_u32 v{VW}, v{VT+1}, v{VT+3}
    v_xor_b32 v{VW+1}, 32, v{VW}
    v_xor_b32 v{VW+2}, 64, v{VW}
    v_xor_b32 v{VW+3}, 96, v{VW}
    s_lshl_b32 s{T1}, s{S_TILE}, 1
    s_add_u32 s{T1}, s{T1}, s{S_P}
    s_xor_b32 s{T2}, s{T1}, 1
    s_lshl_b32 s{T3}, s3, 2
    s_add_u32 s{T3}, s{T3}, {hx(FLG_OFF)}
    s_lshl_b32 s{S_FO}, s{T1}, 7
    s_add_u32 s{S_FO}, s{S_FO}, s{T3}
    s_lshl_b32 s{S_FP}, s{T2}, 7
    s_add_u32 s{S_FP}, s{S_FP}, s{T3}
    s_lshl_b32 s{T3}, s3, 13
    s_add_u32 s{T3}, s{T3}, {hx(MP_OFF)}
    s_lshl_b32 s{S_PO0}, s{T1}, 15
    s_add_u32 s{S_PO0}, s{S_PO0}, s{T3}
    s_add_u32 s{S_PO1}, s{S_PO0}, 4096
    s_lshl_b32 s{S_PP0}, s{T2}, 15
    s_add_u32 s{S_PP0}, s{S_PP0}, s{T3}
    s_add_u32 s{S_PP1}, s{S_PP0}, 4096
    s_mov_b32 s{S_MSK}, {hx((1<<TFLAG)|(1<<TPOLL)|(1<<TCHK))}
    s_mov_b32 s{S_C}, {hx(f2u(-LOG2E))}
    s_mov_b32 s{S_HI}, 0xffff0000
    """)
    for k in range(32, 96):
        a(f"v_mov_b32 v{k}, 0")
    a(f"s_waitcnt vmcnt({4 + (1 if OPT['stamp'] else 0)})")
    for j in range(4):
        for h in range(2):
            a(f"v_lshlrev_b32 v{ACCM+4*j+2*h}, 16, v{Y+2*j+h}")
            a(f"v_and_b32 v{ACCM+4*j+2*h+1}, s{S_HI}, v{Y+2*j+h}")
    for k in range(16):
        a(f"v_mov_b32 v{ACCM+16+k}, v{ACCM+k}")
    a("s_waitcnt lgkmcnt(0)")

    def rW(b, blk, j):
        return [f"ds_read_b64_tr_b16 {vr(b+4*j+2*hf,2)}, v{VW+j} offset:{blk*8192+hf*4096}" for hf in range(2)]
    def reads_m(b, blk):
        T = [f"ds_read_b128 {vr(b+16+4*i,4)}, v{VTA if i<2 else VTB} offset:{blk*8192+(i&1)*256}" for i in range(4)]
        r = []; s = 0
        for j in range(4):
            r += [(s, t) for t in rW(b, blk, j)]; s += 1
            r.append((s, T[j])); s += 1
        return r
    def reads_s(b, blk):
        T = [f"ds_read_b128 {vr(b+16+4*i,4)}, v{VTS} offset:{blk*4096+i*256}" for i in range(2)]
        r = [(0, t) for t in rW(b, blk, 0)] + [(1, T[0])] + [(2, t) for t in rW(b, blk, 1)] + [(3, T[1])]
        r += [(4, t) for t in rW(b, blk, 2)] + [(5, t) for t in rW(b, blk, 3)]
        return r
    def mf_m(b, order=(0, 1, 2, 3)):
        return [mf16(ACCM+(i*4+j)*4, b+4*j, b+16+4*i) for i in order for j in range(4)]
    def mf_s(b):
        return [mf16(ACCS+(i*4+j)*4, b+4*j, b+16+4*i) for i in range(2) for j in range(4)]
    slotadv = f"""
        s_add_u32 s{S_SLOT}, s{S_SLOT}, {SLOT}
        s_cmp_ge_u32 s{S_SLOT}, {K4_LDS}
        s_cselect_b32 s{S_SLOT}, 0, s{S_SLOT}
        s_cselect_b32 s{S_DLT}, {-(NSLOT-1)*SLOT}, s{S_X1}
        """
    def upd(regs): return [f"v_add_u32 v{r}, s{S_DLT}, v{r}" for r in regs]
    BAR = "s_waitcnt lgkmcnt(0)\n s_barrier"
    a("s_barrier")
    for _, t in reads_m(X, 0): a(t)
    def half0_m():
        a("s_waitcnt lgkmcnt(0)")
        u = upd([VW, VW+1, VW+2, VW+3, VTA, VTB])
        fill = [(p-1, t) for p, t in reads_m(Y, 1)] + [(7, slotadv)] + [(8+k//2, t) for k, t in enumerate(u)] + [(BPOS, BAR)]
        weave(a, mf_m(X), fill)
    a(f"s_mov_b32 s{S_CNT}, 27\n .Lk4_cm:")
    half0_m()
    weave(a, mf_m(Y), [(p, t) for p, t in reads_m(X, 0)] + [(12, f"s_sub_u32 s{S_CNT}, s{S_CNT}, 1\n s_cmp_lg_u32 s{S_CNT}, 0")])
    a("s_cbranch_scc1 .Lk4_cm")
    half0_m()
    weave(a, mf_m(Y, (2, 3, 0, 1)), [(p, t) for p, t in reads_s(X, 0)])
    stamp(a, 1, 2, SWS, VST, ST)
    def half0_s(extra=[], bar=True):
        a("s_waitcnt lgkmcnt(0)")
        fill = [(p-1, t) for p, t in reads_s(Y, 1)]
        if bar:
            u = upd([VW, VW+1, VW+2, VW+3, VTS])
            fill += [(4, slotadv)] + [(5+k//3, t) for k, t in enumerate(u)]
        fill += extra
        if bar: fill += [(OPT.get("k4_bpos_s", 7), BAR)]
        else: fill += [(7, "s_waitcnt lgkmcnt(0)")]
        weave(a, mf_s(X), fill)
    def half1_s(extra=[], rd=True):
        weave(a, mf_s(Y), ([(p, t) for p, t in reads_s(X, 0)] if rd else []) + extra)
    def pub(k):
        return f"buffer_store_dwordx4 {vr(ACCM+32+4*k,4)}, v{VL16}, s[{SWS}:{SWS+3}], s{S_PO0 if k<4 else S_PO1} offen offset:{(k&3)*1024} sc1"
    half0_s([(2*k, pub(k)) for k in range(4)])
    half1_s([(2*k+1, pub(4+k)) for k in range(4)])
    a(f"s_mov_b32 s{S_CNT}, 1\n .Lk4_cs:")
    a(f"s_bitcmp1_b32 s{S_MSK}, s{S_CNT}\n s_cbranch_scc1 .Lk4_side\n .Lk4_back:")
    half0_s()
    half1_s([(6, f"s_add_u32 s{S_CNT}, s{S_CNT}, 1\n s_cmp_lg_u32 s{S_CNT}, {TEND}")])
    a("s_cbranch_scc1 .Lk4_cs")
    def silu(k):
        m = [ACCM+4*k+r for r in range(4)]; p = [ACCM+32+4*k+r for r in range(4)]; t = [VT+r for r in range(4)]
        i, j = k >> 2, k & 3
        xr = XR + (i*2+(j >> 1))*4 + (j & 1)*2
        L = [f"s_waitcnt vmcnt({7-k})"]
        L += [f"v_add_f32 v{m[r]}, v{m[r]}, v{p[r]}" for r in range(4)]
        L += [f"v_mul_f32 v{t[r]}, s{S_C}, v{m[r]}" for r in range(4)]
        L += [f"v_exp_f32 v{t[r]}, v{t[r]}" for r in range(4)]
        L += [f"v_lshlrev_b32 v{p[0]}, 16, v{xr}", f"v_and_b32 v{p[1]}, s{S_HI}, v{xr}"]
        L += [f"v_add_f32 v{t[r]}, 1.0, v{t[r]}" for r in range(4)]
        L += [f"v_rcp_f32 v{t[r]}, v{t[r]}" for r in range(4)]
        L += [f"v_lshlrev_b32 v{p[2]}, 16, v{xr+1}", f"v_and_b32 v{p[3]}, s{S_HI}, v{xr+1}"]
        L += [f"v_mul_f32 v{m[r]}, v{m[r]}, v{t[r]}" for r in range(4)]
        n = len(L)
        return [(min(7, (q*8)//n), s) for q, s in enumerate(L)]
    for t in range(TEND, 16):
        last = t == 15
        if t <= TEND+1: a(tcap(5+t-TEND))
        half0_s(silu(2*(t-TEND)), bar=not last)
        half1_s(silu(2*(t-TEND)+1), rd=not last)
    stamp(a, 2, 2, SWS, VST, ST)
    for i in range(2):
        for jp in range(2):
            o = X + (i*2+jp)*4
            for jj in range(2):
                k = i*4 + jp*2 + jj
                for r in range(4):
                    a(f"v_fma_f32 v{ACCM+32+4*k+r}, v{ACCS+4*k+r}, v{ACCM+4*k+r}, v{ACCM+32+4*k+r}")
            for jj in range(2):
                k = i*4 + jp*2 + jj
                for h in range(2):
                    a(f"v_cvt_pk_bf16_f32 v{o+2*jj+h}, v{ACCM+32+4*k+2*h}, v{ACCM+32+4*k+2*h+1}")
    for q in range(4):
        o = X + q*4
        a(f"v_permlane16_swap_b32 v{o}, v{o+2}\n v_permlane16_swap_b32 v{o+1}, v{o+3}")
    for q in range(4):
        o = X + q*4
        a(f"buffer_store_dwordx4 {vr(o,4)}, v{VXO}, s[{SX}:{SX+3}], {'0' if q<2 else 's%d'%S_X1} offen offset:{64*(q&1)}")
    stamp(a, 3, 2, SWS, VST, ST)
    tdump(7)
    a("s_waitcnt vmcnt(0)\n s_branch .Lk4_end")
    a(f"""
    .Lk4_side:
    s_cmp_eq_u32 s{S_CNT}, {TPOLL}
    s_cbranch_scc1 .Lk4_poll
    s_cmp_eq_u32 s{S_CNT}, {TCHK}
    s_cbranch_scc1 .Lk4_chk
    {tcap(0)}
    v_mov_b32 v{VT}, 1
    s_waitcnt vmcnt(0)
    {tcap(1)}
    s_mov_b64 exec, 1
    buffer_store_dword v{VT}, v{VZ}, s[{SWS}:{SWS+3}], s{S_FO} offen sc1
    s_mov_b64 exec, -1
    """)
    for q in range(4):
        o = XR + q*4
        a(f"v_permlane16_swap_b32 v{o}, v{o+2}\n v_permlane16_swap_b32 v{o+1}, v{o+3}")
    a(f"""
    s_branch .Lk4_back
    .Lk4_poll:
    {tcap(2)}
    buffer_load_dword v{VT+4}, v{VZ}, s[{SWS}:{SWS+3}], s{S_FP} offen sc1
    s_branch .Lk4_back
    .Lk4_chk:
    {tcap(3)}
    s_mov_b32 s{T1}, {OPT['spin']}
    .Lk4_spin:
    s_waitcnt vmcnt(0)
    v_readfirstlane_b32 s{T0}, v{VT+4}
    s_sub_u32 s{T1}, s{T1}, 1
    s_cmp_lg_u32 s{T0}, 0
    s_cbranch_scc1 .Lk4_got
    s_cmp_eq_u32 s{T1}, 0
    s_cbranch_scc1 .Lk4_got
    buffer_load_dword v{VT+4}, v{VZ}, s[{SWS}:{SWS+3}], s{S_FP} offen sc1
    s_branch .Lk4_spin
    .Lk4_got:
    {tcap(4)}
    """)
    for k in range(8):
        a(f"buffer_load_dwordx4 {vr(ACCM+32+4*k,4)}, v{VL16}, s[{SWS}:{SWS+3}], s{S_PP0 if k<4 else S_PP1} offen offset:{(k&3)*1024} sc1")
    a("s_branch .Lk4_back")
    a(".Lk4_end:")
    return a.text()
```

```python
import sys, struct, math
from asmlib import *
import hazard

MB = 1 << 20
XN_OFF = 0
HO_OFF = 8 * MB
KVP_OFF = 32 * MB
ZP_OFF = 36 * MB
MP_OFF = 40 * MB
FLG_OFF = 48 * MB
TS_OFF = 200 * MB
BIG = 0x10000000
LOG2E = 1.4426950408889634

def f2u(x):
    return struct.unpack("<I", struct.pack("<f", x))[0]
def hx(x):
    return "0x%08x" % (x & 0xffffffff)
def vr(b, n):
    return f"v[{b}:{b+n-1}]" if n > 1 else f"v{b}"

OPT = dict(stamp=False, k4_depth=4, k4_n0=36, spin=200000)

def srd(a, d, ptr, size):
    if ptr != d:
        a(f"s_mov_b32 s{d}, s{ptr}")
        a(f"s_mov_b32 s{d+1}, s{ptr+1}")
    a(f"s_mov_b32 s{d+2}, {hx(size)}")
    a(f"s_mov_b32 s{d+3}, 0x00020000")

def stamp(a, idx, kern, srdws, vt, st):
    if not OPT["stamp"]:
        return
    a(f"s_memtime s[{st}:{st+1}]")
    a(f"s_memrealtime s[{st+2}:{st+3}]")
    a(f"s_lshl_b32 s{st+4}, s2, 3")
    a(f"s_add_u32 s{st+4}, s{st+4}, s3")
    a(f"s_lshl_b32 s{st+4}, s{st+4}, 8")
    a(f"s_add_u32 s{st+4}, s{st+4}, {hx(TS_OFF + kern*2*MB + idx*16)}")
    a("s_waitcnt lgkmcnt(0)")
    for k in range(4):
        a(f"v_mov_b32 v{vt+k}, s{st+k}")
    a(f"v_mov_b32 v{vt+4}, 0")
    a(f"buffer_store_dwordx4 v[{vt}:{vt+3}], v{vt+4}, s[{srdws}:{srdws+3}], s{st+4} offen")

def wave_sum(a, v, t):
    for m in ["quad_perm:[1,0,3,2]", "quad_perm:[2,3,0,1]", "row_half_mirror", "row_mirror"]:
        a("s_nop 1")
        a(f"v_add_f32_dpp v{v}, v{v}, v{v} {m} row_mask:0xf bank_mask:0xf")
    for op in ["v_permlane16_swap_b32", "v_permlane32_swap_b32"]:
        a(f"v_mov_b32 v{t}, v{v}")
        a("s_nop 1")
        a(f"{op} v{v}, v{t}")
        a("s_nop 1")
        a(f"v_add_f32 v{v}, v{v}, v{t}")

def k1():
    a = Asm()
    a(f"""
    s_cmp_ge_u32 s2, 512
    s_cbranch_scc1 .Lk1_end
    s_load_dwordx2 s[4:5], s[0:1], 0
    s_load_dwordx2 s[8:9], s[0:1], 88
    v_lshrrev_b32 v1, 6, v0
    v_and_b32 v2, 63, v0
    s_lshl_b32 s3, s2, 2
    v_add_u32 v1, s3, v1
    v_lshlrev_b32 v1, 11, v1
    v_lshl_add_u32 v1, v2, 4, v1
    s_mov_b32 s6, {hx(4*MB)}
    s_mov_b32 s7, 0x00020000
    s_mov_b32 s10, {hx(256*MB)}
    s_mov_b32 s11, 0x00020000
    s_mov_b32 s12, 0xffff0000
    s_waitcnt lgkmcnt(0)
    buffer_load_dwordx4 v[4:7], v1, s[4:7], 0 offen
    buffer_load_dwordx4 v[8:11], v1, s[4:7], 0 offen offset:1024
    v_lshrrev_b32 v2, 6, v0
    v_readfirstlane_b32 s3, v2
    """)
    stamp(a, 0, 0, 8, 32, 16)
    pf = OPT.get("pf1", 0)
    npf = 0
    if pf:
        a(f"""
        s_lshl_b32 s13, s2, 2
        s_add_u32 s13, s13, s3
        v_and_b32 v2, 63, v0
        v_lshlrev_b32 v2, 6, v2
        """)
        for bit, (ka, nb) in enumerate([(8, 1024*6144), (40, 1024*7168), (56, 3584*2048), (24, 2*MB)]):
            if pf >> bit & 1:
                r = 24 + 4*bit
                frac = OPT.get("pf1_frac", 1) if bit < 2 else 1
                per = nb // 2048 // frac
                a(f"""
                s_load_dwordx2 s[{r}:{r+1}], s[0:1], {ka}
                s_mov_b32 s{r+2}, {hx(nb)}
                s_mov_b32 s{r+3}, 0x00020000
                s_mul_i32 s14, s13, {per}
                v_cmp_gt_u32 vcc, {per}, v2
                s_waitcnt lgkmcnt(0)
                s_and_saveexec_b64 s[16:17], vcc
                buffer_load_dword v{36+bit}, v2, s[{r}:{r+3}], s14 offen
                s_mov_b64 exec, s[16:17]
                """)
                npf += 1
    a(f"s_waitcnt vmcnt({npf})")
    for i in range(8):
        a(f"v_lshlrev_b32 v{12+2*i}, 16, v{4+i}")
        a(f"v_and_b32 v{13+2*i}, s12, v{4+i}")
    for i in range(8):
        a(f"v_add_f32 v{28+i}, v{12+2*i}, v{13+2*i}")
    for i in range(4):
        a(f"v_add_f32 v{28+i}, v{28+i}, v{32+i}")
    a("v_add_f32 v28, v28, v30\n v_add_f32 v29, v29, v31\n v_add_f32 v28, v28, v29")
    wave_sum(a, 28, 29)
    a(f"v_mul_f32 v28, {hx(f2u(1.0/1024))}, v28")
    for i in range(16):
        a(f"v_sub_f32 v{12+i}, v{12+i}, v28")
    for i in range(4):
        a(f"v_mul_f32 v{30+i}, v{12+i}, v{12+i}")
    for i in range(4, 16):
        a(f"v_fmac_f32 v{30+(i&3)}, v{12+i}, v{12+i}")
    a("v_add_f32 v30, v30, v32\n v_add_f32 v31, v31, v33\n v_add_f32 v30, v30, v31")
    wave_sum(a, 30, 31)
    a(f"v_mov_b32 v31, {hx(f2u(1e-5))}")
    a(f"v_fmac_f32 v31, {hx(f2u(1.0/1024))}, v30")
    a("v_rsq_f32 v31, v31")
    a("s_nop 0")
    for i in range(16):
        a(f"v_mul_f32 v{12+i}, v{12+i}, v31")
    for i in range(8):
        a(f"v_cvt_pk_bf16_f32 v{4+i}, v{12+2*i}, v{13+2*i}")
    a("""
    buffer_store_dwordx4 v[4:7], v1, s[8:11], 0 offen
    buffer_store_dwordx4 v[8:11], v1, s[8:11], 0 offen offset:1024
    """)
    a(f"""
    s_cmp_ge_u32 s2, 256
    s_cbranch_scc1 .Lk1_noflag
    s_cmp_lg_u32 s3, 0
    s_cbranch_scc1 .Lk1_noflag
    v_lshlrev_b32 v2, 2, v0
    s_mov_b64 exec, 15
    s_lshl_b32 s13, s2, 7
    s_add_u32 s13, s13, {hx(FLG_OFF)}
    v_mov_b32 v3, 0
    buffer_store_dword v3, v2, s[8:11], s13 offen
    s_mov_b64 exec, -1
    .Lk1_noflag:
    s_waitcnt vmcnt(0)
    """)
    stamp(a, 1, 0, 8, 32, 16)
    a("""
    s_waitcnt vmcnt(0)
    .Lk1_end:
    """)
    return a.text()

BRING = 98304
SLOTB_M = 14464
SLOTB_A = 12288
WPHI_L = 147456
K2_LDS = 156160

S_W = 3
SRD_A = 4
SRD_B = 8
SRD_WS = 12
SRD_T = 16
S_I = 20
S_JN = 21
S_TG = 22
S_CH = 23
S_CUR, S_NXT, S_PRV = 24, 25, 26
S_BPAR = 27
S_AROW = 28
S_KA = 29
S_BOFF = 30
S_M0A = 31
S_M0B = 32
S_CNT = 33
S_BIG = 34
S_T0, S_T1, S_T2, S_T3 = 36, 37, 38, 39
S_EXB = 40
S_ST = 56
S_C0, S_C1 = 48, 49

class Pipe:
    pass

def k2_dma_A(a, vA, half, slot_sreg, ks_expr_add):
    ins = []
    pre = []
    pre.append(f"s_add_u32 s{S_T0}, s{S_KA}, {ks_expr_add}")
    pre.append(f"s_cmp_lt_u32 s{S_T0}, 2048")
    pre.append(f"s_cselect_b32 s{S_T1}, s{S_AROW}, s{S_BIG}")
    pre.append(f"s_add_u32 s{S_T0}, s{S_T0}, s{S_T1}")
    if half:
        pre.append(f"s_add_u32 s{S_T0}, s{S_T0}, 262144")
    pre.append(f"s_add_u32 s{S_T1}, s{slot_sreg}, s{S_M0A}")
    pre.append(f"s_add_u32 m0, s{S_T1}, {16384*half}")
    pre.append("s_nop 0")
    ins.append("\n".join(pre) + f"\nbuffer_load_dwordx4 v{vA}, s[{SRD_A}:{SRD_A+3}], s{S_T0} offen lds")
    ins.append(f"buffer_load_dwordx4 v{vA+1}, s[{SRD_A}:{SRD_A+3}], s{S_T0} offen offset:1024 lds")
    return ins

SRD_PF = 64
SRD_PF2 = 68
S_PF, S_PFS, S_PFS2 = 72, 73, 74
V_PF, V_PF2, V_PFD = 253, 254, 255
def k2_dma_B(a, vB, slot_add, e1off, rowbytes, pf=1):
    s = []
    s.append(f"s_add_u32 s{S_T1}, s{S_M0B}, s{S_BPAR}")
    s.append(f"s_add_u32 m0, s{S_T1}, {slot_add}")
    s.append(f"s_mov_b64 exec, s[{S_EXB}:{S_EXB+1}]")
    s.append(f"buffer_load_dwordx4 v{vB}, s[{SRD_B}:{SRD_B+3}], s{S_BOFF} offen lds")
    s.append(f"buffer_load_dwordx4 v{vB+1}, s[{SRD_B}:{SRD_B+3}], s{S_BOFF} offen offset:{e1off} lds")
    if OPT.get("pf2", 0):
        if pf:
            s.append(f"buffer_load_dword v{V_PFD}, v{V_PF}, s[{SRD_PF}:{SRD_PF+3}], s{S_PF} offen")
            s.append(f"s_add_u32 s{S_PF}, s{S_PF}, s{S_PFS}")
        else:
            s.append(f"buffer_load_dword v{V_PFD}, v{V_PF}, s[{SRD_PF}:{SRD_PF+3}], s{S_BIG} offen")
    s.append("s_mov_b64 exec, -1")
    s.append(f"s_add_u32 s{S_BOFF}, s{S_BOFF}, {32*rowbytes}")
    return ["\n".join(s)]

def interleave(a, mf, fill, npre, pre_bar):
    for m in mf[:npre]:
        a(m)
    a(pre_bar)
    rest = mf[npre:]
    for p, t in fill:
        if p < 0:
            a(t)
    for i, m in enumerate(rest):
        a(m)
        for p, t in fill:
            if p == i:
                a(t)
    for p, t in fill:
        if p >= len(rest):
            a(t)

def k2_main(a, tag, mfmas, reads, upd, vDA, vDB, slotb, e1off, rowbytes, npre, rpos, dpos):
    a(f"s_mov_b32 s{S_KA}, 0\n s_mov_b32 s{S_BPAR}, 0")
    for t in k2_dma_A(a, vDA, 0, S_CUR, 0): a(t)
    for t in k2_dma_A(a, vDA, 1, S_CUR, 0): a(t)
    npro = OPT.get("pf2_pro", 0)
    PFX = 1 if OPT.get("pf2", 0) else 0
    for t in k2_dma_B(a, vDB, 0, e1off, rowbytes, npro >= 4): a(t)
    for t in k2_dma_A(a, vDA, 0, S_NXT, 128): a(t)
    for t in k2_dma_B(a, vDB, slotb, e1off, rowbytes, npro >= 3): a(t)
    for t in k2_dma_A(a, vDA, 1, S_NXT, 128): a(t)
    for t in k2_dma_B(a, vDB, 2*slotb, e1off, rowbytes, npro >= 2): a(t)
    for t in k2_dma_A(a, vDA, 0, S_PRV, 256): a(t)
    for t in k2_dma_B(a, vDB, 3*slotb, e1off, rowbytes, npro >= 1): a(t)
    a(f"s_mov_b32 s{S_KA}, 256")
    yield "prologue"
    a(f"s_waitcnt vmcnt({12+3*PFX})\n s_barrier")
    for t in reads(0, 0, 0): a(t)
    a(f"s_mov_b32 s{S_CNT}, 16")
    a(f".Lk2_{tag}_loop:")
    a("s_waitcnt lgkmcnt(0)")
    rd = reads(1, 1, slotb)
    dm = k2_dma_A(a, vDA, 1, S_PRV, 0) + k2_dma_B(a, vDB, 0, e1off, rowbytes)
    if OPT.get("k2_nodma", 0): dm = []
    if OPT.get("k2_noread", 0): rd = []
    fill = [(rpos(i), t) for i, t in enumerate(rd)] + [(dpos[i], t) for i, t in enumerate(dm)]
    interleave(a, mfmas(0), fill, npre, f"s_waitcnt vmcnt({8+2*PFX})\n s_barrier")
    a("s_waitcnt lgkmcnt(0)")
    rd = reads(0, 0, 0)
    dm = k2_dma_A(a, vDA, 0, S_CUR, 128) + k2_dma_B(a, vDB, slotb, e1off, rowbytes)
    if OPT.get("k2_nodma", 0): dm = []
    if OPT.get("k2_noread", 0): rd = []
    fill = [(rpos(i), t) for i, t in enumerate(rd)] + [(dpos[i], t) for i, t in enumerate(dm)]
    interleave(a, mfmas(1), fill, npre, upd + f"\n s_waitcnt vmcnt({8+2*PFX})\n s_barrier")
    if PFX:
        a(f"""
        s_cmp_lg_u32 s{S_CNT}, {OPT.get("pf2_sw", 11)}
        s_cbranch_scc1 .Lk2_{tag}_nosw
        s_mov_b32 s{SRD_PF}, s{SRD_PF2}
        s_mov_b32 s{SRD_PF+1}, s{SRD_PF2+1}
        s_mov_b32 s{SRD_PF+2}, s{SRD_PF2+2}
        s_mov_b32 s{S_PF}, 0
        s_mov_b32 s{S_PFS}, s{S_PFS2}
        v_mov_b32 v{V_PF}, v{V_PF2}
        .Lk2_{tag}_nosw:
        """)
    a(f"""
    s_xor_b32 s{S_BPAR}, s{S_BPAR}, {2*slotb}
    s_mov_b32 s{S_T0}, s{S_CUR}
    s_mov_b32 s{S_CUR}, s{S_NXT}
    s_mov_b32 s{S_NXT}, s{S_PRV}
    s_mov_b32 s{S_PRV}, s{S_T0}
    s_add_u32 s{S_KA}, s{S_KA}, 128
    s_sub_u32 s{S_CNT}, s{S_CNT}, 1
    s_cmp_lg_u32 s{S_CNT}, 0
    s_cbranch_scc1 .Lk2_{tag}_loop
    """)
    yield "done"

def k2_pf_setup(a, VL, VT, own_ka, own_nb, rowbytes, nl, ka2, nb2, att):
    if not OPT.get("pf2", 0): return
    r0 = OPT.get("pf2_r0", 256) - 64*OPT.get("pf2_pro", 0)
    a(f"""
    s_load_dwordx2 s[{SRD_PF}:{SRD_PF+1}], s[0:1], {own_ka}
    s_load_dwordx2 s[{SRD_PF2}:{SRD_PF2+1}], s[0:1], {ka2}
    s_mov_b32 s{SRD_PF+2}, {hx(own_nb)}
    s_mov_b32 s{SRD_PF+3}, 0x00020000
    s_mov_b32 s{SRD_PF2+2}, {hx(nb2)}
    s_mov_b32 s{SRD_PF2+3}, 0x00020000
    s_mov_b32 s{S_PF}, {hx(r0*rowbytes)}
    s_mov_b32 s{S_PFS}, {hx(64*rowbytes)}
    s_mov_b32 s{S_PFS2}, {hx(1024*nl*64)}
    s_lshl_b32 s{S_T0}, s{S_I}, 3
    s_add_u32 s{S_T0}, s{S_T0}, s{S_W}
    s_lshl_b32 s{S_T1}, s{S_JN}, 6
    s_add_u32 s{S_T1}, s{S_T1}, s{S_T0}
    s_mul_i32 s{S_T1}, s{S_T1}, {nl*64}
    s_mul_i32 s{S_T0}, s{S_T0}, {rowbytes}
    s_mul_i32 s{S_T2}, s{S_JN}, {128 if att else 448}
    s_add_u32 s{S_T0}, s{S_T0}, s{S_T2}
    v_lshlrev_b32 v{VT}, 6, v{VL}
    v_add_u32 v{V_PF2}, s{S_T1}, v{VT}
    """)
    if att:
        a(f"""
        v_lshrrev_b32 v{VT}, 1, v{VL}
        v_lshlrev_b32 v{VT}, 11, v{VT}
        v_and_b32 v{VT+1}, 1, v{VL}
        v_lshl_add_u32 v{VT}, v{VT+1}, 6, v{VT}
        """)
    a(f"""
    v_add_u32 v{V_PF}, s{S_T0}, v{VT}
    v_mov_b32 v{VT}, s{S_BIG}
    v_cmp_gt_u32 vcc, {nl}, v{VL}
    v_cndmask_b32 v{V_PF}, v{VT}, v{V_PF}, vcc
    v_cndmask_b32 v{V_PF2}, v{VT}, v{V_PF2}, vcc
    """)

def k2():
    a = Asm()
    VL = 240
    VT = 241
    a(f"""
    s_cmp_ge_u32 s2, 256
    s_cbranch_scc1 .Lk2_end
    s_load_dwordx2 s[{SRD_A}:{SRD_A+1}], s[0:1], 88
    s_load_dwordx2 s[{SRD_WS}:{SRD_WS+1}], s[0:1], 88
    v_lshrrev_b32 v1, 6, v0
    v_and_b32 v{VL}, 63, v0
    s_and_b32 s{S_T0}, s2, 7
    v_readfirstlane_b32 s{S_W}, v1
    s_lshr_b32 s{S_T1}, s2, 3
    s_and_b32 s{S_I}, s{S_T1}, 7
    s_lshr_b32 s{S_T1}, s{S_T1}, 3
    s_lshl_b32 s{S_JN}, s{S_T0}, 1
    s_lshr_b32 s{S_T2}, s{S_T1}, 1
    s_add_u32 s{S_JN}, s{S_JN}, s{S_T2}
    s_and_b32 s{S_T3}, s{S_T1}, 1
    s_and_b32 s{S_TG}, s{S_W}, 3
    s_lshr_b32 s{S_CH}, s{S_W}, 2
    s_mov_b32 s{S_CUR}, 0
    s_mov_b32 s{S_NXT}, 32768
    s_mov_b32 s{S_PRV}, 65536
    s_lshl_b32 s{S_AROW}, s{S_I}, 19
    s_mov_b32 s{S_BOFF}, 0
    s_lshl_b32 s{S_M0A}, s{S_W}, 11
    s_mov_b32 s{S_BIG}, {hx(BIG)}
    s_mov_b32 s{SRD_A+2}, {hx(4*MB)}
    s_mov_b32 s{SRD_A+3}, 0x00020000
    s_mov_b32 s{SRD_WS+2}, {hx(256*MB)}
    s_mov_b32 s{SRD_WS+3}, 0x00020000
    """)
    VDA, VDB = 236, 238
    a(f"""
    v_lshrrev_b32 v{VT}, 3, v{VL}
    s_lshl_b32 s{S_T0}, s{S_W}, 4
    v_add_u32 v{VT}, s{S_T0}, v{VT}
    v_lshlrev_b32 v{VT}, 11, v{VT}
    v_and_b32 v{VT+1}, 7, v{VL}
    v_lshrrev_b32 v{VT+2}, 4, v{VL}
    v_xor_b32 v{VT+1}, v{VT+1}, v{VT+2}
    v_lshl_add_u32 v{VDA}, v{VT+1}, 4, v{VT}
    v_xor_b32 v{VDA+1}, 64, v{VDA}
    v_add_u32 v{VDA+1}, {8*2048-1024}, v{VDA+1}
    """)
    if OPT.get("k2_force", 0): a(f"s_mov_b32 s{S_T3}, {2-OPT['k2_force']}")
    a(f"""
    s_cmp_eq_u32 s{S_T3}, 0
    s_cbranch_scc1 .Lk2_att
    """)
    k2_mlp(a, VL, VT, VDA, VDB)
    a("s_branch .Lk2_end")
    a(".Lk2_att:")
    k2_att(a, VL, VT, VDA, VDB)
    a(".Lk2_end:")
    return a.text()

def k2_mlp(a, VL, VT, VDA, VDB):
    SET = [112, 156]
    VA0, VA1, VA0C, VA1C, VB, VBC = 200, 201, 202, 203, 204, 205
    VBIAS = 206
    a(f"""
    s_load_dwordx2 s[{SRD_B}:{SRD_B+1}], s[0:1], 40
    s_load_dwordx2 s[{SRD_T}:{SRD_T+1}], s[0:1], 48
    s_mov_b32 s{SRD_B+2}, {hx(1024*7168)}
    s_mov_b32 s{SRD_B+3}, 0x00020000
    s_mov_b32 s{SRD_T+2}, 7168
    s_mov_b32 s{SRD_T+3}, 0x00020000
    s_mov_b32 s{S_EXB}, -1
    s_mov_b32 s{S_EXB+1}, 0x00ffffff
    """)
    k2_pf_setup(a, VL, VT, 40, 1024*7168, 7168, 7, 56, 3584*2048, False)
    a(f"""
    v_cmp_le_u32 vcc, 28, v{VL}
    v_cndmask_b32 v{VT}, 0, 1, vcc
    v_mul_u32_u24 v{VT+1}, 28, v{VT}
    v_sub_u32 v{VT+1}, v{VL}, v{VT+1}
    v_lshrrev_b32 v{VT+2}, 1, v{VT+1}
    v_and_b32 v{VT+1}, 1, v{VT+1}
    v_add_u32 v{VT+3}, -1, v{VT+2}
    v_cmp_gt_u32 vcc, 6, v{VT+2}
    v_cndmask_b32 v{VT+3}, v{VT+3}, v{VT+2}, vcc
    v_cmp_eq_u32 vcc, 6, v{VT+2}
    v_cndmask_b32 v{VT+3}, v{VT+3}, 12, vcc
    v_cmp_le_u32 vcc, 13, v{VT+2}
    v_cndmask_b32 v{VT+3}, v{VT+3}, 13, vcc
    v_lshlrev_b32 v{VT+3}, 5, v{VT+3}
    v_lshl_add_u32 v{VT+3}, v{VT+1}, 4, v{VT+3}
    s_lshl_b32 s{S_T0}, s{S_W}, 2
    v_add_u32 v{VT}, s{S_T0}, v{VT}
    v_mul_u32_u24 v{VT}, 7168, v{VT}
    v_add_u32 v{VT}, v{VT}, v{VT+3}
    s_mul_i32 s{S_T0}, s{S_JN}, 448
    v_add_u32 v{VDB}, s{S_T0}, v{VT}
    v_add_u32 v{VDB+1}, {2*7168-896}, v{VDB}
    s_mul_i32 s{S_M0B}, s{S_W}, 1792
    s_lshr_b32 s{S_T0}, s{S_W}, 1
    s_lshl_b32 s{S_T0}, s{S_T0}, 5
    s_add_u32 s{S_M0B}, s{S_M0B}, s{S_T0}
    s_add_u32 s{S_M0B}, s{S_M0B}, {BRING}
    """)
    a(f"""
    v_and_b32 v{VT}, 15, v{VL}
    v_lshrrev_b32 v{VT+1}, 1, v{VT}
    v_lshrrev_b32 v{VT+2}, 4, v{VL}
    v_xor_b32 v{VT+1}, v{VT+1}, v{VT+2}
    s_lshl_b32 s{S_T0}, s{S_TG}, 6
    v_add_u32 v{VT}, s{S_T0}, v{VT}
    v_lshlrev_b32 v{VT}, 7, v{VT}
    v_lshl_add_u32 v{VA0C}, v{VT+1}, 4, v{VT}
    v_xor_b32 v{VA1C}, 64, v{VA0C}
    v_mov_b32 v{VA0}, v{VA0C}
    v_mov_b32 v{VA1}, v{VA1C}
    v_bfe_u32 v{VT}, v{VL}, 2, 2
    v_lshl_add_u32 v{VT}, v{VT+2}, 3, v{VT}
    v_mul_u32_u24 v{VT}, 448, v{VT}
    v_lshl_add_u32 v{VT}, v{VT+2}, 5, v{VT}
    v_and_b32 v{VT+1}, 3, v{VL}
    v_lshl_add_u32 v{VT}, v{VT+1}, 3, v{VT}
    s_mul_i32 s{S_T0}, s{S_CH}, 224
    s_add_u32 s{S_T0}, s{S_T0}, {BRING}
    v_add_u32 v{VBC}, s{S_T0}, v{VT}
    v_mov_b32 v{VB}, v{VBC}
    """)
    a(f"""
    s_mul_i32 s{S_T0}, s{S_JN}, 448
    s_mul_i32 s{S_T1}, s{S_CH}, 192
    s_add_u32 s{S_T1}, s{S_T1}, s{S_T0}
    s_lshl_b32 s{S_T2}, s{S_CH}, 5
    s_add_u32 s{S_T2}, s{S_T2}, s{S_T0}
    v_lshlrev_b32 v{VT}, 3, v{VT+2}
    s_waitcnt lgkmcnt(0)
    """)
    stamp(a, 0, 1, SRD_WS, 248, S_ST)
    for c in range(6):
        a(f"buffer_load_dwordx2 v[{VBIAS+2*c}:{VBIAS+2*c+1}], v{VT}, s[{SRD_T}:{SRD_T+3}], s{S_T1} offen offset:{32*c}")
    a(f"buffer_load_dwordx2 v[{VBIAS+12}:{VBIAS+13}], v{VT}, s[{SRD_T}:{SRD_T+3}], s{S_T2} offen offset:384")

    def acc(c, tt): return (c*4+tt)*4
    def mfmas(s):
        b = SET[s]
        return [f"v_mfma_f32_16x16x32_bf16 {vr(acc(c,tt),4)}, {vr(b+16+4*c,4)}, {vr(b+4*tt,4)}, {vr(acc(c,tt),4)}"
                for c in range(7) for tt in range(4)]
    def reads(s, sub, bimm):
        b = SET[s]
        va = VA1 if sub else VA0
        r = []
        def w(c):
            for i in range(2):
                r.append(f"ds_read_b64_tr_b16 {vr(b+16+4*c+2*i,2)}, v{VB} offset:{bimm+i*1792+c*32}")
        w(0)
        for tt in range(4):
            r.append(f"ds_read_b128 {vr(b+4*tt,4)}, v{va} offset:{tt*2048}")
        for c in range(1, 7):
            w(c)
        return r
    upd = f"""
    s_xor_b32 s{S_T2}, s{S_BPAR}, {2*SLOTB_M}
    v_add_u32 v{VA0}, s{S_NXT}, v{VA0C}
    v_add_u32 v{VA1}, s{S_NXT}, v{VA1C}
    v_add_u32 v{VB}, s{S_T2}, v{VBC}
    """
    g = k2_main(a, "mlp", mfmas, reads, upd, VDA, VDB, SLOTB_M, 896, 7168, 4,
                lambda i: i - 1, [18, 20, 22])
    next(g)
    a(f"s_waitcnt vmcnt({22 if OPT.get('pf2', 0) else 18})")
    a(f"s_mov_b32 s{S_T0}, 0xffff0000")
    for c in range(7):
        for j in range(2):
            a(f"v_lshlrev_b32 v{acc(c,0)+2*j}, 16, v{VBIAS+2*c+j}")
            a(f"v_and_b32 v{acc(c,0)+2*j+1}, s{S_T0}, v{VBIAS+2*c+j}")
        for tt in range(1, 4):
            for r in range(4):
                a(f"v_mov_b32 v{acc(c,tt)+r}, v{acc(c,0)+r}")
    next(g)
    stamp(a, 1, 1, SRD_WS, 248, S_ST)
    c0 = -2.0*math.sqrt(2.0/math.pi)*LOG2E
    c1 = c0*0.044715
    a(f"""
    s_mov_b32 s{S_C0}, {hx(f2u(c0))}
    s_mov_b32 s{S_C1}, {hx(f2u(c1))}
    v_mov_b32 v{VT+4}, s{S_C0}
    s_lshl_b32 s{S_T0}, s{S_I}, 1
    s_lshr_b32 s{S_T1}, s{S_TG}, 1
    s_add_u32 s{S_T0}, s{S_T0}, s{S_T1}
    s_mul_i32 s{S_T0}, s{S_T0}, 144
    s_mul_i32 s{S_T1}, s{S_JN}, 7
    s_add_u32 s{S_T0}, s{S_T0}, s{S_T1}
    s_add_u32 s{S_T1}, s{S_T0}, 6
    s_mul_i32 s{S_T2}, s{S_CH}, 3
    s_add_u32 s{S_T0}, s{S_T0}, s{S_T2}
    s_lshl_b32 s{S_T0}, s{S_T0}, 13
    s_lshl_b32 s{S_T1}, s{S_T1}, 13
    s_add_u32 s{S_T0}, s{S_T0}, {hx(HO_OFF)}
    s_add_u32 s{S_T1}, s{S_T1}, {hx(HO_OFF)}
    s_lshl_b32 s{S_T2}, s{S_CH}, 3
    s_add_u32 s{S_T1}, s{S_T1}, s{S_T2}
    v_lshrrev_b32 v{VT}, 4, v{VL}
    v_lshlrev_b32 v{VT}, 11, v{VT}
    v_and_b32 v{VT+1}, 15, v{VL}
    v_lshl_add_u32 v{VT}, v{VT+1}, 4, v{VT}
    s_and_b32 s{S_T2}, s{S_TG}, 1
    s_lshl_b32 s{S_T2}, s{S_T2}, 10
    v_add_u32 v{VT}, s{S_T2}, v{VT}
    s_waitcnt lgkmcnt(0)
    s_nop 7
    """)
    T = 112
    def gelu4(regs, tb):
        n = len(regs)
        for k, u in enumerate(regs): a(f"v_mul_f32 v{tb+k}, v{u}, v{u}")
        for k, u in enumerate(regs): a(f"v_fma_f32 v{tb+k}, v{tb+k}, s{S_C1}, v{VT+4}")
        for k, u in enumerate(regs): a(f"v_mul_f32 v{tb+k}, v{tb+k}, v{u}")
        for k, u in enumerate(regs): a(f"v_exp_f32 v{tb+k}, v{tb+k}")
        for k, u in enumerate(regs): a(f"v_add_f32 v{tb+k}, 1.0, v{tb+k}")
        for k, u in enumerate(regs): a(f"v_rcp_f32 v{tb+k}, v{tb+k}")
        for k, u in enumerate(regs): a(f"v_mul_f32 v{tb+k}, v{tb+k}, v{u}")
    k = 0
    for b in range(3):
        for tt in range(4):
            regs = [acc(2*b, tt)+r for r in range(4)] + [acc(2*b+1, tt)+r for r in range(4)]
            tb = T + 8*(k & 1); pb = T + 16 + 4*(k & 3); k += 1
            gelu4(regs, tb)
            for j in range(4):
                a(f"v_cvt_pk_bf16_f32 v{pb+j}, v{tb+2*j}, v{tb+2*j+1}")
            a(f"buffer_store_dwordx4 {vr(pb,4)}, v{VT}, s[{SRD_WS}:{SRD_WS+3}], s{S_T0} offen offset:{tt*256}")
        if b < 2:
            a(f"s_add_u32 s{S_T0}, s{S_T0}, 8192")
    for t2 in range(2):
        regs = [acc(6, 2*t2)+r for r in range(4)] + [acc(6, 2*t2+1)+r for r in range(4)]
        tb = T + 8*(k & 1); pb = T + 16 + 4*(k & 3); k += 1
        gelu4(regs, tb)
        for j in range(4):
            a(f"v_cvt_pk_bf16_f32 v{pb+j}, v{tb+2*j}, v{tb+2*j+1}")
        a(f"buffer_store_dwordx2 {vr(pb,2)}, v{VT}, s[{SRD_WS}:{SRD_WS+3}], s{S_T1} offen offset:{(2*t2)*256}")
        a(f"buffer_store_dwordx2 {vr(pb+2,2)}, v{VT}, s[{SRD_WS}:{SRD_WS+3}], s{S_T1} offen offset:{(2*t2+1)*256}")
    stamp(a, 2, 1, SRD_WS, 248, S_ST)
    a("s_waitcnt vmcnt(0)")
    stamp(a, 3, 1, SRD_WS, 248, S_ST)
    a("s_waitcnt vmcnt(0)")

def mf32(d, A, B, C):
    c = vr(C, 16) if isinstance(C, int) and C >= 0 else "0"
    return f"v_mfma_f32_32x32x16_bf16 {vr(d,16)}, {vr(A,4)}, {vr(B,4)}, {c}"

def k2_att(a, VL, VT, VDA, VDB):
    ACC = dict(Q=[0, 16], K=[32, 48], V=[64, 80])
    SET = [96, 136]
    VA = [176, 177, 178, 179]; VAC = [180, 181, 182, 183]; VB, VBC = 184, 185
    a(f"""
    s_load_dwordx2 s[{SRD_B}:{SRD_B+1}], s[0:1], 8
    s_load_dwordx2 s[{SRD_T}:{SRD_T+1}], s[0:1], 16
    s_mov_b32 s{SRD_B+2}, {hx(1024*6144)}
    s_mov_b32 s{SRD_B+3}, 0x00020000
    s_mov_b32 s{SRD_T+2}, 65536
    s_mov_b32 s{SRD_T+3}, 0x00020000
    s_mov_b32 s{S_EXB}, -1
    s_mov_b32 s{S_EXB+1}, 0x0000ffff
    """)
    k2_pf_setup(a, VL, VT, 8, 1024*6144, 6144, 6, 24, 2*MB, True)
    a(f"""
    v_cmp_le_u32 vcc, 24, v{VL}
    v_cndmask_b32 v{VT}, 0, 1, vcc
    v_mul_u32_u24 v{VT+1}, 24, v{VT}
    v_sub_u32 v{VT+1}, v{VL}, v{VT+1}
    v_lshrrev_b32 v{VT+2}, 3, v{VT+1}
    v_min_u32 v{VT+2}, 2, v{VT+2}
    v_and_b32 v{VT+1}, 7, v{VT+1}
    v_lshlrev_b32 v{VT+2}, 11, v{VT+2}
    v_lshl_add_u32 v{VT+2}, v{VT+1}, 4, v{VT+2}
    s_lshl_b32 s{S_T0}, s{S_W}, 2
    v_add_u32 v{VT}, s{S_T0}, v{VT}
    v_mul_u32_u24 v{VT}, 6144, v{VT}
    s_lshl_b32 s{S_T0}, s{S_JN}, 7
    v_add_u32 v{VT}, s{S_T0}, v{VT}
    v_add_u32 v{VDB}, v{VT}, v{VT+2}
    v_xor_b32 v{VT+2}, 64, v{VT+2}
    v_add_u32 v{VDB+1}, v{VT}, v{VT+2}
    v_add_u32 v{VDB+1}, {2*6144-768}, v{VDB+1}
    s_mul_i32 s{S_M0B}, s{S_W}, 1536
    s_add_u32 s{S_M0B}, s{S_M0B}, {BRING}
    """)
    a(f"""
    v_and_b32 v{VT}, 31, v{VL}
    v_bfe_u32 v{VT+1}, v{VL}, 1, 3
    v_lshrrev_b32 v{VT+2}, 5, v{VL}
    v_xor_b32 v{VT+1}, v{VT+1}, v{VT+2}
    s_lshl_b32 s{S_T0}, s{S_TG}, 6
    v_add_u32 v{VT}, s{S_T0}, v{VT}
    v_lshlrev_b32 v{VT}, 7, v{VT}
    v_lshl_add_u32 v{VAC[0]}, v{VT+1}, 4, v{VT}
    v_xor_b32 v{VAC[1]}, 32, v{VAC[0]}
    v_xor_b32 v{VAC[2]}, 64, v{VAC[0]}
    v_xor_b32 v{VAC[3]}, 0x60, v{VAC[0]}
    v_mov_b32 v{VA[0]}, v{VAC[0]}
    v_mov_b32 v{VA[1]}, v{VAC[1]}
    v_mov_b32 v{VA[2]}, v{VAC[2]}
    v_mov_b32 v{VA[3]}, v{VAC[3]}
    v_bfe_u32 v{VT}, v{VL}, 2, 2
    v_lshl_add_u32 v{VT}, v{VT+2}, 3, v{VT}
    v_mul_u32_u24 v{VT}, 384, v{VT}
    v_bfe_u32 v{VT+1}, v{VL}, 3, 1
    v_xor_b32 v{VT+1}, s{S_CH}, v{VT+1}
    v_lshl_add_u32 v{VT}, v{VT+1}, 6, v{VT}
    v_bfe_u32 v{VT+1}, v{VL}, 4, 1
    v_lshl_add_u32 v{VT}, v{VT+1}, 5, v{VT}
    v_and_b32 v{VT+1}, 3, v{VL}
    v_lshl_add_u32 v{VT}, v{VT+1}, 3, v{VT}
    v_add_u32 v{VBC}, {BRING}, v{VT}
    v_mov_b32 v{VB}, v{VBC}
    """)
    a(f"""
    s_lshl_b32 s{S_T0}, s{S_JN}, 12
    s_lshl_b32 s{S_T1}, s{S_W}, 9
    s_add_u32 s{S_T0}, s{S_T0}, s{S_T1}
    s_add_u32 m0, s{S_T1}, {WPHI_L}
    v_lshlrev_b32 v{VT}, 4, v{VL}
    s_waitcnt lgkmcnt(0)
    """)
    stamp(a, 0, 1, SRD_WS, 248, S_ST)
    a(f"""
    s_mov_b32 exec_hi, 0
    buffer_load_dwordx4 v{VT}, s[{SRD_T}:{SRD_T+3}], s{S_T0} offen lds
    s_mov_b64 exec, -1
    """)
    def mfmas(s):
        b = SET[s]
        r = []
        for st in range(2):
            for m, nm in enumerate("QKV"):
                for tt in range(2):
                    wf = b + 16 + (st*3+m)*4
                    tf = b + (st*2+tt)*4
                    d = ACC[nm][tt]
                    if nm == "V":
                        r.append(mf32(d, tf, wf, d))
                    else:
                        r.append(mf32(d, wf, tf, d))
        return r
    def reads(s, sub, bimm):
        b = SET[s]
        r = []
        for st in range(2):
            va = VA[2*sub+st]
            def w(m):
                for i in range(2):
                    r.append(f"ds_read_b64_tr_b16 {vr(b+16+(st*3+m)*4+2*i,2)}, v{VB} offset:{bimm+st*6144+i*1536+m*128}")
            w(0)
            for tt in range(2):
                r.append(f"ds_read_b128 {vr(b+(st*2+tt)*4,4)}, v{va} offset:{tt*4096}")
            w(1); w(2)
        return r
    upd = f"s_xor_b32 s{S_T2}, s{S_BPAR}, {2*SLOTB_A}\n" + \
        "\n".join(f"v_add_u32 v{VA[k]}, s{S_NXT}, v{VAC[k]}" for k in range(4)) + \
        f"\nv_add_u32 v{VB}, s{S_T2}, v{VBC}"
    g = k2_main(a, "att", mfmas, reads, upd, VDA, VDB, SLOTB_A, 768, 6144, 2,
                lambda i: (i // 2) - 1, [7, 8, 9])
    next(g)
    for r in range(96):
        a(f"v_mov_b32 v{r}, 0")
    next(g)
    stamp(a, 1, 1, SRD_WS, 248, S_ST)
    WF = 186
    IDF = 194
    ONE = 202
    KV = [96, 112]
    ZA = [128, 144]
    P = 160
    E = [206, 220]
    EP, EM = 206, 222
    TR = 160
    MX, MN, SP, SM, TT = 241, 242, 243, 244, 245
    a(f"""
    s_mov_b32 s{S_C0}, {hx(f2u(LOG2E))}
    s_waitcnt vmcnt(0) lgkmcnt(0)
    s_barrier
    """)
    a(f"""
    v_lshrrev_b32 v{TT}, 5, v{VL}
    v_bfe_u32 v{TT+1}, v{VL}, 2, 2
    v_lshl_add_u32 v{TT+1}, v{TT}, 2, v{TT+1}
    v_lshlrev_b32 v{TT+1}, 6, v{TT+1}
    v_bfe_u32 v{TT+2}, v{VL}, 4, 1
    v_lshl_add_u32 v{TT+1}, v{TT+2}, 5, v{TT+1}
    v_and_b32 v{TT+2}, 3, v{VL}
    v_lshl_add_u32 v{TT+1}, v{TT+2}, 3, v{TT+1}
    s_lshl_b32 s{S_T0}, s{S_CH}, 11
    s_add_u32 s{S_T0}, s{S_T0}, {WPHI_L}
    v_add_u32 v{TT+1}, s{S_T0}, v{TT+1}
    """)
    for s in range(2):
        for i in range(2):
            a(f"ds_read_b64_tr_b16 {vr(WF+4*s+2*i,2)}, v{TT+1} offset:{(16*s+8*i)*64}")
    a(f"""
    v_and_b32 v{TT+2}, 31, v{VL}
    v_lshlrev_b32 v{TT}, 2, v{TT}
    v_sub_u32 v{TT+2}, v{TT+2}, v{TT}
    v_mov_b32 v{TT}, 0x3f80
    v_mov_b32 v{TT+3}, 0x3f800000
    """)
    for s in range(2):
        for k in range(4):
            base = 16*s + 8*(k >> 1) + 2*(k & 1)
            d = IDF + 4*s + k
            a(f"v_cmp_eq_u32 vcc, {base}, v{TT+2}")
            a(f"v_cndmask_b32 v{d}, 0, v{TT}, vcc")
            a(f"v_cmp_eq_u32 vcc, {base+1}, v{TT+2}")
            a(f"v_cndmask_b32 v{d}, v{d}, v{TT+3}, vcc")
    for k in range(4):
        a(f"v_mov_b32 v{ONE+k}, 0x3f803f80")

    def pack(dst, src, n=8):
        for j in range(n):
            a(f"v_cvt_pk_bf16_f32 v{dst+j}, v{src+2*j}, v{src+2*j+1}")

    def xhalf(op, v, t):
        a(f"v_mov_b32 v{t}, v{v}")
        a("s_nop 1")
        a(f"v_permlane32_swap_b32 v{v}, v{t}")
        a("s_nop 1")
        a(f"{op} v{v}, v{v}, v{t}")

    def softmax(src, outp, outm):
        pack(src, src)
        a("s_nop 1")
        a(mf32(P, WF, src, None))
        a(mf32(P, WF+4, src+4, P))
        a("s_nop 15\n s_nop 3")
        a(f"v_max3_f32 v{MX}, v{P}, v{P+1}, v{P+2}")
        a(f"v_min3_f32 v{MN}, v{P}, v{P+1}, v{P+2}")
        for k in range(3, 15, 2):
            a(f"v_max3_f32 v{MX}, v{MX}, v{P+k}, v{P+k+1}")
            a(f"v_min3_f32 v{MN}, v{MN}, v{P+k}, v{P+k+1}")
        a(f"v_max_f32 v{MX}, v{MX}, v{P+15}")
        a(f"v_min_f32 v{MN}, v{MN}, v{P+15}")
        a(f"v_mov_b32 v{TT}, v{MX}\n v_mov_b32 v{TT+1}, v{MN}\n s_nop 1")
        a(f"v_permlane32_swap_b32 v{MX}, v{TT}\n v_permlane32_swap_b32 v{MN}, v{TT+1}\n s_nop 1")
        a(f"v_max_f32 v{MX}, v{MX}, v{TT}\n v_min_f32 v{MN}, v{MN}, v{TT+1}")
        a(f"v_mul_f32 v{MX}, s{S_C0}, v{MX}\n v_mul_f32 v{MN}, s{S_C0}, v{MN}")
        for k in range(16):
            a(f"v_fma_f32 v{EP+k}, v{P+k}, s{S_C0}, -v{MX}")
            a(f"v_fma_f32 v{EM+k}, -v{P+k}, s{S_C0}, v{MN}")
        for k in range(16):
            a(f"v_exp_f32 v{EP+k}, v{EP+k}")
            a(f"v_exp_f32 v{EM+k}, v{EM+k}")
        a(f"v_add_f32 v{SP}, v{EP}, v{EP+1}\n v_add_f32 v{SM}, v{EM}, v{EM+1}")
        a(f"v_add_f32 v{TT}, v{EP+2}, v{EP+3}\n v_add_f32 v{TT+1}, v{EM+2}, v{EM+3}")
        for k in range(4, 16, 2):
            a(f"v_add_f32 v{SP}, v{SP}, v{EP+k}\n v_add_f32 v{SM}, v{SM}, v{EM+k}")
            a(f"v_add_f32 v{TT}, v{TT}, v{EP+k+1}\n v_add_f32 v{TT+1}, v{TT+1}, v{EM+k+1}")
        a(f"v_add_f32 v{SP}, v{SP}, v{TT}\n v_add_f32 v{SM}, v{SM}, v{TT+1}")
        a(f"v_mov_b32 v{TT}, v{SP}\n v_mov_b32 v{TT+1}, v{SM}\n s_nop 1")
        a(f"v_permlane32_swap_b32 v{SP}, v{TT}\n v_permlane32_swap_b32 v{SM}, v{TT+1}\n s_nop 1")
        a(f"v_add_f32 v{SP}, v{SP}, v{TT}\n v_add_f32 v{SM}, v{SM}, v{TT+1}")
        a(f"v_rcp_f32 v{SP}, v{SP}\n v_rcp_f32 v{SM}, v{SM}\n s_nop 0")
        for k in range(16):
            a(f"v_mul_f32 v{EP+k}, v{EP+k}, v{SP}")
            a(f"v_mul_f32 v{EM+k}, v{EM+k}, v{SM}")
        pack(outp, EP)
        pack(outm, EM)

    a("s_waitcnt lgkmcnt(0)")
    for tt in range(2):
        pack(ACC["V"][tt], ACC["V"][tt])
    for tt in range(2):
        src = ACC["K"][tt]
        softmax(src, src, src+8)
        for pm in range(2):
            ph = src + 8*pm
            a("s_nop 1")
            a(mf32(TR, ph, IDF, None))
            a(mf32(TR, ph+4, IDF+4, TR))
            a("s_nop 15\n s_nop 3")
            pack(EP, TR)
            a("s_nop 1")
            v = ACC["V"][tt]
            first = (tt == 0)
            a(mf32(KV[pm], EP, v, None if first else KV[pm]))
            a(mf32(ZA[pm], ONE, EP, None if first else ZA[pm]))
            a(mf32(KV[pm], EP+4, v+4, KV[pm]))
            a(mf32(ZA[pm], ONE, EP+4, ZA[pm]))
            a("s_nop 7")
    a("s_nop 15\n s_nop 3")
    VW = TT
    a(f"""
    s_lshl_b32 s{S_T0}, s{S_W}, 13
    v_lshlrev_b32 v{VW+1}, 4, v{VL}
    v_add_u32 v{VW}, s{S_T0}, v{VW+1}
    v_cmp_gt_u32 vcc, 32, v{VL}
    v_cndmask_b32 v{VW+2}, v{ZA[1]}, v{ZA[0]}, vcc
    s_lshl_b32 s{S_T0}, s{S_W}, 8
    s_add_u32 s{S_T0}, s{S_T0}, 65536
    v_lshlrev_b32 v{VW+3}, 2, v{VL}
    v_add_u32 v{VW+4}, s{S_T0}, v{VW+3}
    """)
    for i in range(8):
        a(f"ds_write_b128 v{VW}, {vr(KV[i>>2]+4*(i&3),4)} offset:{i*1024}")
    a(f"ds_write_b32 v{VW+4}, v{VW+2}")
    a(f"""
    s_lshl_b32 s{S_T0}, s{S_CH}, 15
    s_lshl_b32 s{S_T1}, s{S_TG}, 11
    s_add_u32 s{S_T0}, s{S_T0}, s{S_T1}
    v_add_u32 v{VW}, s{S_T0}, v{VW+1}
    s_lshl_b32 s{S_T0}, s{S_CH}, 10
    s_add_u32 s{S_T0}, s{S_T0}, 65536
    v_add_u32 v{VW+4}, s{S_T0}, v{VW+3}
    s_waitcnt lgkmcnt(0)
    s_barrier
    """)
    R = 96
    for k in range(4):
        for e in range(2):
            a(f"ds_read_b128 {vr(R+(k*2+e)*4,4)}, v{VW} offset:{k*8192+e*1024}")
    ZR = 128
    for k in range(4):
        a(f"ds_read_b32 v{ZR+k}, v{VW+4} offset:{k*256}")
    S_KVP, S_ZP, S_HEAD = 50, 51, 52
    a(f"""
    s_lshl_b32 s{S_HEAD}, s{S_JN}, 1
    s_add_u32 s{S_HEAD}, s{S_HEAD}, s{S_CH}
    s_lshl_b32 s{S_T0}, s{S_HEAD}, 3
    s_add_u32 s{S_T0}, s{S_T0}, s{S_I}
    s_lshl_b32 s{S_ZP}, s{S_T0}, 8
    s_add_u32 s{S_ZP}, s{S_ZP}, {hx(ZP_OFF)}
    s_lshl_b32 s{S_KVP}, s{S_T0}, 13
    s_lshl_b32 s{S_T1}, s{S_TG}, 11
    s_add_u32 s{S_KVP}, s{S_KVP}, s{S_T1}
    s_add_u32 s{S_KVP}, s{S_KVP}, {hx(KVP_OFF)}
    s_waitcnt lgkmcnt(0)
    """)
    for j in range(8):
        a(f"v_add_f32 v{R+j}, v{R+j}, v{R+8+j}")
        a(f"v_add_f32 v{R+16+j}, v{R+16+j}, v{R+24+j}")
    a(f"v_add_f32 v{ZR}, v{ZR}, v{ZR+1}\n v_add_f32 v{ZR+2}, v{ZR+2}, v{ZR+3}")
    for j in range(8):
        a(f"v_add_f32 v{R+j}, v{R+j}, v{R+16+j}")
    a(f"v_add_f32 v{ZR}, v{ZR}, v{ZR+2}")
    VO16, VO4 = 238, 239
    a(f"v_mov_b32 v{VO16}, v{VW+1}\n v_mov_b32 v{VO4}, v{VW+3}")
    for e in range(2):
        a(f"buffer_store_dwordx4 {vr(R+4*e,4)}, v{VO16}, s[{SRD_WS}:{SRD_WS+3}], s{S_KVP} offen offset:{e*1024} sc1")
    a(f"""
    s_cmp_lg_u32 s{S_TG}, 0
    s_cbranch_scc1 .Lk2_noz
    buffer_store_dword v{ZR}, v{VO4}, s[{SRD_WS}:{SRD_WS+3}], s{S_ZP} offen sc1
    .Lk2_noz:
    s_load_dwordx2 s[{SRD_T}:{SRD_T+1}], s[0:1], 80
    s_mov_b32 s{SRD_T+2}, 256
    """)
    stamp(a, 2, 1, SRD_WS, 248, S_ST)
    softmax(ACC["Q"][0], ACC["Q"][0], ACC["Q"][0]+8)
    a(f"""
    s_waitcnt vmcnt(0) lgkmcnt(0)
    s_barrier
    s_lshl_b32 s{S_T3}, s{S_JN}, 4
    s_cmp_lg_u32 s{S_W}, 0
    s_cbranch_scc1 .Lk2_nosig
    v_mov_b32 v{TT}, 1
    v_mov_b32 v{TT+1}, 0
    s_mov_b64 exec, 1
    buffer_atomic_add v{TT}, v{TT+1}, s[{SRD_T}:{SRD_T+3}], s{S_T3} offen sc1
    s_mov_b64 exec, -1
    .Lk2_nosig:
    """)
    softmax(ACC["Q"][1], ACC["Q"][1], ACC["Q"][1]+8)
    stamp(a, 3, 1, SRD_WS, 248, S_ST)
    a(f"""
    s_cmp_lg_u32 s{S_W}, 0
    s_cbranch_scc1 .Lk2_polled
    s_mov_b32 s{S_CNT}, {OPT['spin']}
    v_mov_b32 v{TT+1}, 0
    .Lk2_poll:
    buffer_load_dword v{TT}, v{TT+1}, s[{SRD_T}:{SRD_T+3}], s{S_T3} offen sc1
    s_waitcnt vmcnt(0)
    v_readfirstlane_b32 s{S_T0}, v{TT}
    s_sub_u32 s{S_CNT}, s{S_CNT}, 1
    s_cmp_eq_u32 s{S_CNT}, 0
    s_cbranch_scc1 .Lk2_polled
    s_cmp_lt_u32 s{S_T0}, 8
    s_cbranch_scc1 .Lk2_poll
    .Lk2_polled:
    s_barrier
    """)
    stamp(a, 4, 1, SRD_WS, 248, S_ST)
    a(f"""
    s_lshl_b32 s{S_T0}, s{S_HEAD}, 16
    s_lshl_b32 s{S_T1}, s{S_TG}, 11
    s_add_u32 s{S_T0}, s{S_T0}, s{S_T1}
    s_add_u32 s{S_T0}, s{S_T0}, {hx(KVP_OFF)}
    s_lshl_b32 s{S_T1}, s{S_HEAD}, 11
    s_add_u32 s{S_T1}, s{S_T1}, {hx(ZP_OFF)}
    """)
    L = 96
    ZL = 160
    for k in range(8):
        for e in range(2):
            a(f"buffer_load_dwordx4 {vr(L+(k*2+e)*4,4)}, v{VO16}, s[{SRD_WS}:{SRD_WS+3}], s{S_T0} offen offset:{e*1024} sc1")
        if k < 7:
            a(f"s_add_u32 s{S_T0}, s{S_T0}, 8192")
    for k in range(8):
        a(f"buffer_load_dword v{ZL+k}, v{VO4}, s[{SRD_WS}:{SRD_WS+3}], s{S_T1} offen offset:{k*256} sc1")
    KVF, ZF = 67584, 75776
    a(f"""
    s_lshl_b32 s{S_T0}, s{S_W}, 10
    s_add_u32 s{S_T0}, s{S_T0}, {KVF}
    v_add_u32 v{TT}, s{S_T0}, v{VO16}
    s_lshl_b32 s{S_T0}, s{S_W}, 7
    s_add_u32 s{S_T0}, s{S_T0}, {ZF}
    v_lshlrev_b32 v{TT+1}, 1, v{VL}
    v_add_u32 v{TT+1}, s{S_T0}, v{TT+1}
    v_lshrrev_b32 v{TT+2}, 5, v{VL}
    v_lshlrev_b32 v{TT+2}, 3, v{TT+2}
    v_add_u32 v{TT+2}, s{S_T0}, v{TT+2}
    s_lshl_b32 s{S_T0}, s{S_CH}, 12
    s_add_u32 s{S_T0}, s{S_T0}, {KVF}
    v_add_u32 v{MX}, s{S_T0}, v{VO16}
    """)
    for k in range(1, 8):
        a(f"s_waitcnt vmcnt({8 + 2*(7-k)})")
        for j in range(8):
            a(f"v_add_f32 v{L+j}, v{L+j}, v{L+8*k+j}")
    pack(L, L, 4)
    a(f"ds_write_b128 v{TT}, {vr(L,4)}")
    a("s_waitcnt vmcnt(0)")
    for k in range(4):
        a(f"v_add_f32 v{ZL+k}, v{ZL+k}, v{ZL+4+k}")
    a(f"v_add_f32 v{ZL}, v{ZL}, v{ZL+2}\n v_add_f32 v{ZL+1}, v{ZL+1}, v{ZL+3}\n v_add_f32 v{ZL}, v{ZL}, v{ZL+1}")
    a(f"v_cvt_pk_bf16_f32 v{ZL}, v{ZL}, v{ZL}")
    a(f"ds_write_b16 v{TT+1}, v{ZL}")
    a("s_waitcnt lgkmcnt(0)\n s_barrier")
    KF = 96
    ZFR = 112
    for k in range(4):
        a(f"ds_read_b128 {vr(KF+4*k,4)}, v{MX} offset:{k*1024}")
    for k in range(4):
        a(f"ds_read2_b64 {vr(ZFR+4*k,4)}, v{TT+2} offset0:{4*k} offset1:{4*k+2}")
    a(f"""
    s_lshl_b32 s{S_T0}, s{S_I}, 1
    s_lshr_b32 s{S_T1}, s{S_TG}, 1
    s_add_u32 s{S_T0}, s{S_T0}, s{S_T1}
    s_mul_i32 s{S_T0}, s{S_T0}, 144
    s_add_u32 s{S_T0}, s{S_T0}, s{S_HEAD}
    s_add_u32 s{S_T0}, s{S_T0}, 112
    s_lshl_b32 s{S_T0}, s{S_T0}, 13
    s_add_u32 s{S_T0}, s{S_T0}, {hx(HO_OFF)}
    s_and_b32 s{S_T1}, s{S_TG}, 1
    s_lshl_b32 s{S_T1}, s{S_T1}, 10
    s_add_u32 s{S_T0}, s{S_T0}, s{S_T1}
    s_add_u32 s{S_T1}, s{S_T0}, 4096
    v_lshrrev_b32 v{TT}, 5, v{VL}
    v_lshlrev_b32 v{TT}, 11, v{TT}
    v_and_b32 v{TT+1}, 31, v{VL}
    v_lshl_add_u32 v{TT}, v{TT+1}, 4, v{TT}
    s_waitcnt lgkmcnt(0)
    """)
    NUM = [128, 144]; DEN = [160, 206]
    for tt in range(2):
        q = ACC["Q"][tt]
        for k in range(4):
            a(mf32(DEN[tt], ZFR+4*k, q+4*k, None if k == 0 else DEN[tt]))
            a(mf32(NUM[tt], KF+4*k, q+4*k, None if k == 0 else NUM[tt]))
    a("s_nop 15\n s_nop 3")
    O = 32
    for tt in range(2):
        d = DEN[tt]
        a(f"v_add_f32 v{d}, {hx(f2u(1e-6))}, v{d}")
        a(f"v_rcp_f32 v{d}, v{d}")
        a("s_nop 0")
        for k in range(16):
            a(f"v_mul_f32 v{NUM[tt]+k}, v{NUM[tt]+k}, v{d}")
        ob = O + 8*tt
        for aa in range(4):
            dst = ob + 4*(aa & 1) + 2*(aa >> 1)
            for j in range(2):
                a(f"v_cvt_pk_bf16_f32 v{dst+j}, v{NUM[tt]+4*aa+2*j}, v{NUM[tt]+4*aa+2*j+1}")
        a(f"buffer_store_dwordx4 {vr(ob,4)}, v{TT}, s[{SRD_WS}:{SRD_WS+3}], s{S_T0} offen offset:{tt*512}")
        a(f"buffer_store_dwordx4 {vr(ob+4,4)}, v{TT}, s[{SRD_WS}:{SRD_WS+3}], s{S_T1} offen offset:{tt*512}")
    stamp(a, 5, 1, SRD_WS, 248, S_ST)
    a("s_waitcnt vmcnt(0)")

def k4():
    D = OPT["k4_depth"]; N0 = OPT["k4_n0"]
    a = Asm()
    SA, SB, SWS, SX = 4, 8, 12, 16
    S_MT, S_NT, S_KH, S_TG4, S_CH4 = 20, 21, 22, 23, 24
    S_AO, S_BO, S_DST, S_END, S_SW, S_SR, S_M0, S_N, S_BG = 25, 26, 27, 28, 29, 30, 31, 32, 33
    T0, T1, T2, T3 = 36, 37, 38, 39
    S_WO = 40
    S_TILE = 42
    ACCM, ACCS = 0, 32
    X, Y = 64, 88
    XR = 112
    VTOK, VW0, VW1, VTOKC, VW0C, VW1C, VDA, VDB0, VDB1, VL, VXO, VT = 128, 129, 130, 131, 132, 133, 134, 135, 136, 137, 138, 140
    a(f"""
    s_cmp_ge_u32 s2, 256
    s_cbranch_scc1 .Lk4_end
    s_load_dwordx2 s[{SA}:{SA+1}], s[0:1], 88
    s_load_dwordx2 s[{SWS}:{SWS+1}], s[0:1], 88
    s_load_dwordx2 s[{SB}:{SB+1}], s[0:1], 56
    s_load_dwordx2 s[{S_WO}:{S_WO+1}], s[0:1], 24
    s_load_dwordx2 s[{SX}:{SX+1}], s[0:1], 64
    v_lshrrev_b32 v1, 6, v0
    v_and_b32 v{VL}, 63, v0
    v_mov_b32 v{VXO}, 0
    s_and_b32 s{T0}, s2, 7
    v_readfirstlane_b32 s3, v1
    s_lshr_b32 s{T1}, s2, 3
    s_and_b32 s{S_KH}, s{T0}, 1
    s_bfe_u32 s{T2}, s{T0}, 0x10001
    s_lshl_b32 s{T2}, s{T2}, 3
    s_and_b32 s{S_MT}, s{T1}, 7
    s_add_u32 s{S_MT}, s{S_MT}, s{T2}
    s_lshr_b32 s{T2}, s{T0}, 2
    s_lshl_b32 s{T2}, s{T2}, 2
    s_lshr_b32 s{S_NT}, s{T1}, 3
    s_add_u32 s{S_NT}, s{S_NT}, s{T2}
    s_lshl_b32 s{S_TILE}, s{S_MT}, 3
    s_add_u32 s{S_TILE}, s{S_TILE}, s{S_NT}
    s_and_b32 s{S_TG4}, s3, 3
    s_lshr_b32 s{S_CH4}, s3, 2
    s_mov_b32 s{SA+2}, {hx(32*MB)}
    s_mov_b32 s{SA+3}, 0x00020000
    s_mov_b32 s{SWS+2}, {hx(256*MB)}
    s_mov_b32 s{SWS+3}, 0x00020000
    s_mov_b32 s{SB+2}, {hx(3584*2048)}
    s_mov_b32 s{SB+3}, 0x00020000
    s_mov_b32 s{SX+2}, 2048
    s_mov_b32 s{SX+3}, 0x00020000
    s_mov_b32 s{S_BG}, {hx(BIG)}
    s_mul_i32 s{S_DST}, s{S_KH}, {N0}
    s_cmp_eq_u32 s{S_KH}, 0
    s_cselect_b32 s{S_END}, {N0}, 72
    s_cselect_b32 s{S_N}, {N0}, {56-N0}
    s_mul_i32 s{S_AO}, s{S_MT}, {144*8192}
    s_lshl_b32 s{T0}, s{S_DST}, 14
    s_add_u32 s{S_AO}, s{S_AO}, s{T0}
    s_add_u32 s{S_AO}, s{S_AO}, {hx(HO_OFF-2048)}
    s_lshl_b32 s{S_BO}, s{S_DST}, 17
    s_lshl_b32 s{S_M0}, s3, 12
    s_mov_b32 s{S_SW}, 0
    s_mov_b32 s{S_SR}, 0
    """)
    a(f"""
    s_lshl_b32 s{T0}, s3, 11
    v_lshlrev_b32 v{VT}, 4, v{VL}
    v_add_u32 v{VDA}, s{T0}, v{VT}
    v_lshrrev_b32 v{VT}, 4, v{VL}
    v_and_b32 v{VT+1}, 15, v{VL}
    v_lshlrev_b32 v{VT+2}, 2, v{VT}
    v_xor_b32 v{VT+1}, v{VT+1}, v{VT+2}
    s_lshl_b32 s{T0}, s3, 3
    v_add_u32 v{VT}, s{T0}, v{VT}
    v_lshlrev_b32 v{VT}, 11, v{VT}
    v_lshl_add_u32 v{VT}, v{VT+1}, 4, v{VT}
    s_lshl_b32 s{T0}, s{S_NT}, 8
    v_add_u32 v{VDB0}, s{T0}, v{VT}
    v_add_u32 v{VDB1}, {4*2048-1024}, v{VDB0}
    """)
    a(f"""
    v_lshrrev_b32 v{VT}, 5, v{VL}
    v_and_b32 v{VT+1}, 31, v{VL}
    s_lshl_b32 s{T0}, s{S_TG4}, 5
    v_add_u32 v{VT+1}, s{T0}, v{VT+1}
    v_lshlrev_b32 v{VT+1}, 4, v{VT+1}
    v_lshl_add_u32 v{VTOKC}, v{VT}, 12, v{VT+1}
    v_bfe_u32 v{VT+1}, v{VL}, 2, 2
    v_lshl_add_u32 v{VT+2}, v{VT}, 2, v{VT+1}
    v_lshlrev_b32 v{VT+2}, 8, v{VT+2}
    s_lshl_b32 s{T0}, s{S_CH4}, 1
    v_xor_b32 v{VT+1}, s{T0}, v{VT+1}
    v_lshl_add_u32 v{VT+2}, v{VT+1}, 6, v{VT+2}
    v_bfe_u32 v{VT+1}, v{VL}, 4, 1
    v_lshl_add_u32 v{VT+2}, v{VT+1}, 5, v{VT+2}
    v_and_b32 v{VT+1}, 3, v{VL}
    v_lshl_add_u32 v{VW0C}, v{VT+1}, 3, v{VT+2}
    v_xor_b32 v{VW1C}, 64, v{VW0C}
    v_mov_b32 v{VTOK}, v{VTOKC}
    v_mov_b32 v{VW0}, v{VW0C}
    v_mov_b32 v{VW1}, v{VW1C}
    s_waitcnt lgkmcnt(0)
    """)
    stamp(a, 0, 2, SWS, 144, 56)
    a(f"""
    s_cmp_eq_u32 s{S_KH}, 0
    s_cbranch_scc1 .Lk4_nob
    s_lshl_b32 s{T0}, s{S_NT}, 8
    s_lshl_b32 s{T1}, s{S_CH4}, 7
    s_add_u32 s{T0}, s{T0}, s{T1}
    v_lshlrev_b32 v{VT+1}, 3, v{VT}
    """)
    for ct in range(2):
        for aa in range(4):
            k = ct*4+aa
            a(f"buffer_load_dwordx2 {vr(Y+2*k,2)}, v{VT+1}, s[{SX}:{SX+3}], s{T0} offen offset:{ct*64+aa*16}")
    a(f"""
    s_load_dwordx2 s[{SX}:{SX+1}], s[0:1], 0
    s_lshl_b32 s{T1}, s{S_MT}, 7
    s_lshl_b32 s{T2}, s{S_TG4}, 5
    s_add_u32 s{T1}, s{T1}, s{T2}
    v_lshrrev_b32 v{VT+1}, 3, v{VL}
    v_add_u32 v{VT+1}, s{T1}, v{VT+1}
    v_lshlrev_b32 v{VT+1}, 11, v{VT+1}
    v_and_b32 v{VT+2}, 7, v{VL}
    v_lshl_add_u32 v{VT+1}, v{VT+2}, 4, v{VT+1}
    v_add_u32 v{VXO}, s{T0}, v{VT+1}
    s_mov_b32 s{T1}, 16384
    s_mov_b32 s{T2}, 32768
    s_mov_b32 s{T3}, 49152
    s_waitcnt lgkmcnt(0)
    s_mov_b32 s{SX+2}, {hx(4*MB)}
    buffer_load_dwordx4 {vr(XR,4)}, v{VXO}, s[{SX}:{SX+3}], 0 offen
    buffer_load_dwordx4 {vr(XR+4,4)}, v{VXO}, s[{SX}:{SX+3}], s{T1} offen
    buffer_load_dwordx4 {vr(XR+8,4)}, v{VXO}, s[{SX}:{SX+3}], s{T2} offen
    buffer_load_dwordx4 {vr(XR+12,4)}, v{VXO}, s[{SX}:{SX+3}], s{T3} offen
    .Lk4_nob:
    """)
    def dma(sw_check, lab=None):
        s = []
        if sw_check:
            s.append(f"s_cmp_eq_u32 s{S_DST}, 56\n s_cbranch_scc0 {lab}")
            s.append(f"s_mov_b32 s{SB}, s{S_WO}\n s_mov_b32 s{SB+1}, s{S_WO+1}\n s_mov_b32 s{SB+2}, {hx(2*MB)}\n s_mov_b32 s{S_BO}, 0")
            s.append(f"{lab}:")
        s.append(f"s_cmp_lt_u32 s{S_DST}, s{S_END}")
        s.append(f"s_cselect_b32 s{T0}, s{S_AO}, s{S_BG}")
        s.append(f"s_cselect_b32 s{T1}, s{S_BO}, s{S_BG}")
        s.append(f"s_add_u32 m0, s{S_SW}, s{S_M0}")
        s.append(f"s_add_u32 s{S_AO}, s{S_AO}, 16384")
        s.append(f"buffer_load_dwordx4 v{VDB0}, s[{SB}:{SB+3}], s{T1} offen lds")
        p = ["\n".join(s)]
        p.append(f"buffer_load_dwordx4 v{VDB1}, s[{SB}:{SB+3}], s{T1} offen offset:1024 lds")
        p.append(f"buffer_load_dwordx4 v{VDA}, s[{SA}:{SA+3}], s{T0} offen offset:2048 lds")
        p.append(f"""buffer_load_dwordx4 v{VDA}, s[{SA}:{SA+3}], s{T0} offen offset:3072 lds
        s_add_u32 s{S_BO}, s{S_BO}, {64*2048}
        s_add_u32 s{S_DST}, s{S_DST}, 1
        s_add_u32 s{S_SW}, s{S_SW}, 32768
        s_cmp_ge_u32 s{S_SW}, {32768*D}
        s_cselect_b32 s{S_SW}, 0, s{S_SW}""")
        return p
    for d in range(D):
        for t in dma(False): a(t)
    a(f"""
    s_cmp_eq_u32 s{S_KH}, 0
    s_cbranch_scc1 .Lk4_z
    s_waitcnt vmcnt({4*D+4})
    s_mov_b32 s{T0}, 0xffff0000
    """)
    for k in range(16):
        a(f"v_lshlrev_b32 v{ACCM+2*k}, 16, v{Y+k}")
        a(f"v_and_b32 v{ACCM+2*k+1}, s{T0}, v{Y+k}")
    for k in range(32):
        a(f"v_mov_b32 v{ACCS+k}, 0")
    a("s_branch .Lk4_i\n .Lk4_z:")
    for k in range(32):
        a(f"v_mov_b32 v{ACCM+k}, 0")
    a(".Lk4_i:")
    def reads(b, blk):
        r = []
        for s in range(2):
            for ct in range(2):
                w = b + 8 + (s*2+ct)*4
                for hf in range(2):
                    r.append(f"ds_read_b64_tr_b16 {vr(w+2*hf,2)}, v{VW1 if ct else VW0} offset:{(4*blk+s+2*hf)*4096}")
                if ct == 0:
                    r.append(f"ds_read_b128 {vr(b+4*s,4)}, v{VTOK} offset:{(4*blk+2*s)*4096+2048}")
        return r
    def mf(b, acc):
        return [mf32(acc+16*ct, b+8+(s*2+ct)*4, b+4*s, acc+16*ct) for s in range(2) for ct in range(2)]
    a(f"s_waitcnt vmcnt({4*(D-1)})\n s_barrier")
    for t in reads(X, 0): a(t)
    def loop(tag, acc, sw):
        a(f".Lk4_{tag}:")
        for t in reads(Y, 1): a(t)
        a("s_waitcnt lgkmcnt(10)")
        for t in mf(X, acc): a(t)
        a(f"""
        s_add_u32 s{S_SR}, s{S_SR}, 32768
        s_cmp_ge_u32 s{S_SR}, {32768*D}
        s_cselect_b32 s{S_SR}, 0, s{S_SR}
        s_waitcnt lgkmcnt(0)
        v_add_u32 v{VTOK}, s{S_SR}, v{VTOKC}
        v_add_u32 v{VW0}, s{S_SR}, v{VW0C}
        v_add_u32 v{VW1}, s{S_SR}, v{VW1C}
        s_waitcnt vmcnt({4*(D-2)})
        s_barrier
        """)
        for t in reads(X, 0): a(t)
        dm = dma(sw, f".Lk4_{tag}_sw")
        m = mf(Y, acc)
        for i in range(4):
            a(m[i]); a(dm[i])
        a(f"""
        s_sub_u32 s{S_N}, s{S_N}, 1
        s_cmp_lg_u32 s{S_N}, 0
        s_cbranch_scc1 .Lk4_{tag}
        """)
    loop("lm", ACCM, True)
    a(f"""
    s_lshl_b32 s{T2}, s{S_TILE}, 16
    s_lshl_b32 s{T3}, s3, 13
    s_add_u32 s{T2}, s{T2}, s{T3}
    s_add_u32 s{T2}, s{T2}, {hx(MP_OFF)}
    s_add_u32 s{T3}, s{T2}, 4096
    s_lshl_b32 s{S_TILE}, s{S_TILE}, 7
    s_add_u32 s{S_TILE}, s{S_TILE}, {hx(FLG_OFF)}
    v_lshlrev_b32 v{VT}, 4, v{VL}
    s_cmp_eq_u32 s{S_KH}, 0
    s_cbranch_scc0 .Lk4_p1
    """)
    stamp(a, 1, 2, SWS, 144, 56)
    a("s_nop 15\n s_nop 3")
    for i in range(8):
        a(f"buffer_store_dwordx4 {vr(ACCM+4*i,4)}, v{VT}, s[{SWS}:{SWS+3}], s{T2 if i<4 else T3} offen offset:{(i&3)*1024} sc1")
    a(f"""
    s_waitcnt vmcnt(0) lgkmcnt(0)
    s_barrier
    s_cmp_lg_u32 s3, 0
    s_cbranch_scc1 .Lk4_end
    v_mov_b32 v{VT}, 1
    v_mov_b32 v{VT+1}, 0
    s_mov_b64 exec, 1
    buffer_store_dword v{VT}, v{VT+1}, s[{SWS}:{SWS+3}], s{S_TILE} offen sc1
    s_mov_b64 exec, -1
    """)
    stamp(a, 2, 2, SWS, 144, 56)
    a(f"""
    s_waitcnt vmcnt(0)
    s_branch .Lk4_end
    .Lk4_p1:
    s_mov_b32 s{S_N}, 16
    s_mov_b32 s50, s{T2}
    s_mov_b32 s51, s{T3}
    """)
    loop("ls", ACCS, False)
    stamp(a, 1, 2, SWS, 144, 56)
    a(f"""
    s_load_dwordx2 s[{SX}:{SX+1}], s[0:1], 72
    s_waitcnt vmcnt(0)
    s_cmp_lg_u32 s3, 0
    s_cbranch_scc1 .Lk4_polled
    s_mov_b32 s{S_N}, {OPT['spin']}
    v_mov_b32 v{VT+1}, 0
    .Lk4_poll:
    buffer_load_dword v{VT+2}, v{VT+1}, s[{SWS}:{SWS+3}], s{S_TILE} offen sc1
    s_waitcnt vmcnt(0)
    v_readfirstlane_b32 s{T0}, v{VT+2}
    s_sub_u32 s{S_N}, s{S_N}, 1
    s_cmp_eq_u32 s{S_N}, 0
    s_cbranch_scc1 .Lk4_polled
    s_cmp_eq_u32 s{T0}, 0
    s_cbranch_scc1 .Lk4_poll
    .Lk4_polled:
    s_waitcnt lgkmcnt(0)
    s_barrier
    """)
    stamp(a, 2, 2, SWS, 144, 56)
    PB = 64
    for i in range(8):
        a(f"buffer_load_dwordx4 {vr(PB+4*i,4)}, v{VT}, s[{SWS}:{SWS+3}], s{50 if i<4 else 51} offen offset:{(i&3)*1024} sc1")
    VWR, VRD = VT+1, VT+2
    a(f"""
    s_mul_i32 s{T0}, s3, 4608
    v_and_b32 v{VWR}, 31, v{VL}
    v_mul_u32_u24 v{VWR}, 144, v{VWR}
    v_lshrrev_b32 v{VT+3}, 5, v{VL}
    v_lshl_add_u32 v{VWR}, v{VT+3}, 3, v{VWR}
    v_add_u32 v{VWR}, s{T0}, v{VWR}
    v_lshrrev_b32 v{VRD}, 3, v{VL}
    v_mul_u32_u24 v{VRD}, 144, v{VRD}
    v_and_b32 v{VT+3}, 7, v{VL}
    v_lshl_add_u32 v{VRD}, v{VT+3}, 4, v{VRD}
    v_add_u32 v{VRD}, s{T0}, v{VRD}
    s_mov_b32 s{T0}, {hx(f2u(-LOG2E))}
    s_mov_b32 s{T1}, 16384
    s_mov_b32 s{T2}, 32768
    s_mov_b32 s{T3}, 49152
    s_mov_b32 s52, 0xffff0000
    """)
    TM = 96
    for i in range(0, 8, 2):
        a(f"s_waitcnt vmcnt({6-i})")
        n = 8
        m = [ACCM+4*i+k for k in range(n)]
        p = [PB+4*i+k for k in range(n)]
        s_ = [ACCS+4*i+k for k in range(n)]
        t = [TM+k for k in range(n)]
        for k in range(n): a(f"v_add_f32 v{m[k]}, v{m[k]}, v{p[k]}")
        for k in range(n): a(f"v_mul_f32 v{t[k]}, s{T0}, v{m[k]}")
        for k in range(n): a(f"v_exp_f32 v{t[k]}, v{t[k]}")
        for k in range(n): a(f"v_mul_f32 v{m[k]}, v{m[k]}, v{s_[k]}")
        for k in range(n): a(f"v_add_f32 v{t[k]}, 1.0, v{t[k]}")
        for k in range(n): a(f"v_rcp_f32 v{t[k]}, v{t[k]}")
        a("s_nop 0")
        for k in range(n): a(f"v_mul_f32 v{m[k]}, v{m[k]}, v{t[k]}")
        pk = TM + 8 + (i & 2)*2
        for k in range(4): a(f"v_cvt_pk_bf16_f32 v{pk+k}, v{m[2*k]}, v{m[2*k+1]}")
        for k in range(2):
            ii = i + k
            a(f"ds_write_b64 v{VWR}, {vr(pk+2*k,2)} offset:{(ii>>2)*64+(ii&3)*16}")
    a("s_waitcnt lgkmcnt(0)")
    for i in range(4):
        a(f"ds_read_b128 {vr(PB+4*i,4)}, v{VRD} offset:{i*1152}")
    so = ["0", f"s{T1}", f"s{T2}", f"s{T3}"]
    for i in range(4):
        a(f"s_waitcnt lgkmcnt({3-i})")
        for k in range(4):
            y = PB+4*i+k; x = XR+4*i+k; t = TM + 4*(k & 3)
            a(f"v_lshlrev_b32 v{t}, 16, v{y}")
            a(f"v_and_b32 v{t+1}, s52, v{y}")
            a(f"v_lshlrev_b32 v{t+2}, 16, v{x}")
            a(f"v_and_b32 v{t+3}, s52, v{x}")
            a(f"v_add_f32 v{t}, v{t}, v{t+2}")
            a(f"v_add_f32 v{t+1}, v{t+1}, v{t+3}")
            a(f"v_cvt_pk_bf16_f32 v{y}, v{t}, v{t+1}")
        a(f"buffer_store_dwordx4 {vr(PB+4*i,4)}, v{VXO}, s[{SX}:{SX+3}], {so[i]} offen")
    stamp(a, 3, 2, SWS, 144, 56)
    a("s_waitcnt vmcnt(0)")
    a(".Lk4_end:")
    return a.text()

def build(path):
    import k4b
    k4b.G.OPT.update(OPT)
    ks = [("ln_kernel", k1(), 40, 40, 48),
          ("mid_kernel", k2(), 256, 256, 96),
          ("fin_kernel", k4(), 152, 152, 64) if OPT.get("k4v", 2) == 1 else ("fin_kernel", k4b.k4(), 208, 208, 96)]
    ks = [(l, hazard.fix(b, OPT.get("v", 0)), x, y, z) for (l, b, x, y, z) in ks]
    ls = [("ln_kernel", (512,1,1), (256,1,1), 0),
          ("mid_kernel", (256,1,1), (512,1,1), K2_LDS),
          ("fin_kernel", (256,1,1), (512,1,1), 32768*OPT["k4_depth"] if OPT.get("k4v", 2) == 1 else k4b.K4_LDS)]
    import re
    for (l, b, nv, acc, ns) in ks:
        mv = max([int(x) for x in re.findall(r"\bv(\d+)\b", b)] + [int(x) for x in re.findall(r"\bv\[\d+:(\d+)\]", b)])
        ms = max([int(x) for x in re.findall(r"\bs(\d+)\b", b)] + [int(x) for x in re.findall(r"\bs\[\d+:(\d+)\]", b)])
        assert mv < nv and ms < ns, (l, mv, ms)
    open(path, "w").write(build_file(ks, ls))

if __name__ == "__main__":
    out = sys.argv[1]
    for kv in sys.argv[2:]:
        k, v = kv.split("=")
        OPT[k] = int(v)
    build(out)
```

```python
from asmlib import *
import gen as G
from gen import hx, f2u, vr, MB, HO_OFF, MP_OFF, FLG_OFF, LOG2E, stamp

NSLOT = 5
SLOT = 32768
K4_LDS = NSLOT * SLOT

def mf16(d, A, B):
    return f"v_mfma_f32_16x16x32_bf16 {vr(d,4)}, {vr(A,4)}, {vr(B,4)}, {vr(d,4)}"

def weave(a, mf, fill):
    for p, t in fill:
        if p < 0: a(t)
    for i, m in enumerate(mf):
        a(m)
        for p, t in fill:
            if p == i: a(t)
    for p, t in fill:
        if p >= len(mf): a(t)

def k4():
    OPT = G.OPT
    a = Asm()
    SWS, SB, SO, SX, SBI = 4, 8, 12, 16, 20
    S_MT, S_NT, S_P, S_WM, S_WN, S_TILE = 24, 25, 26, 27, 28, 29
    S_SLOT, S_DLT, S_CNT, S_AO, S_BO, S_M0A, S_M0B = 30, 31, 32, 33, 34, 35, 36
    T0, T1, T2, T3 = 40, 41, 42, 43
    S_PO0, S_PO1, S_PP0, S_PP1, S_FO, S_FP, S_MSK, S_C, S_HI, S_X1 = 44, 45, 46, 47, 48, 49, 50, 51, 52, 53
    ST = 56
    ACCM, ACCS, X, Y, XR = 0, 64, 96, 128, 160
    VTA, VTB, VTS, VW, VL, VXO, VL16, VZ = 176, 177, 178, 180, 184, 185, 186, 187
    VT = 188
    VST = 200
    TFLAG, TPOLL, TCHK, TEND = OPT.get("k4_tflag", 3), OPT.get("k4_tpoll", 6), OPT.get("k4_tchk", 9), 12
    BPOS = OPT.get("k4_bpos", 13)
    FU = OPT.get("fuse", 0)
    N0 = OPT.get("n0", 26) if FU else 28
    N1 = 56 - N0
    SC = " sc1" if FU else ""
    S_N, S_OP = 37, 38
    def tcap(i):
        return f"s_memtime s[{64+2*i}:{65+2*i}]" if OPT["stamp"] else ""
    def tdump(n):
        if not OPT["stamp"]: return
        a("s_waitcnt lgkmcnt(0)")
        for i in range(n):
            a(f"v_mov_b32 v{VST}, s{64+2*i}\n v_mov_b32 v{VST+1}, s{65+2*i}\n s_add_u32 s{ST+4}, s{ST+4}, 16")
            a(f"buffer_store_dwordx4 v[{VST}:{VST+3}], v{VST+4}, s[{SWS}:{SWS+3}], s{ST+4} offen")
    a(f"""
    {"" if FU else "s_cmp_ge_u32 s2, 256"}
    {"" if FU else "s_cbranch_scc1 .Lk4_end"}
    s_load_dwordx2 s[{SWS}:{SWS+1}], s[0:1], 88
    s_load_dwordx2 s[{SB}:{SB+1}], s[0:1], 56
    s_load_dwordx2 s[{SO}:{SO+1}], s[0:1], 24
    s_load_dwordx2 s[{SX}:{SX+1}], s[0:1], 0
    s_load_dwordx2 s[{SBI}:{SBI+1}], s[0:1], 64
    {"" if FU else "v_lshrrev_b32 v1, 6, v0"}
    {f"v_mov_b32 v{VL}, v240" if FU else f"v_and_b32 v{VL}, 63, v0"}
    s_and_b32 s{T0}, s2, 7
    {"" if FU else "v_readfirstlane_b32 s3, v1"}
    s_lshr_b32 s{T1}, s2, 3
    s_and_b32 s{S_P}, s{T0}, 1
    s_bfe_u32 s{T2}, s{T0}, 0x10001
    s_lshl_b32 s{T2}, s{T2}, 3
    s_and_b32 s{S_MT}, s{T1}, 7
    s_add_u32 s{S_MT}, s{S_MT}, s{T2}
    s_lshr_b32 s{T2}, s{T0}, 2
    s_lshl_b32 s{T2}, s{T2}, 2
    s_lshr_b32 s{S_NT}, s{T1}, 3
    s_add_u32 s{S_NT}, s{S_NT}, s{T2}
    s_mov_b32 s{SWS+2}, {hx(256*MB)}
    s_mov_b32 s{SWS+3}, 0x00020000
    s_mov_b32 s{SB+2}, {hx(3584*2048)}
    s_mov_b32 s{SB+3}, 0x00020000
    s_mov_b32 s{SO+2}, {hx(2*MB)}
    s_mov_b32 s{SO+3}, 0x00020000
    s_mov_b32 s{SX+2}, {hx(4*MB)}
    s_mov_b32 s{SX+3}, 0x00020000
    s_mov_b32 s{SBI+2}, 2048
    s_mov_b32 s{SBI+3}, 0x00020000
    s_mov_b32 s{S_SLOT}, 0
    s_cmp_eq_u32 s{S_P}, 0
    s_cselect_b32 s{S_N}, {N0}, {N1}
    s_lshr_b32 s{S_OP}, s{S_MT}, 1
    s_lshl_b32 s{S_OP}, s{S_OP}, 7
    s_add_u32 s{S_OP}, s{S_OP}, {hx(FLG_OFF+256*128)}
    s_cmp_lt_u32 s3, 4
    s_cbranch_scc1 .Lk4_cons
    """)
    VA, VAS, VB = 2, 3, (176 if FU else 8)
    a(f"""
    s_and_b32 s{S_WM}, s3, 3
    s_lshl_b32 s{S_M0A}, s{S_WM}, 12
    s_add_u32 s{S_M0B}, s{S_M0A}, 16384
    v_lshlrev_b32 v{VA}, 4, v{VL}
    v_add_u32 v{VA}, s{S_M0A}, v{VA}
    s_mul_i32 s{S_AO}, s{S_MT}, {144*8192}
    s_add_u32 s{S_AO}, s{S_AO}, {hx(HO_OFF)}
    s_add_u32 s{S_X1}, s{S_AO}, {112*8192}
    s_mul_i32 s{T0}, s{S_P}, {N0*16384}
    s_add_u32 s{S_AO}, s{S_AO}, s{T0}
    s_mul_i32 s{S_BO}, s{S_P}, {N0*131072}
    """)
    if not FU: a(f"""
    v_lshrrev_b32 v{VT}, 4, v{VL}
    v_and_b32 v{VT+1}, 15, v{VL}
    v_lshlrev_b32 v{VT+2}, 1, v{VT}
    v_xor_b32 v{VT+1}, v{VT+1}, v{VT+2}
    s_lshl_b32 s{T0}, s{S_WM}, 4
    v_add_u32 v{VT}, s{T0}, v{VT}
    v_lshlrev_b32 v{VT}, 11, v{VT}
    v_lshl_add_u32 v{VT}, v{VT+1}, 4, v{VT}
    s_lshl_b32 s{T0}, s{S_NT}, 8
    v_add_u32 v{VB}, s{T0}, v{VT}
    v_xor_b32 v{VB+1}, 128, v{VB}
    v_add_u32 v{VB+2}, {2*(8192-1024)}, v{VB}
    v_add_u32 v{VB+3}, {3*(8192-1024)}, v{VB+1}
    v_add_u32 v{VB+1}, {8192-1024}, v{VB+1}
    """)
    a(f"""
    v_lshrrev_b32 v{VT}, 5, v{VL}
    v_and_b32 v{VT+1}, 31, v{VL}
    v_lshl_add_u32 v{VT}, v{VT}, 6, v{VT+1}
    s_lshl_b32 s{T0}, s{S_P}, 5
    v_add_u32 v{VT}, s{T0}, v{VT}
    v_lshlrev_b32 v{VT}, 4, v{VT}
    v_add_u32 v{VAS}, s{S_M0A}, v{VT}
    v_add_u32 v{VAS+1}, 1024, v{VAS}
    s_waitcnt lgkmcnt(0)
    """)
    def adv():
        return f"""
        s_add_u32 s{S_AO}, s{S_AO}, 16384
        s_add_u32 s{S_BO}, s{S_BO}, 131072
        s_add_u32 s{S_SLOT}, s{S_SLOT}, {SLOT}
        s_cmp_ge_u32 s{S_SLOT}, {K4_LDS}
        s_cselect_b32 s{S_SLOT}, 0, s{S_SLOT}
        """
    def dma_m():
        a(f"s_add_u32 m0, s{S_SLOT}, s{S_M0B}")
        for i in range(4):
            a(f"buffer_load_dwordx4 v{VB+i}, s[{SB}:{SB+3}], s{S_BO} offen offset:{i*1024} lds")
        a(f"s_add_u32 m0, s{S_SLOT}, s{S_M0A}")
        for i in range(4):
            a(f"buffer_load_dwordx4 v{VA}, s[{SWS}:{SWS+3}], s{S_AO} offen offset:{i*1024}{SC} lds")
        a(adv())
    def dma_s():
        a(f"s_add_u32 m0, s{S_SLOT}, s{S_M0B}")
        for i in range(4):
            a(f"buffer_load_dwordx4 v{VB+i}, s[{SO}:{SO+3}], s{S_BO} offen offset:{i*1024} lds")
        a(f"s_add_u32 m0, s{S_SLOT}, s{S_M0A}")
        for i in range(2):
            a(f"buffer_load_dwordx4 v{VAS+i}, s[{SWS}:{SWS+3}], s{S_AO} offen offset:{i*1024}{SC} lds")
        a(adv())
    if FU:
        stamp(a, 0, 2, SWS, VST, ST)
        a(f"""
        s_cmp_lg_u32 s3, 4
        s_cbranch_scc1 .Lk4_hok
        s_mov_b32 s{T1}, {OPT['spin']}
        v_mov_b32 v{VT+1}, 0
        .Lk4_hpoll:
        buffer_load_dword v{VT}, v{VT+1}, s[{SWS}:{SWS+3}], s{S_OP} offen sc1
        s_waitcnt vmcnt(0)
        v_readfirstlane_b32 s{T0}, v{VT}
        s_sub_u32 s{T1}, s{T1}, 1
        s_cmp_eq_u32 s{T1}, 0
        s_cbranch_scc1 .Lk4_hok
        s_cmp_lt_u32 s{T0}, 16
        s_cbranch_scc1 .Lk4_hpoll
        .Lk4_hok:
        s_barrier
        """)
        stamp(a, 1, 2, SWS, VST, ST)
        for sl in range(NSLOT):
            a(f"s_add_u32 m0, s{S_M0A}, {sl*SLOT}")
            for i in range(4):
                a(f"buffer_load_dwordx4 v{VA}, s[{SWS}:{SWS+3}], s{S_AO} offen offset:{i*1024}{SC} lds")
            a(f"s_add_u32 s{S_AO}, s{S_AO}, 16384")
        a(f"s_add_u32 s{S_BO}, s{S_BO}, {NSLOT*131072}")
        a("s_waitcnt vmcnt(16)\n s_barrier")
        for w in (12, 16, 20):
            a(f"s_waitcnt vmcnt({w})\n s_barrier")
            dma_m()
        a(f"s_sub_u32 s{S_CNT}, s{S_N}, {NSLOT+3}\n .Lk4_pm:")
    else:
        a(f"s_mov_b32 s{S_CNT}, {NSLOT}\n .Lk4_pp:")
        dma_m()
        a(f"s_sub_u32 s{S_CNT}, s{S_CNT}, 1\n s_cmp_lg_u32 s{S_CNT}, 0\n s_cbranch_scc1 .Lk4_pp")
        stamp(a, 0, 2, SWS, VST, ST)
        a(f"s_waitcnt vmcnt({8*(NSLOT-1)})")
        stamp(a, 1, 2, SWS, VST, ST)
        a(f"s_barrier\n s_mov_b32 s{S_CNT}, {28-NSLOT}\n .Lk4_pm:")
    a(f"s_waitcnt vmcnt({8*(NSLOT-2)})\n s_barrier")
    dma_m()
    a(f"s_sub_u32 s{S_CNT}, s{S_CNT}, 1\n s_cmp_lg_u32 s{S_CNT}, 0\n s_cbranch_scc1 .Lk4_pm")
    a(f"""
    s_mov_b32 s{S_AO}, s{S_X1}
    s_mov_b32 s{S_BO}, 0
    s_lshr_b32 s{S_M0A}, s{S_M0A}, 1
    s_mov_b32 s{S_CNT}, 16
    .Lk4_ps:
    s_waitcnt vmcnt({6*(NSLOT-2)})
    s_barrier
    """)
    dma_s()
    a(f"s_sub_u32 s{S_CNT}, s{S_CNT}, 1\n s_cmp_lg_u32 s{S_CNT}, 0\n s_cbranch_scc1 .Lk4_ps")
    for k in range(NSLOT-2, -1, -1):
        a(f"s_waitcnt vmcnt({6*k})\n s_barrier")
    stamp(a, 2, 2, SWS, VST, ST)
    a("s_waitcnt vmcnt(0)\n s_branch .Lk4_end")
    a(f"""
    .Lk4_cons:
    s_and_b32 s{S_WM}, s3, 1
    s_lshr_b32 s{S_WN}, s3, 1
    s_lshl_b32 s{S_TILE}, s{S_MT}, 3
    s_add_u32 s{S_TILE}, s{S_TILE}, s{S_NT}
    v_lshrrev_b32 v{VT}, 4, v{VL}
    v_and_b32 v{VT+1}, 15, v{VL}
    v_lshlrev_b32 v{VL16}, 4, v{VL}
    v_mov_b32 v{VZ}, 0
    s_lshl_b32 s{T0}, s{S_NT}, 8
    s_lshl_b32 s{T1}, s{S_WN}, 7
    s_add_u32 s{T0}, s{T0}, s{T1}
    v_lshlrev_b32 v{VT+2}, 3, v{VT}
    s_lshl_b32 s{T1}, s{S_MT}, 7
    s_lshl_b32 s{T2}, s{S_WM}, 6
    s_lshl_b32 s{T3}, s{S_P}, 5
    s_add_u32 s{T2}, s{T2}, s{T3}
    s_add_u32 s{T1}, s{T1}, s{T2}
    v_add_u32 v{VXO}, s{T1}, v{VT+1}
    v_lshlrev_b32 v{VXO}, 11, v{VXO}
    v_and_b32 v{VT+3}, 1, v{VT}
    v_lshl_add_u32 v{VXO}, v{VT+3}, 5, v{VXO}
    v_lshrrev_b32 v{VT+3}, 1, v{VT}
    v_lshl_add_u32 v{VXO}, v{VT+3}, 4, v{VXO}
    v_add_u32 v{VXO}, s{T0}, v{VXO}
    s_mov_b32 s{S_X1}, 32768
    s_waitcnt lgkmcnt(0)
    """)
    for j in range(4):
        a(f"buffer_load_dwordx2 {vr(Y+2*j,2)}, v{VT+2}, s[{SBI}:{SBI+3}], s{T0} offen offset:{32*j}")
    for i in range(2):
        for jp in range(2):
            a(f"buffer_load_dwordx4 {vr(XR+(i*2+jp)*4,4)}, v{VXO}, s[{SX}:{SX+3}], {'0' if i==0 else 's%d'%S_X1} offen offset:{64*jp}")
    stamp(a, 0, 2, SWS, VST, ST)
    if FU: a("s_barrier")
    a(f"""
    s_load_dwordx2 s[{SX}:{SX+1}], s[0:1], 72
    v_add_u32 v{VTA}, s{T2}, v{VT+1}
    v_lshlrev_b32 v{VTA}, 4, v{VTA}
    v_lshl_add_u32 v{VTA}, v{VT}, 11, v{VTA}
    v_xor_b32 v{VTB}, 512, v{VTA}
    s_lshl_b32 s{T1}, s{S_WM}, 5
    v_add_u32 v{VTS}, s{T1}, v{VT+1}
    v_lshlrev_b32 v{VTS}, 4, v{VTS}
    v_lshl_add_u32 v{VTS}, v{VT}, 10, v{VTS}
    s_cmp_eq_u32 s{S_P}, 0
    s_cselect_b32 s{T1}, {(N0 % NSLOT)*2}, {(N1 % NSLOT)*2}
    s_lshl_b32 s{T1}, s{T1}, 14
    v_add_u32 v{VTS}, s{T1}, v{VTS}
    v_lshrrev_b32 v{VT+1}, 2, v{VL}
    v_and_b32 v{VT+2}, 7, v{VT+1}
    v_lshlrev_b32 v{VT+2}, 5, v{VT+2}
    v_lshlrev_b32 v{VT+1}, 8, v{VT+1}
    v_and_b32 v{VT+3}, 3, v{VL}
    v_lshlrev_b32 v{VT+3}, 3, v{VT+3}
    s_lshl_b32 s{T1}, s{S_WN}, 7
    v_or_b32 v{VT+3}, s{T1}, v{VT+3}
    v_xor_b32 v{VT+3}, v{VT+3}, v{VT+2}
    v_add_u32 v{VT+1}, 16384, v{VT+1}
    v_add_u32 v{VW}, v{VT+1}, v{VT+3}
    v_xor_b32 v{VW+1}, 32, v{VW}
    v_xor_b32 v{VW+2}, 64, v{VW}
    v_xor_b32 v{VW+3}, 96, v{VW}
    s_lshl_b32 s{T1}, s{S_TILE}, 1
    s_add_u32 s{T1}, s{T1}, s{S_P}
    s_xor_b32 s{T2}, s{T1}, 1
    s_lshl_b32 s{T3}, s3, 2
    s_add_u32 s{T3}, s{T3}, {hx(FLG_OFF)}
    s_lshl_b32 s{S_FO}, s{T1}, 7
    s_add_u32 s{S_FO}, s{S_FO}, s{T3}
    s_lshl_b32 s{S_FP}, s{T2}, 7
    s_add_u32 s{S_FP}, s{S_FP}, s{T3}
    s_lshl_b32 s{T3}, s3, 13
    s_add_u32 s{T3}, s{T3}, {hx(MP_OFF)}
    s_lshl_b32 s{S_PO0}, s{T1}, 15
    s_add_u32 s{S_PO0}, s{S_PO0}, s{T3}
    s_add_u32 s{S_PO1}, s{S_PO0}, 4096
    s_lshl_b32 s{S_PP0}, s{T2}, 15
    s_add_u32 s{S_PP0}, s{S_PP0}, s{T3}
    s_add_u32 s{S_PP1}, s{S_PP0}, 4096
    s_mov_b32 s{S_MSK}, {hx((1<<TFLAG)|(1<<TPOLL)|(1<<TCHK))}
    s_mov_b32 s{S_C}, {hx(f2u(-LOG2E))}
    s_mov_b32 s{S_HI}, 0xffff0000
    """)
    for k in range(32, 96):
        a(f"v_mov_b32 v{k}, 0")
    a(f"s_waitcnt vmcnt({4 + (1 if OPT['stamp'] else 0)})")
    for j in range(4):
        for h in range(2):
            a(f"v_lshlrev_b32 v{ACCM+4*j+2*h}, 16, v{Y+2*j+h}")
            a(f"v_and_b32 v{ACCM+4*j+2*h+1}, s{S_HI}, v{Y+2*j+h}")
    for k in range(16):
        a(f"v_mov_b32 v{ACCM+16+k}, v{ACCM+k}")
    a("s_waitcnt lgkmcnt(0)")

    def rW(b, blk, j):
        return [f"ds_read_b64_tr_b16 {vr(b+4*j+2*hf,2)}, v{VW+j} offset:{blk*8192+hf*4096}" for hf in range(2)]
    def reads_m(b, blk):
        T = [f"ds_read_b128 {vr(b+16+4*i,4)}, v{VTA if i<2 else VTB} offset:{blk*8192+(i&1)*256}" for i in range(4)]
        r = []; s = 0
        for j in range(4):
            r += [(s, t) for t in rW(b, blk, j)]; s += 1
            r.append((s, T[j])); s += 1
        return r
    def reads_s(b, blk):
        T = [f"ds_read_b128 {vr(b+16+4*i,4)}, v{VTS} offset:{blk*4096+i*256}" for i in range(2)]
        r = [(0, t) for t in rW(b, blk, 0)] + [(1, T[0])] + [(2, t) for t in rW(b, blk, 1)] + [(3, T[1])]
        r += [(4, t) for t in rW(b, blk, 2)] + [(5, t) for t in rW(b, blk, 3)]
        return r
    def mf_m(b, order=(0, 1, 2, 3)):
        return [mf16(ACCM+(i*4+j)*4, b+4*j, b+16+4*i) for i in order for j in range(4)]
    def mf_s(b):
        return [mf16(ACCS+(i*4+j)*4, b+4*j, b+16+4*i) for i in range(2) for j in range(4)]
    slotadv = f"""
        s_add_u32 s{S_SLOT}, s{S_SLOT}, {SLOT}
        s_cmp_ge_u32 s{S_SLOT}, {K4_LDS}
        s_cselect_b32 s{S_SLOT}, 0, s{S_SLOT}
        s_cselect_b32 s{S_DLT}, {-(NSLOT-1)*SLOT}, s{S_X1}
        """
    def upd(regs): return [f"v_add_u32 v{r}, s{S_DLT}, v{r}" for r in regs]
    BAR = "s_waitcnt lgkmcnt(0)\n s_barrier"
    a("s_barrier")
    for _, t in reads_m(X, 0): a(t)
    def half0_m():
        a("s_waitcnt lgkmcnt(0)")
        u = upd([VW, VW+1, VW+2, VW+3, VTA, VTB])
        fill = [(p-1, t) for p, t in reads_m(Y, 1)] + [(7, slotadv)] + [(8+k//2, t) for k, t in enumerate(u)] + [(BPOS, BAR)]
        weave(a, mf_m(X), fill)
    a(f"s_sub_u32 s{S_CNT}, s{S_N}, 1\n .Lk4_cm:")
    if FU: a(f"s_bitcmp1_b32 {hx((1<<8)|(1<<5))}, s{S_CNT}\n s_cbranch_scc1 .Lk4_mside\n .Lk4_mback:")
    half0_m()
    weave(a, mf_m(Y), [(p, t) for p, t in reads_m(X, 0)] + [(12, f"s_sub_u32 s{S_CNT}, s{S_CNT}, 1\n s_cmp_lg_u32 s{S_CNT}, 0")])
    a("s_cbranch_scc1 .Lk4_cm")
    half0_m()
    weave(a, mf_m(Y, (2, 3, 0, 1)), [(p, t) for p, t in reads_s(X, 0)])
    stamp(a, 1, 2, SWS, VST, ST)
    def half0_s(extra=[], bar=True):
        a("s_waitcnt lgkmcnt(0)")
        fill = [(p-1, t) for p, t in reads_s(Y, 1)]
        if bar:
            u = upd([VW, VW+1, VW+2, VW+3, VTS])
            fill += [(4, slotadv)] + [(5+k//3, t) for k, t in enumerate(u)]
        fill += extra
        if bar: fill += [(OPT.get("k4_bpos_s", 7), BAR)]
        else: fill += [(7, "s_waitcnt lgkmcnt(0)")]
        weave(a, mf_s(X), fill)
    def half1_s(extra=[], rd=True):
        weave(a, mf_s(Y), ([(p, t) for p, t in reads_s(X, 0)] if rd else []) + extra)
    def pub(k):
        return f"buffer_store_dwordx4 {vr(ACCM+32+4*k,4)}, v{VL16}, s[{SWS}:{SWS+3}], s{S_PO0 if k<4 else S_PO1} offen offset:{(k&3)*1024} sc1"
    half0_s([(2*k, pub(k)) for k in range(4)])
    half1_s([(2*k+1, pub(4+k)) for k in range(4)])
    a(f"s_mov_b32 s{S_CNT}, 1\n .Lk4_cs:")
    a(f"s_bitcmp1_b32 s{S_MSK}, s{S_CNT}\n s_cbranch_scc1 .Lk4_side\n .Lk4_back:")
    half0_s()
    half1_s([(6, f"s_add_u32 s{S_CNT}, s{S_CNT}, 1\n s_cmp_lg_u32 s{S_CNT}, {TEND}")])
    a("s_cbranch_scc1 .Lk4_cs")
    def silu(k):
        m = [ACCM+4*k+r for r in range(4)]; p = [ACCM+32+4*k+r for r in range(4)]; t = [VT+r for r in range(4)]
        i, j = k >> 2, k & 3
        xr = XR + (i*2+(j >> 1))*4 + (j & 1)*2
        L = [f"s_waitcnt vmcnt({7-k})"]
        L += [f"v_add_f32 v{m[r]}, v{m[r]}, v{p[r]}" for r in range(4)]
        L += [f"v_mul_f32 v{t[r]}, s{S_C}, v{m[r]}" for r in range(4)]
        L += [f"v_exp_f32 v{t[r]}, v{t[r]}" for r in range(4)]
        L += [f"v_lshlrev_b32 v{p[0]}, 16, v{xr}", f"v_and_b32 v{p[1]}, s{S_HI}, v{xr}"]
        L += [f"v_add_f32 v{t[r]}, 1.0, v{t[r]}" for r in range(4)]
        L += [f"v_rcp_f32 v{t[r]}, v{t[r]}" for r in range(4)]
        L += [f"v_lshlrev_b32 v{p[2]}, 16, v{xr+1}", f"v_and_b32 v{p[3]}, s{S_HI}, v{xr+1}"]
        L += [f"v_mul_f32 v{m[r]}, v{m[r]}, v{t[r]}" for r in range(4)]
        n = len(L)
        return [(min(7, (q*8)//n), s) for q, s in enumerate(L)]
    for t in range(TEND, 16):
        last = t == 15
        if t <= TEND+1: a(tcap(5+t-TEND))
        half0_s(silu(2*(t-TEND)), bar=not last)
        half1_s(silu(2*(t-TEND)+1), rd=not last)
    stamp(a, 2, 2, SWS, VST, ST)
    for i in range(2):
        for jp in range(2):
            o = X + (i*2+jp)*4
            for jj in range(2):
                k = i*4 + jp*2 + jj
                for r in range(4):
                    a(f"v_fma_f32 v{ACCM+32+4*k+r}, v{ACCS+4*k+r}, v{ACCM+4*k+r}, v{ACCM+32+4*k+r}")
            for jj in range(2):
                k = i*4 + jp*2 + jj
                for h in range(2):
                    a(f"v_cvt_pk_bf16_f32 v{o+2*jj+h}, v{ACCM+32+4*k+2*h}, v{ACCM+32+4*k+2*h+1}")
    for q in range(4):
        o = X + q*4
        a(f"v_permlane16_swap_b32 v{o}, v{o+2}\n v_permlane16_swap_b32 v{o+1}, v{o+3}")
    for q in range(4):
        o = X + q*4
        a(f"buffer_store_dwordx4 {vr(o,4)}, v{VXO}, s[{SX}:{SX+3}], {'0' if q<2 else 's%d'%S_X1} offen offset:{64*(q&1)}")
    stamp(a, 3, 2, SWS, VST, ST)
    tdump(7)
    a("s_waitcnt vmcnt(0)\n s_branch .Lk4_end")
    a(f"""
    .Lk4_side:
    s_cmp_eq_u32 s{S_CNT}, {TPOLL}
    s_cbranch_scc1 .Lk4_poll
    s_cmp_eq_u32 s{S_CNT}, {TCHK}
    s_cbranch_scc1 .Lk4_chk
    {tcap(0)}
    v_mov_b32 v{VT}, 1
    s_waitcnt vmcnt(0)
    {tcap(1)}
    s_mov_b64 exec, 1
    buffer_store_dword v{VT}, v{VZ}, s[{SWS}:{SWS+3}], s{S_FO} offen sc1
    s_mov_b64 exec, -1
    """)
    for q in range(4):
        o = XR + q*4
        a(f"v_permlane16_swap_b32 v{o}, v{o+2}\n v_permlane16_swap_b32 v{o+1}, v{o+3}")
    a(f"""
    s_branch .Lk4_back
    .Lk4_poll:
    {tcap(2)}
    buffer_load_dword v{VT+4}, v{VZ}, s[{SWS}:{SWS+3}], s{S_FP} offen sc1
    s_branch .Lk4_back
    .Lk4_chk:
    {tcap(3)}
    s_mov_b32 s{T1}, {OPT['spin']}
    .Lk4_spin:
    s_waitcnt vmcnt(0)
    v_readfirstlane_b32 s{T0}, v{VT+4}
    s_sub_u32 s{T1}, s{T1}, 1
    s_cmp_lg_u32 s{T0}, 0
    s_cbranch_scc1 .Lk4_got
    s_cmp_eq_u32 s{T1}, 0
    s_cbranch_scc1 .Lk4_got
    buffer_load_dword v{VT+4}, v{VZ}, s[{SWS}:{SWS+3}], s{S_FP} offen sc1
    s_branch .Lk4_spin
    .Lk4_got:
    {tcap(4)}
    """)
    for k in range(8):
        a(f"buffer_load_dwordx4 {vr(ACCM+32+4*k,4)}, v{VL16}, s[{SWS}:{SWS+3}], s{S_PP0 if k<4 else S_PP1} offen offset:{(k&3)*1024} sc1")
    a("s_branch .Lk4_back")
    if FU: a(f"""
    .Lk4_mside:
    s_cmp_eq_u32 s{S_CNT}, 5
    s_cbranch_scc1 .Lk4_mchk
    buffer_load_dword v{VT+4}, v{VZ}, s[{SWS}:{SWS+3}], s{S_OP} offen offset:1024 sc1
    s_branch .Lk4_mback
    .Lk4_mchk:
    s_mov_b32 s{T1}, {OPT['spin']}
    .Lk4_mspin:
    s_waitcnt vmcnt(0)
    v_readfirstlane_b32 s{T0}, v{VT+4}
    s_sub_u32 s{T1}, s{T1}, 1
    s_cmp_ge_u32 s{T0}, 16
    s_cbranch_scc1 .Lk4_mback
    s_cmp_eq_u32 s{T1}, 0
    s_cbranch_scc1 .Lk4_mback
    buffer_load_dword v{VT+4}, v{VZ}, s[{SWS}:{SWS+3}], s{S_OP} offen offset:1024 sc1
    s_branch .Lk4_mspin
    """)
    a(".Lk4_end:")
    return a.text()
```

```python
import sys, struct, math
from asmlib import *
import hazard

MB = 1 << 20
XN_OFF = 0
HO_OFF = 8 * MB
KVP_OFF = 32 * MB
ZP_OFF = 36 * MB
MP_OFF = 40 * MB
FLG_OFF = 48 * MB
TS_OFF = 200 * MB
BIG = 0x10000000
LOG2E = 1.4426950408889634

def f2u(x):
    return struct.unpack("<I", struct.pack("<f", x))[0]
def hx(x):
    return "0x%08x" % (x & 0xffffffff)
def vr(b, n):
    return f"v[{b}:{b+n-1}]" if n > 1 else f"v{b}"

OPT = dict(stamp=False, k4_depth=4, k4_n0=36, spin=200000)

def srd(a, d, ptr, size):
    if ptr != d:
        a(f"s_mov_b32 s{d}, s{ptr}")
        a(f"s_mov_b32 s{d+1}, s{ptr+1}")
    a(f"s_mov_b32 s{d+2}, {hx(size)}")
    a(f"s_mov_b32 s{d+3}, 0x00020000")

def stamp(a, idx, kern, srdws, vt, st):
    if not OPT["stamp"]:
        return
    a(f"s_memtime s[{st}:{st+1}]")
    a(f"s_memrealtime s[{st+2}:{st+3}]")
    a(f"s_lshl_b32 s{st+4}, s2, 3")
    a(f"s_add_u32 s{st+4}, s{st+4}, s3")
    a(f"s_lshl_b32 s{st+4}, s{st+4}, 8")
    a(f"s_add_u32 s{st+4}, s{st+4}, {hx(TS_OFF + kern*2*MB + idx*16)}")
    a("s_waitcnt lgkmcnt(0)")
    for k in range(4):
        a(f"v_mov_b32 v{vt+k}, s{st+k}")
    a(f"v_mov_b32 v{vt+4}, 0")
    a(f"buffer_store_dwordx4 v[{vt}:{vt+3}], v{vt+4}, s[{srdws}:{srdws+3}], s{st+4} offen")

def wave_sum(a, v, t):
    for m in ["quad_perm:[1,0,3,2]", "quad_perm:[2,3,0,1]", "row_half_mirror", "row_mirror"]:
        a("s_nop 1")
        a(f"v_add_f32_dpp v{v}, v{v}, v{v} {m} row_mask:0xf bank_mask:0xf")
    for op in ["v_permlane16_swap_b32", "v_permlane32_swap_b32"]:
        a(f"v_mov_b32 v{t}, v{v}")
        a("s_nop 1")
        a(f"{op} v{v}, v{t}")
        a("s_nop 1")
        a(f"v_add_f32 v{v}, v{v}, v{t}")

def k1():
    a = Asm()
    a(f"""
    s_cmp_ge_u32 s2, 512
    s_cbranch_scc1 .Lk1_end
    s_load_dwordx2 s[4:5], s[0:1], 0
    s_load_dwordx2 s[8:9], s[0:1], 88
    v_lshrrev_b32 v1, 6, v0
    v_and_b32 v2, 63, v0
    s_lshl_b32 s3, s2, 2
    v_add_u32 v1, s3, v1
    v_lshlrev_b32 v1, 11, v1
    v_lshl_add_u32 v1, v2, 4, v1
    s_mov_b32 s6, {hx(4*MB)}
    s_mov_b32 s7, 0x00020000
    s_mov_b32 s10, {hx(256*MB)}
    s_mov_b32 s11, 0x00020000
    s_mov_b32 s12, 0xffff0000
    s_waitcnt lgkmcnt(0)
    buffer_load_dwordx4 v[4:7], v1, s[4:7], 0 offen
    buffer_load_dwordx4 v[8:11], v1, s[4:7], 0 offen offset:1024
    v_lshrrev_b32 v2, 6, v0
    v_readfirstlane_b32 s3, v2
    """)
    stamp(a, 0, 0, 8, 32, 16)
    pf = OPT.get("pf1", 0)
    npf = 0
    if pf:
        a(f"""
        s_lshl_b32 s13, s2, 2
        s_add_u32 s13, s13, s3
        v_and_b32 v2, 63, v0
        v_lshlrev_b32 v2, 6, v2
        """)
        for bit, (ka, nb) in enumerate([(8, 1024*6144), (40, 1024*7168), (56, 3584*2048), (24, 2*MB)]):
            if pf >> bit & 1:
                r = 24 + 4*bit
                frac = OPT.get("pf1_frac", 1) if bit < 2 else 1
                per = nb // 2048 // frac
                a(f"""
                s_load_dwordx2 s[{r}:{r+1}], s[0:1], {ka}
                s_mov_b32 s{r+2}, {hx(nb)}
                s_mov_b32 s{r+3}, 0x00020000
                s_mul_i32 s14, s13, {per}
                v_cmp_gt_u32 vcc, {per}, v2
                s_waitcnt lgkmcnt(0)
                s_and_saveexec_b64 s[16:17], vcc
                buffer_load_dword v{36+bit}, v2, s[{r}:{r+3}], s14 offen
                s_mov_b64 exec, s[16:17]
                """)
                npf += 1
    a(f"s_waitcnt vmcnt({npf})")
    for i in range(8):
        a(f"v_lshlrev_b32 v{12+2*i}, 16, v{4+i}")
        a(f"v_and_b32 v{13+2*i}, s12, v{4+i}")
    for i in range(8):
        a(f"v_add_f32 v{28+i}, v{12+2*i}, v{13+2*i}")
    for i in range(4):
        a(f"v_add_f32 v{28+i}, v{28+i}, v{32+i}")
    a("v_add_f32 v28, v28, v30\n v_add_f32 v29, v29, v31\n v_add_f32 v28, v28, v29")
    wave_sum(a, 28, 29)
    a(f"v_mul_f32 v28, {hx(f2u(1.0/1024))}, v28")
    for i in range(16):
        a(f"v_sub_f32 v{12+i}, v{12+i}, v28")
    for i in range(4):
        a(f"v_mul_f32 v{30+i}, v{12+i}, v{12+i}")
    for i in range(4, 16):
        a(f"v_fmac_f32 v{30+(i&3)}, v{12+i}, v{12+i}")
    a("v_add_f32 v30, v30, v32\n v_add_f32 v31, v31, v33\n v_add_f32 v30, v30, v31")
    wave_sum(a, 30, 31)
    a(f"v_mov_b32 v31, {hx(f2u(1e-5))}")
    a(f"v_fmac_f32 v31, {hx(f2u(1.0/1024))}, v30")
    a("v_rsq_f32 v31, v31")
    a("s_nop 0")
    for i in range(16):
        a(f"v_mul_f32 v{12+i}, v{12+i}, v31")
    for i in range(8):
        a(f"v_cvt_pk_bf16_f32 v{4+i}, v{12+2*i}, v{13+2*i}")
    a("""
    buffer_store_dwordx4 v[4:7], v1, s[8:11], 0 offen
    buffer_store_dwordx4 v[8:11], v1, s[8:11], 0 offen offset:1024
    """)
    a(f"""
    s_cmp_ge_u32 s2, 288
    s_cbranch_scc1 .Lk1_noflag
    s_cmp_lg_u32 s3, 0
    s_cbranch_scc1 .Lk1_noflag
    v_lshlrev_b32 v2, 2, v0
    s_mov_b64 exec, 15
    s_lshl_b32 s13, s2, 7
    s_add_u32 s13, s13, {hx(FLG_OFF)}
    v_mov_b32 v3, 0
    buffer_store_dword v3, v2, s[8:11], s13 offen
    s_mov_b64 exec, -1
    .Lk1_noflag:
    s_waitcnt vmcnt(0)
    """)
    stamp(a, 1, 0, 8, 32, 16)
    a("""
    s_waitcnt vmcnt(0)
    .Lk1_end:
    """)
    return a.text()

BRING = 98304
SLOTB_M = 14464
SLOTB_A = 12288
WPHI_L = 147456
K2_LDS = 156160

S_W = 3
SRD_A = 4
SRD_B = 8
SRD_WS = 12
SRD_T = 16
S_I = 20
S_JN = 21
S_TG = 22
S_CH = 23
S_CUR, S_NXT, S_PRV = 24, 25, 26
S_BPAR = 27
S_AROW = 28
S_KA = 29
S_BOFF = 30
S_M0A = 31
S_M0B = 32
S_CNT = 33
S_BIG = 34
S_T0, S_T1, S_T2, S_T3 = 36, 37, 38, 39
S_EXB = 40
S_ST = 56
S_C0, S_C1 = 48, 49

class Pipe:
    pass

def k2_dma_A(a, vA, half, slot_sreg, ks_expr_add):
    ins = []
    pre = []
    pre.append(f"s_add_u32 s{S_T0}, s{S_KA}, {ks_expr_add}")
    pre.append(f"s_cmp_lt_u32 s{S_T0}, 2048")
    pre.append(f"s_cselect_b32 s{S_T1}, s{S_AROW}, s{S_BIG}")
    pre.append(f"s_add_u32 s{S_T0}, s{S_T0}, s{S_T1}")
    if half:
        pre.append(f"s_add_u32 s{S_T0}, s{S_T0}, 262144")
    pre.append(f"s_add_u32 s{S_T1}, s{slot_sreg}, s{S_M0A}")
    pre.append(f"s_add_u32 m0, s{S_T1}, {16384*half}")
    pre.append("s_nop 0")
    ins.append("\n".join(pre) + f"\nbuffer_load_dwordx4 v{vA}, s[{SRD_A}:{SRD_A+3}], s{S_T0} offen lds")
    ins.append(f"buffer_load_dwordx4 v{vA+1}, s[{SRD_A}:{SRD_A+3}], s{S_T0} offen offset:1024 lds")
    return ins

SRD_PF = 64
SRD_PF2 = 68
S_PF, S_PFS, S_PFS2 = 72, 73, 74
V_PF, V_PF2, V_PFD = 253, 254, 255
def k2_dma_B(a, vB, slot_add, e1off, rowbytes, pf=1):
    s = []
    s.append(f"s_add_u32 s{S_T1}, s{S_M0B}, s{S_BPAR}")
    s.append(f"s_add_u32 m0, s{S_T1}, {slot_add}")
    s.append(f"s_mov_b64 exec, s[{S_EXB}:{S_EXB+1}]")
    s.append(f"buffer_load_dwordx4 v{vB}, s[{SRD_B}:{SRD_B+3}], s{S_BOFF} offen lds")
    s.append(f"buffer_load_dwordx4 v{vB+1}, s[{SRD_B}:{SRD_B+3}], s{S_BOFF} offen offset:{e1off} lds")
    if OPT.get("pf2", 0):
        if pf:
            s.append(f"buffer_load_dword v{V_PFD}, v{V_PF}, s[{SRD_PF}:{SRD_PF+3}], s{S_PF} offen")
            s.append(f"s_add_u32 s{S_PF}, s{S_PF}, s{S_PFS}")
        else:
            s.append(f"buffer_load_dword v{V_PFD}, v{V_PF}, s[{SRD_PF}:{SRD_PF+3}], s{S_BIG} offen")
    s.append("s_mov_b64 exec, -1")
    s.append(f"s_add_u32 s{S_BOFF}, s{S_BOFF}, {32*rowbytes}")
    return ["\n".join(s)]

def interleave(a, mf, fill, npre, pre_bar):
    for m in mf[:npre]:
        a(m)
    a(pre_bar)
    rest = mf[npre:]
    for p, t in fill:
        if p < 0:
            a(t)
    for i, m in enumerate(rest):
        a(m)
        for p, t in fill:
            if p == i:
                a(t)
    for p, t in fill:
        if p >= len(rest):
            a(t)

def k2_main(a, tag, mfmas, reads, upd, vDA, vDB, slotb, e1off, rowbytes, npre, rpos, dpos):
    a(f"s_mov_b32 s{S_KA}, 0\n s_mov_b32 s{S_BPAR}, 0")
    for t in k2_dma_A(a, vDA, 0, S_CUR, 0): a(t)
    for t in k2_dma_A(a, vDA, 1, S_CUR, 0): a(t)
    npro = OPT.get("pf2_pro", 0)
    PFX = 1 if OPT.get("pf2", 0) else 0
    for t in k2_dma_B(a, vDB, 0, e1off, rowbytes, npro >= 4): a(t)
    for t in k2_dma_A(a, vDA, 0, S_NXT, 128): a(t)
    for t in k2_dma_B(a, vDB, slotb, e1off, rowbytes, npro >= 3): a(t)
    for t in k2_dma_A(a, vDA, 1, S_NXT, 128): a(t)
    for t in k2_dma_B(a, vDB, 2*slotb, e1off, rowbytes, npro >= 2): a(t)
    for t in k2_dma_A(a, vDA, 0, S_PRV, 256): a(t)
    for t in k2_dma_B(a, vDB, 3*slotb, e1off, rowbytes, npro >= 1): a(t)
    a(f"s_mov_b32 s{S_KA}, 256")
    yield "prologue"
    a(f"s_waitcnt vmcnt({12+3*PFX})\n s_barrier")
    for t in reads(0, 0, 0): a(t)
    a(f"s_mov_b32 s{S_CNT}, 16")
    a(f".Lk2_{tag}_loop:")
    a("s_waitcnt lgkmcnt(0)")
    rd = reads(1, 1, slotb)
    dm = k2_dma_A(a, vDA, 1, S_PRV, 0) + k2_dma_B(a, vDB, 0, e1off, rowbytes)
    if OPT.get("k2_nodma", 0): dm = []
    if OPT.get("k2_noread", 0): rd = []
    fill = [(rpos(i), t) for i, t in enumerate(rd)] + [(dpos[i], t) for i, t in enumerate(dm)]
    interleave(a, mfmas(0), fill, npre, f"s_waitcnt vmcnt({8+2*PFX})\n s_barrier")
    a("s_waitcnt lgkmcnt(0)")
    rd = reads(0, 0, 0)
    dm = k2_dma_A(a, vDA, 0, S_CUR, 128) + k2_dma_B(a, vDB, slotb, e1off, rowbytes)
    if OPT.get("k2_nodma", 0): dm = []
    if OPT.get("k2_noread", 0): rd = []
    fill = [(rpos(i), t) for i, t in enumerate(rd)] + [(dpos[i], t) for i, t in enumerate(dm)]
    interleave(a, mfmas(1), fill, npre, upd + f"\n s_waitcnt vmcnt({8+2*PFX})\n s_barrier")
    if PFX:
        a(f"""
        s_cmp_lg_u32 s{S_CNT}, {OPT.get("pf2_sw", 11)}
        s_cbranch_scc1 .Lk2_{tag}_nosw
        s_mov_b32 s{SRD_PF}, s{SRD_PF2}
        s_mov_b32 s{SRD_PF+1}, s{SRD_PF2+1}
        s_mov_b32 s{SRD_PF+2}, s{SRD_PF2+2}
        s_mov_b32 s{S_PF}, 0
        s_mov_b32 s{S_PFS}, s{S_PFS2}
        v_mov_b32 v{V_PF}, v{V_PF2}
        .Lk2_{tag}_nosw:
        """)
    a(f"""
    s_xor_b32 s{S_BPAR}, s{S_BPAR}, {2*slotb}
    s_mov_b32 s{S_T0}, s{S_CUR}
    s_mov_b32 s{S_CUR}, s{S_NXT}
    s_mov_b32 s{S_NXT}, s{S_PRV}
    s_mov_b32 s{S_PRV}, s{S_T0}
    s_add_u32 s{S_KA}, s{S_KA}, 128
    s_sub_u32 s{S_CNT}, s{S_CNT}, 1
    s_cmp_lg_u32 s{S_CNT}, 0
    s_cbranch_scc1 .Lk2_{tag}_loop
    """)
    yield "done"

def k2_pf_setup(a, VL, VT, own_ka, own_nb, rowbytes, nl, ka2, nb2, att):
    if not OPT.get("pf2", 0): return
    r0 = OPT.get("pf2_r0", 256) - 64*OPT.get("pf2_pro", 0)
    a(f"""
    s_load_dwordx2 s[{SRD_PF}:{SRD_PF+1}], s[0:1], {own_ka}
    s_load_dwordx2 s[{SRD_PF2}:{SRD_PF2+1}], s[0:1], {ka2}
    s_mov_b32 s{SRD_PF+2}, {hx(own_nb)}
    s_mov_b32 s{SRD_PF+3}, 0x00020000
    s_mov_b32 s{SRD_PF2+2}, {hx(nb2)}
    s_mov_b32 s{SRD_PF2+3}, 0x00020000
    s_mov_b32 s{S_PF}, {hx(r0*rowbytes)}
    s_mov_b32 s{S_PFS}, {hx(64*rowbytes)}
    s_mov_b32 s{S_PFS2}, {hx(1024*nl*64)}
    s_lshl_b32 s{S_T0}, s{S_I}, 3
    s_add_u32 s{S_T0}, s{S_T0}, s{S_W}
    s_lshl_b32 s{S_T1}, s{S_JN}, 6
    s_add_u32 s{S_T1}, s{S_T1}, s{S_T0}
    s_mul_i32 s{S_T1}, s{S_T1}, {nl*64}
    s_mul_i32 s{S_T0}, s{S_T0}, {rowbytes}
    s_mul_i32 s{S_T2}, s{S_JN}, {128 if att else 448}
    s_add_u32 s{S_T0}, s{S_T0}, s{S_T2}
    v_lshlrev_b32 v{VT}, 6, v{VL}
    v_add_u32 v{V_PF2}, s{S_T1}, v{VT}
    """)
    if att:
        a(f"""
        v_lshrrev_b32 v{VT}, 1, v{VL}
        v_lshlrev_b32 v{VT}, 11, v{VT}
        v_and_b32 v{VT+1}, 1, v{VL}
        v_lshl_add_u32 v{VT}, v{VT+1}, 6, v{VT}
        """)
    a(f"""
    v_add_u32 v{V_PF}, s{S_T0}, v{VT}
    v_mov_b32 v{VT}, s{S_BIG}
    v_cmp_gt_u32 vcc, {nl}, v{VL}
    v_cndmask_b32 v{V_PF}, v{VT}, v{V_PF}, vcc
    v_cndmask_b32 v{V_PF2}, v{VT}, v{V_PF2}, vcc
    """)

def FU(): return OPT.get("fuse", 0)
def SC(): return " sc1" if FU() else ""
def MAPJN():
    if FU() or OPT.get("remap", 0):
        return f"""s_lshr_b32 s{S_JN}, s{S_T0}, 1
        s_lshl_b32 s{S_JN}, s{S_JN}, 2
        s_add_u32 s{S_JN}, s{S_JN}, s{S_T1}
        s_and_b32 s{S_T3}, s{S_T0}, 1"""
    return f"""s_lshl_b32 s{S_JN}, s{S_T0}, 1
    s_lshr_b32 s{S_T2}, s{S_T1}, 1
    s_add_u32 s{S_JN}, s{S_JN}, s{S_T2}
    s_and_b32 s{S_T3}, s{S_T1}, 1"""
S_SIG = 84
def k4_early(a, VL, tag):
    if not FU(): return
    n0 = OPT.get("n0", 26)
    VB, VT = 176, 180
    a(f"""
    s_cmp_lt_u32 s3, 4
    s_cbranch_scc1 .Lk4e_{tag}
    s_load_dwordx2 s[76:77], s[0:1], 56
    s_mov_b32 s78, {hx(3584*2048)}
    s_mov_b32 s79, 0x00020000
    s_and_b32 s80, s2, 4
    s_lshr_b32 s81, s2, 6
    s_add_u32 s80, s80, s81
    s_and_b32 s82, s2, 1
    s_mul_i32 s82, s82, {n0*131072}
    s_and_b32 s81, s3, 3
    s_lshl_b32 s83, s81, 12
    s_add_u32 s83, s83, 16384
    v_lshrrev_b32 v{VT}, 4, v{VL}
    v_and_b32 v{VT+1}, 15, v{VL}
    v_lshlrev_b32 v{VT+2}, 1, v{VT}
    v_xor_b32 v{VT+1}, v{VT+1}, v{VT+2}
    s_lshl_b32 s81, s81, 4
    v_add_u32 v{VT}, s81, v{VT}
    v_lshlrev_b32 v{VT}, 11, v{VT}
    v_lshl_add_u32 v{VT}, v{VT+1}, 4, v{VT}
    s_lshl_b32 s80, s80, 8
    v_add_u32 v{VB}, s80, v{VT}
    v_xor_b32 v{VB+1}, 128, v{VB}
    v_add_u32 v{VB+2}, {2*(8192-1024)}, v{VB}
    v_add_u32 v{VB+3}, {3*(8192-1024)}, v{VB+1}
    v_add_u32 v{VB+1}, {8192-1024}, v{VB+1}
    s_waitcnt lgkmcnt(0)
    """)
    for sl in range(5):
        a(f"s_add_u32 m0, s83, {sl*32768}")
        for i in range(4):
            a(f"buffer_load_dwordx4 v{VB+i}, s[76:79], s82 offen offset:{i*1024} lds")
        a("s_add_u32 s82, s82, 131072")
    a(f".Lk4e_{tag}:")

def k2():
    a = Asm()
    VL = 240
    VT = 241
    a(f"""
    s_cmp_ge_u32 s2, 256
    s_cbranch_scc1 {'.Lk4_end' if FU() else '.Lk2_end'}
    s_load_dwordx2 s[{SRD_A}:{SRD_A+1}], s[0:1], 88
    s_load_dwordx2 s[{SRD_WS}:{SRD_WS+1}], s[0:1], 88
    v_lshrrev_b32 v1, 6, v0
    v_and_b32 v{VL}, 63, v0
    s_and_b32 s{S_T0}, s2, 7
    v_readfirstlane_b32 s{S_W}, v1
    s_lshr_b32 s{S_T1}, s2, 3
    s_and_b32 s{S_I}, s{S_T1}, 7
    s_lshr_b32 s{S_T1}, s{S_T1}, 3
    {MAPJN()}
    s_and_b32 s{S_TG}, s{S_W}, 3
    s_lshr_b32 s{S_CH}, s{S_W}, 2
    s_mov_b32 s{S_CUR}, 0
    s_mov_b32 s{S_NXT}, 32768
    s_mov_b32 s{S_PRV}, 65536
    s_lshl_b32 s{S_AROW}, s{S_I}, 19
    s_mov_b32 s{S_BOFF}, 0
    s_lshl_b32 s{S_M0A}, s{S_W}, 11
    s_mov_b32 s{S_BIG}, {hx(BIG)}
    s_mov_b32 s{SRD_A+2}, {hx(4*MB)}
    s_mov_b32 s{SRD_A+3}, 0x00020000
    s_mov_b32 s{SRD_WS+2}, {hx(256*MB)}
    s_mov_b32 s{SRD_WS+3}, 0x00020000
    """)
    VDA, VDB = 236, 238
    a(f"""
    v_lshrrev_b32 v{VT}, 3, v{VL}
    s_lshl_b32 s{S_T0}, s{S_W}, 4
    v_add_u32 v{VT}, s{S_T0}, v{VT}
    v_lshlrev_b32 v{VT}, 11, v{VT}
    v_and_b32 v{VT+1}, 7, v{VL}
    v_lshrrev_b32 v{VT+2}, 4, v{VL}
    v_xor_b32 v{VT+1}, v{VT+1}, v{VT+2}
    v_lshl_add_u32 v{VDA}, v{VT+1}, 4, v{VT}
    v_xor_b32 v{VDA+1}, 64, v{VDA}
    v_add_u32 v{VDA+1}, {8*2048-1024}, v{VDA+1}
    """)
    if OPT.get("k2_force", 0): a(f"s_mov_b32 s{S_T3}, {2-OPT['k2_force']}")
    a(f"""
    s_cmp_eq_u32 s{S_T3}, 0
    s_cbranch_scc1 .Lk2_att
    """)
    k2_mlp(a, VL, VT, VDA, VDB)
    a("s_branch .Lk2_end")
    a(".Lk2_att:")
    k2_att(a, VL, VT, VDA, VDB)
    a(".Lk2_end:")
    if FU():
        a(f"""
        s_waitcnt vmcnt(0) lgkmcnt(0)
        s_barrier
        s_cmp_lg_u32 s3, 5
        s_cbranch_scc1 .Lk2_nosig2
        v_mov_b32 v1, 1
        v_mov_b32 v2, 0
        s_mov_b64 exec, 1
        buffer_atomic_add v1, v2, s[{SRD_WS}:{SRD_WS+3}], s{S_SIG} offen sc1
        s_mov_b64 exec, -1
        .Lk2_nosig2:
        """)
    return a.text()

def k2_mlp(a, VL, VT, VDA, VDB):
    SET = [112, 156]
    VA0, VA1, VA0C, VA1C, VB, VBC = 200, 201, 202, 203, 204, 205
    VBIAS = 206
    a(f"""
    s_load_dwordx2 s[{SRD_B}:{SRD_B+1}], s[0:1], 40
    s_load_dwordx2 s[{SRD_T}:{SRD_T+1}], s[0:1], 48
    s_mov_b32 s{SRD_B+2}, {hx(1024*7168)}
    s_mov_b32 s{SRD_B+3}, 0x00020000
    s_mov_b32 s{SRD_T+2}, 7168
    s_mov_b32 s{SRD_T+3}, 0x00020000
    s_mov_b32 s{S_EXB}, -1
    s_mov_b32 s{S_EXB+1}, 0x00ffffff
    """)
    k2_pf_setup(a, VL, VT, 40, 1024*7168, 7168, 7, 56, 3584*2048, False)
    a(f"""
    v_cmp_le_u32 vcc, 28, v{VL}
    v_cndmask_b32 v{VT}, 0, 1, vcc
    v_mul_u32_u24 v{VT+1}, 28, v{VT}
    v_sub_u32 v{VT+1}, v{VL}, v{VT+1}
    v_lshrrev_b32 v{VT+2}, 1, v{VT+1}
    v_and_b32 v{VT+1}, 1, v{VT+1}
    v_add_u32 v{VT+3}, -1, v{VT+2}
    v_cmp_gt_u32 vcc, 6, v{VT+2}
    v_cndmask_b32 v{VT+3}, v{VT+3}, v{VT+2}, vcc
    v_cmp_eq_u32 vcc, 6, v{VT+2}
    v_cndmask_b32 v{VT+3}, v{VT+3}, 12, vcc
    v_cmp_le_u32 vcc, 13, v{VT+2}
    v_cndmask_b32 v{VT+3}, v{VT+3}, 13, vcc
    v_lshlrev_b32 v{VT+3}, 5, v{VT+3}
    v_lshl_add_u32 v{VT+3}, v{VT+1}, 4, v{VT+3}
    s_lshl_b32 s{S_T0}, s{S_W}, 2
    v_add_u32 v{VT}, s{S_T0}, v{VT}
    v_mul_u32_u24 v{VT}, 7168, v{VT}
    v_add_u32 v{VT}, v{VT}, v{VT+3}
    s_mul_i32 s{S_T0}, s{S_JN}, 448
    v_add_u32 v{VDB}, s{S_T0}, v{VT}
    v_add_u32 v{VDB+1}, {2*7168-896}, v{VDB}
    s_mul_i32 s{S_M0B}, s{S_W}, 1792
    s_lshr_b32 s{S_T0}, s{S_W}, 1
    s_lshl_b32 s{S_T0}, s{S_T0}, 5
    s_add_u32 s{S_M0B}, s{S_M0B}, s{S_T0}
    s_add_u32 s{S_M0B}, s{S_M0B}, {BRING}
    """)
    a(f"""
    v_and_b32 v{VT}, 15, v{VL}
    v_lshrrev_b32 v{VT+1}, 1, v{VT}
    v_lshrrev_b32 v{VT+2}, 4, v{VL}
    v_xor_b32 v{VT+1}, v{VT+1}, v{VT+2}
    s_lshl_b32 s{S_T0}, s{S_TG}, 6
    v_add_u32 v{VT}, s{S_T0}, v{VT}
    v_lshlrev_b32 v{VT}, 7, v{VT}
    v_lshl_add_u32 v{VA0C}, v{VT+1}, 4, v{VT}
    v_xor_b32 v{VA1C}, 64, v{VA0C}
    v_mov_b32 v{VA0}, v{VA0C}
    v_mov_b32 v{VA1}, v{VA1C}
    v_bfe_u32 v{VT}, v{VL}, 2, 2
    v_lshl_add_u32 v{VT}, v{VT+2}, 3, v{VT}
    v_mul_u32_u24 v{VT}, 448, v{VT}
    v_lshl_add_u32 v{VT}, v{VT+2}, 5, v{VT}
    v_and_b32 v{VT+1}, 3, v{VL}
    v_lshl_add_u32 v{VT}, v{VT+1}, 3, v{VT}
    s_mul_i32 s{S_T0}, s{S_CH}, 224
    s_add_u32 s{S_T0}, s{S_T0}, {BRING}
    v_add_u32 v{VBC}, s{S_T0}, v{VT}
    v_mov_b32 v{VB}, v{VBC}
    """)
    a(f"""
    s_mul_i32 s{S_T0}, s{S_JN}, 448
    s_mul_i32 s{S_T1}, s{S_CH}, 192
    s_add_u32 s{S_T1}, s{S_T1}, s{S_T0}
    s_lshl_b32 s{S_T2}, s{S_CH}, 5
    s_add_u32 s{S_T2}, s{S_T2}, s{S_T0}
    v_lshlrev_b32 v{VT}, 3, v{VT+2}
    s_waitcnt lgkmcnt(0)
    """)
    stamp(a, 0, 1, SRD_WS, 248, S_ST)
    for c in range(6):
        a(f"buffer_load_dwordx2 v[{VBIAS+2*c}:{VBIAS+2*c+1}], v{VT}, s[{SRD_T}:{SRD_T+3}], s{S_T1} offen offset:{32*c}")
    a(f"buffer_load_dwordx2 v[{VBIAS+12}:{VBIAS+13}], v{VT}, s[{SRD_T}:{SRD_T+3}], s{S_T2} offen offset:384")

    def acc(c, tt): return (c*4+tt)*4
    def mfmas(s):
        b = SET[s]
        return [f"v_mfma_f32_16x16x32_bf16 {vr(acc(c,tt),4)}, {vr(b+16+4*c,4)}, {vr(b+4*tt,4)}, {vr(acc(c,tt),4)}"
                for c in range(7) for tt in range(4)]
    def reads(s, sub, bimm):
        b = SET[s]
        va = VA1 if sub else VA0
        r = []
        def w(c):
            for i in range(2):
                r.append(f"ds_read_b64_tr_b16 {vr(b+16+4*c+2*i,2)}, v{VB} offset:{bimm+i*1792+c*32}")
        w(0)
        for tt in range(4):
            r.append(f"ds_read_b128 {vr(b+4*tt,4)}, v{va} offset:{tt*2048}")
        for c in range(1, 7):
            w(c)
        return r
    upd = f"""
    s_xor_b32 s{S_T2}, s{S_BPAR}, {2*SLOTB_M}
    v_add_u32 v{VA0}, s{S_NXT}, v{VA0C}
    v_add_u32 v{VA1}, s{S_NXT}, v{VA1C}
    v_add_u32 v{VB}, s{S_T2}, v{VBC}
    """
    g = k2_main(a, "mlp", mfmas, reads, upd, VDA, VDB, SLOTB_M, 896, 7168, 4,
                lambda i: i - 1, [18, 20, 22])
    next(g)
    a(f"s_waitcnt vmcnt({22 if OPT.get('pf2', 0) else 18})")
    a(f"s_mov_b32 s{S_T0}, 0xffff0000")
    for c in range(7):
        for j in range(2):
            a(f"v_lshlrev_b32 v{acc(c,0)+2*j}, 16, v{VBIAS+2*c+j}")
            a(f"v_and_b32 v{acc(c,0)+2*j+1}, s{S_T0}, v{VBIAS+2*c+j}")
        for tt in range(1, 4):
            for r in range(4):
                a(f"v_mov_b32 v{acc(c,tt)+r}, v{acc(c,0)+r}")
    next(g)
    stamp(a, 1, 1, SRD_WS, 248, S_ST)
    c0 = -2.0*math.sqrt(2.0/math.pi)*LOG2E
    c1 = c0*0.044715
    a(f"""
    s_mov_b32 s{S_C0}, {hx(f2u(c0))}
    s_mov_b32 s{S_C1}, {hx(f2u(c1))}
    v_mov_b32 v{VT+4}, s{S_C0}
    s_lshl_b32 s{S_T0}, s{S_I}, 1
    s_lshr_b32 s{S_T1}, s{S_TG}, 1
    s_add_u32 s{S_T0}, s{S_T0}, s{S_T1}
    s_mul_i32 s{S_T0}, s{S_T0}, 144
    s_mul_i32 s{S_T1}, s{S_JN}, 7
    s_add_u32 s{S_T0}, s{S_T0}, s{S_T1}
    s_add_u32 s{S_T1}, s{S_T0}, 6
    s_mul_i32 s{S_T2}, s{S_CH}, 3
    s_add_u32 s{S_T0}, s{S_T0}, s{S_T2}
    s_lshl_b32 s{S_T0}, s{S_T0}, 13
    s_lshl_b32 s{S_T1}, s{S_T1}, 13
    s_add_u32 s{S_T0}, s{S_T0}, {hx(HO_OFF)}
    s_add_u32 s{S_T1}, s{S_T1}, {hx(HO_OFF)}
    s_lshl_b32 s{S_T2}, s{S_CH}, 3
    s_add_u32 s{S_T1}, s{S_T1}, s{S_T2}
    v_lshrrev_b32 v{VT}, 4, v{VL}
    v_lshlrev_b32 v{VT}, 11, v{VT}
    v_and_b32 v{VT+1}, 15, v{VL}
    v_lshl_add_u32 v{VT}, v{VT+1}, 4, v{VT}
    s_and_b32 s{S_T2}, s{S_TG}, 1
    s_lshl_b32 s{S_T2}, s{S_T2}, 10
    v_add_u32 v{VT}, s{S_T2}, v{VT}
    s_waitcnt lgkmcnt(0)
    s_nop 7
    """)
    T = 112
    def gelu4(regs, tb):
        n = len(regs)
        for k, u in enumerate(regs): a(f"v_mul_f32 v{tb+k}, v{u}, v{u}")
        for k, u in enumerate(regs): a(f"v_fma_f32 v{tb+k}, v{tb+k}, s{S_C1}, v{VT+4}")
        for k, u in enumerate(regs): a(f"v_mul_f32 v{tb+k}, v{tb+k}, v{u}")
        for k, u in enumerate(regs): a(f"v_exp_f32 v{tb+k}, v{tb+k}")
        for k, u in enumerate(regs): a(f"v_add_f32 v{tb+k}, 1.0, v{tb+k}")
        for k, u in enumerate(regs): a(f"v_rcp_f32 v{tb+k}, v{tb+k}")
        for k, u in enumerate(regs): a(f"v_mul_f32 v{tb+k}, v{tb+k}, v{u}")
    k = 0
    for b in range(3):
        for tt in range(4):
            regs = [acc(2*b, tt)+r for r in range(4)] + [acc(2*b+1, tt)+r for r in range(4)]
            tb = T + 8*(k & 1); pb = T + 16 + 4*(k & 3); k += 1
            gelu4(regs, tb)
            for j in range(4):
                a(f"v_cvt_pk_bf16_f32 v{pb+j}, v{tb+2*j}, v{tb+2*j+1}")
            a(f"buffer_store_dwordx4 {vr(pb,4)}, v{VT}, s[{SRD_WS}:{SRD_WS+3}], s{S_T0} offen offset:{tt*256}{SC()}")
        if b == 0 and FU():
            a(f"s_lshl_b32 s{S_SIG}, s{S_I}, 7\n s_add_u32 s{S_SIG}, s{S_SIG}, {hx(FLG_OFF+256*128)}")
            a("s_waitcnt vmcnt(4)\n s_barrier")
            k4_early(a, VL, "m")
        if b < 2:
            a(f"s_add_u32 s{S_T0}, s{S_T0}, 8192")
    for t2 in range(2):
        regs = [acc(6, 2*t2)+r for r in range(4)] + [acc(6, 2*t2+1)+r for r in range(4)]
        tb = T + 8*(k & 1); pb = T + 16 + 4*(k & 3); k += 1
        gelu4(regs, tb)
        for j in range(4):
            a(f"v_cvt_pk_bf16_f32 v{pb+j}, v{tb+2*j}, v{tb+2*j+1}")
        a(f"buffer_store_dwordx2 {vr(pb,2)}, v{VT}, s[{SRD_WS}:{SRD_WS+3}], s{S_T1} offen offset:{(2*t2)*256}{SC()}")
        a(f"buffer_store_dwordx2 {vr(pb+2,2)}, v{VT}, s[{SRD_WS}:{SRD_WS+3}], s{S_T1} offen offset:{(2*t2+1)*256}{SC()}")
    stamp(a, 2, 1, SRD_WS, 248, S_ST)
    if not FU():
        a("s_waitcnt vmcnt(0)")
        stamp(a, 3, 1, SRD_WS, 248, S_ST)
        a("s_waitcnt vmcnt(0)")

def mf32(d, A, B, C):
    c = vr(C, 16) if isinstance(C, int) and C >= 0 else "0"
    return f"v_mfma_f32_32x32x16_bf16 {vr(d,16)}, {vr(A,4)}, {vr(B,4)}, {c}"

def k2_att(a, VL, VT, VDA, VDB):
    ACC = dict(Q=[0, 16], K=[32, 48], V=[64, 80])
    SET = [96, 136]
    VA = [176, 177, 178, 179]; VAC = [180, 181, 182, 183]; VB, VBC = 184, 185
    a(f"""
    s_load_dwordx2 s[{SRD_B}:{SRD_B+1}], s[0:1], 8
    s_load_dwordx2 s[{SRD_T}:{SRD_T+1}], s[0:1], 16
    s_mov_b32 s{SRD_B+2}, {hx(1024*6144)}
    s_mov_b32 s{SRD_B+3}, 0x00020000
    s_mov_b32 s{SRD_T+2}, 65536
    s_mov_b32 s{SRD_T+3}, 0x00020000
    s_mov_b32 s{S_EXB}, -1
    s_mov_b32 s{S_EXB+1}, 0x0000ffff
    """)
    k2_pf_setup(a, VL, VT, 8, 1024*6144, 6144, 6, 24, 2*MB, True)
    a(f"""
    v_cmp_le_u32 vcc, 24, v{VL}
    v_cndmask_b32 v{VT}, 0, 1, vcc
    v_mul_u32_u24 v{VT+1}, 24, v{VT}
    v_sub_u32 v{VT+1}, v{VL}, v{VT+1}
    v_lshrrev_b32 v{VT+2}, 3, v{VT+1}
    v_min_u32 v{VT+2}, 2, v{VT+2}
    v_and_b32 v{VT+1}, 7, v{VT+1}
    v_lshlrev_b32 v{VT+2}, 11, v{VT+2}
    v_lshl_add_u32 v{VT+2}, v{VT+1}, 4, v{VT+2}
    s_lshl_b32 s{S_T0}, s{S_W}, 2
    v_add_u32 v{VT}, s{S_T0}, v{VT}
    v_mul_u32_u24 v{VT}, 6144, v{VT}
    s_lshl_b32 s{S_T0}, s{S_JN}, 7
    v_add_u32 v{VT}, s{S_T0}, v{VT}
    v_add_u32 v{VDB}, v{VT}, v{VT+2}
    v_xor_b32 v{VT+2}, 64, v{VT+2}
    v_add_u32 v{VDB+1}, v{VT}, v{VT+2}
    v_add_u32 v{VDB+1}, {2*6144-768}, v{VDB+1}
    s_mul_i32 s{S_M0B}, s{S_W}, 1536
    s_add_u32 s{S_M0B}, s{S_M0B}, {BRING}
    """)
    a(f"""
    v_and_b32 v{VT}, 31, v{VL}
    v_bfe_u32 v{VT+1}, v{VL}, 1, 3
    v_lshrrev_b32 v{VT+2}, 5, v{VL}
    v_xor_b32 v{VT+1}, v{VT+1}, v{VT+2}
    s_lshl_b32 s{S_T0}, s{S_TG}, 6
    v_add_u32 v{VT}, s{S_T0}, v{VT}
    v_lshlrev_b32 v{VT}, 7, v{VT}
    v_lshl_add_u32 v{VAC[0]}, v{VT+1}, 4, v{VT}
    v_xor_b32 v{VAC[1]}, 32, v{VAC[0]}
    v_xor_b32 v{VAC[2]}, 64, v{VAC[0]}
    v_xor_b32 v{VAC[3]}, 0x60, v{VAC[0]}
    v_mov_b32 v{VA[0]}, v{VAC[0]}
    v_mov_b32 v{VA[1]}, v{VAC[1]}
    v_mov_b32 v{VA[2]}, v{VAC[2]}
    v_mov_b32 v{VA[3]}, v{VAC[3]}
    v_bfe_u32 v{VT}, v{VL}, 2, 2
    v_lshl_add_u32 v{VT}, v{VT+2}, 3, v{VT}
    v_mul_u32_u24 v{VT}, 384, v{VT}
    v_bfe_u32 v{VT+1}, v{VL}, 3, 1
    v_xor_b32 v{VT+1}, s{S_CH}, v{VT+1}
    v_lshl_add_u32 v{VT}, v{VT+1}, 6, v{VT}
    v_bfe_u32 v{VT+1}, v{VL}, 4, 1
    v_lshl_add_u32 v{VT}, v{VT+1}, 5, v{VT}
    v_and_b32 v{VT+1}, 3, v{VL}
    v_lshl_add_u32 v{VT}, v{VT+1}, 3, v{VT}
    v_add_u32 v{VBC}, {BRING}, v{VT}
    v_mov_b32 v{VB}, v{VBC}
    """)
    a(f"""
    s_lshl_b32 s{S_T0}, s{S_JN}, 12
    s_lshl_b32 s{S_T1}, s{S_W}, 9
    s_add_u32 s{S_T0}, s{S_T0}, s{S_T1}
    s_add_u32 m0, s{S_T1}, {WPHI_L}
    v_lshlrev_b32 v{VT}, 4, v{VL}
    s_waitcnt lgkmcnt(0)
    """)
    stamp(a, 0, 1, SRD_WS, 248, S_ST)
    a(f"""
    s_mov_b32 exec_hi, 0
    buffer_load_dwordx4 v{VT}, s[{SRD_T}:{SRD_T+3}], s{S_T0} offen lds
    s_mov_b64 exec, -1
    """)
    def mfmas(s):
        b = SET[s]
        r = []
        for st in range(2):
            for m, nm in enumerate("QKV"):
                for tt in range(2):
                    wf = b + 16 + (st*3+m)*4
                    tf = b + (st*2+tt)*4
                    d = ACC[nm][tt]
                    if nm == "V":
                        r.append(mf32(d, tf, wf, d))
                    else:
                        r.append(mf32(d, wf, tf, d))
        return r
    def reads(s, sub, bimm):
        b = SET[s]
        r = []
        for st in range(2):
            va = VA[2*sub+st]
            def w(m):
                for i in range(2):
                    r.append(f"ds_read_b64_tr_b16 {vr(b+16+(st*3+m)*4+2*i,2)}, v{VB} offset:{bimm+st*6144+i*1536+m*128}")
            w(0)
            for tt in range(2):
                r.append(f"ds_read_b128 {vr(b+(st*2+tt)*4,4)}, v{va} offset:{tt*4096}")
            w(1); w(2)
        return r
    upd = f"s_xor_b32 s{S_T2}, s{S_BPAR}, {2*SLOTB_A}\n" + \
        "\n".join(f"v_add_u32 v{VA[k]}, s{S_NXT}, v{VAC[k]}" for k in range(4)) + \
        f"\nv_add_u32 v{VB}, s{S_T2}, v{VBC}"
    g = k2_main(a, "att", mfmas, reads, upd, VDA, VDB, SLOTB_A, 768, 6144, 2,
                lambda i: (i // 2) - 1, [7, 8, 9])
    next(g)
    for r in range(96):
        a(f"v_mov_b32 v{r}, 0")
    next(g)
    stamp(a, 1, 1, SRD_WS, 248, S_ST)
    WF = 186
    IDF = 194
    ONE = 202
    KV = [96, 112]
    ZA = [128, 144]
    P = 160
    E = [206, 220]
    EP, EM = 206, 222
    TR = 160
    MX, MN, SP, SM, TT = 241, 242, 243, 244, 245
    a(f"""
    s_mov_b32 s{S_C0}, {hx(f2u(LOG2E))}
    s_waitcnt vmcnt(0) lgkmcnt(0)
    s_barrier
    """)
    a(f"""
    v_lshrrev_b32 v{TT}, 5, v{VL}
    v_bfe_u32 v{TT+1}, v{VL}, 2, 2
    v_lshl_add_u32 v{TT+1}, v{TT}, 2, v{TT+1}
    v_lshlrev_b32 v{TT+1}, 6, v{TT+1}
    v_bfe_u32 v{TT+2}, v{VL}, 4, 1
    v_lshl_add_u32 v{TT+1}, v{TT+2}, 5, v{TT+1}
    v_and_b32 v{TT+2}, 3, v{VL}
    v_lshl_add_u32 v{TT+1}, v{TT+2}, 3, v{TT+1}
    s_lshl_b32 s{S_T0}, s{S_CH}, 11
    s_add_u32 s{S_T0}, s{S_T0}, {WPHI_L}
    v_add_u32 v{TT+1}, s{S_T0}, v{TT+1}
    """)
    for s in range(2):
        for i in range(2):
            a(f"ds_read_b64_tr_b16 {vr(WF+4*s+2*i,2)}, v{TT+1} offset:{(16*s+8*i)*64}")
    a(f"""
    v_and_b32 v{TT+2}, 31, v{VL}
    v_lshlrev_b32 v{TT}, 2, v{TT}
    v_sub_u32 v{TT+2}, v{TT+2}, v{TT}
    v_mov_b32 v{TT}, 0x3f80
    v_mov_b32 v{TT+3}, 0x3f800000
    """)
    for s in range(2):
        for k in range(4):
            base = 16*s + 8*(k >> 1) + 2*(k & 1)
            d = IDF + 4*s + k
            a(f"v_cmp_eq_u32 vcc, {base}, v{TT+2}")
            a(f"v_cndmask_b32 v{d}, 0, v{TT}, vcc")
            a(f"v_cmp_eq_u32 vcc, {base+1}, v{TT+2}")
            a(f"v_cndmask_b32 v{d}, v{d}, v{TT+3}, vcc")
    for k in range(4):
        a(f"v_mov_b32 v{ONE+k}, 0x3f803f80")

    def pack(dst, src, n=8):
        for j in range(n):
            a(f"v_cvt_pk_bf16_f32 v{dst+j}, v{src+2*j}, v{src+2*j+1}")

    def xhalf(op, v, t):
        a(f"v_mov_b32 v{t}, v{v}")
        a("s_nop 1")
        a(f"v_permlane32_swap_b32 v{v}, v{t}")
        a("s_nop 1")
        a(f"{op} v{v}, v{v}, v{t}")

    def softmax(src, outp, outm):
        pack(src, src)
        a("s_nop 1")
        a(mf32(P, WF, src, None))
        a(mf32(P, WF+4, src+4, P))
        a("s_nop 15\n s_nop 3")
        a(f"v_max3_f32 v{MX}, v{P}, v{P+1}, v{P+2}")
        a(f"v_min3_f32 v{MN}, v{P}, v{P+1}, v{P+2}")
        for k in range(3, 15, 2):
            a(f"v_max3_f32 v{MX}, v{MX}, v{P+k}, v{P+k+1}")
            a(f"v_min3_f32 v{MN}, v{MN}, v{P+k}, v{P+k+1}")
        a(f"v_max_f32 v{MX}, v{MX}, v{P+15}")
        a(f"v_min_f32 v{MN}, v{MN}, v{P+15}")
        a(f"v_mov_b32 v{TT}, v{MX}\n v_mov_b32 v{TT+1}, v{MN}\n s_nop 1")
        a(f"v_permlane32_swap_b32 v{MX}, v{TT}\n v_permlane32_swap_b32 v{MN}, v{TT+1}\n s_nop 1")
        a(f"v_max_f32 v{MX}, v{MX}, v{TT}\n v_min_f32 v{MN}, v{MN}, v{TT+1}")
        a(f"v_mul_f32 v{MX}, s{S_C0}, v{MX}\n v_mul_f32 v{MN}, s{S_C0}, v{MN}")
        for k in range(16):
            a(f"v_fma_f32 v{EP+k}, v{P+k}, s{S_C0}, -v{MX}")
            a(f"v_fma_f32 v{EM+k}, -v{P+k}, s{S_C0}, v{MN}")
        for k in range(16):
            a(f"v_exp_f32 v{EP+k}, v{EP+k}")
            a(f"v_exp_f32 v{EM+k}, v{EM+k}")
        a(f"v_add_f32 v{SP}, v{EP}, v{EP+1}\n v_add_f32 v{SM}, v{EM}, v{EM+1}")
        a(f"v_add_f32 v{TT}, v{EP+2}, v{EP+3}\n v_add_f32 v{TT+1}, v{EM+2}, v{EM+3}")
        for k in range(4, 16, 2):
            a(f"v_add_f32 v{SP}, v{SP}, v{EP+k}\n v_add_f32 v{SM}, v{SM}, v{EM+k}")
            a(f"v_add_f32 v{TT}, v{TT}, v{EP+k+1}\n v_add_f32 v{TT+1}, v{TT+1}, v{EM+k+1}")
        a(f"v_add_f32 v{SP}, v{SP}, v{TT}\n v_add_f32 v{SM}, v{SM}, v{TT+1}")
        a(f"v_mov_b32 v{TT}, v{SP}\n v_mov_b32 v{TT+1}, v{SM}\n s_nop 1")
        a(f"v_permlane32_swap_b32 v{SP}, v{TT}\n v_permlane32_swap_b32 v{SM}, v{TT+1}\n s_nop 1")
        a(f"v_add_f32 v{SP}, v{SP}, v{TT}\n v_add_f32 v{SM}, v{SM}, v{TT+1}")
        a(f"v_rcp_f32 v{SP}, v{SP}\n v_rcp_f32 v{SM}, v{SM}\n s_nop 0")
        for k in range(16):
            a(f"v_mul_f32 v{EP+k}, v{EP+k}, v{SP}")
            a(f"v_mul_f32 v{EM+k}, v{EM+k}, v{SM}")
        pack(outp, EP)
        pack(outm, EM)

    a("s_waitcnt lgkmcnt(0)")
    for tt in range(2):
        pack(ACC["V"][tt], ACC["V"][tt])
    for tt in range(2):
        src = ACC["K"][tt]
        softmax(src, src, src+8)
        for pm in range(2):
            ph = src + 8*pm
            a("s_nop 1")
            a(mf32(TR, ph, IDF, None))
            a(mf32(TR, ph+4, IDF+4, TR))
            a("s_nop 15\n s_nop 3")
            pack(EP, TR)
            a("s_nop 1")
            v = ACC["V"][tt]
            first = (tt == 0)
            a(mf32(KV[pm], EP, v, None if first else KV[pm]))
            a(mf32(ZA[pm], ONE, EP, None if first else ZA[pm]))
            a(mf32(KV[pm], EP+4, v+4, KV[pm]))
            a(mf32(ZA[pm], ONE, EP+4, ZA[pm]))
            a("s_nop 7")
    a("s_nop 15\n s_nop 3")
    VW = TT
    a(f"""
    s_lshl_b32 s{S_T0}, s{S_W}, 13
    v_lshlrev_b32 v{VW+1}, 4, v{VL}
    v_add_u32 v{VW}, s{S_T0}, v{VW+1}
    v_cmp_gt_u32 vcc, 32, v{VL}
    v_cndmask_b32 v{VW+2}, v{ZA[1]}, v{ZA[0]}, vcc
    s_lshl_b32 s{S_T0}, s{S_W}, 8
    s_add_u32 s{S_T0}, s{S_T0}, 65536
    v_lshlrev_b32 v{VW+3}, 2, v{VL}
    v_add_u32 v{VW+4}, s{S_T0}, v{VW+3}
    """)
    for i in range(8):
        a(f"ds_write_b128 v{VW}, {vr(KV[i>>2]+4*(i&3),4)} offset:{i*1024}")
    a(f"ds_write_b32 v{VW+4}, v{VW+2}")
    a(f"""
    s_lshl_b32 s{S_T0}, s{S_CH}, 15
    s_lshl_b32 s{S_T1}, s{S_TG}, 11
    s_add_u32 s{S_T0}, s{S_T0}, s{S_T1}
    v_add_u32 v{VW}, s{S_T0}, v{VW+1}
    s_lshl_b32 s{S_T0}, s{S_CH}, 10
    s_add_u32 s{S_T0}, s{S_T0}, 65536
    v_add_u32 v{VW+4}, s{S_T0}, v{VW+3}
    s_waitcnt lgkmcnt(0)
    s_barrier
    """)
    R = 96
    for k in range(4):
        for e in range(2):
            a(f"ds_read_b128 {vr(R+(k*2+e)*4,4)}, v{VW} offset:{k*8192+e*1024}")
    ZR = 128
    for k in range(4):
        a(f"ds_read_b32 v{ZR+k}, v{VW+4} offset:{k*256}")
    S_KVP, S_ZP, S_HEAD = 50, 51, 52
    a(f"""
    s_lshl_b32 s{S_HEAD}, s{S_JN}, 1
    s_add_u32 s{S_HEAD}, s{S_HEAD}, s{S_CH}
    s_lshl_b32 s{S_T0}, s{S_HEAD}, 3
    s_add_u32 s{S_T0}, s{S_T0}, s{S_I}
    s_lshl_b32 s{S_ZP}, s{S_T0}, 8
    s_add_u32 s{S_ZP}, s{S_ZP}, {hx(ZP_OFF)}
    s_lshl_b32 s{S_KVP}, s{S_T0}, 13
    s_lshl_b32 s{S_T1}, s{S_TG}, 11
    s_add_u32 s{S_KVP}, s{S_KVP}, s{S_T1}
    s_add_u32 s{S_KVP}, s{S_KVP}, {hx(KVP_OFF)}
    s_waitcnt lgkmcnt(0)
    """)
    for j in range(8):
        a(f"v_add_f32 v{R+j}, v{R+j}, v{R+8+j}")
        a(f"v_add_f32 v{R+16+j}, v{R+16+j}, v{R+24+j}")
    a(f"v_add_f32 v{ZR}, v{ZR}, v{ZR+1}\n v_add_f32 v{ZR+2}, v{ZR+2}, v{ZR+3}")
    for j in range(8):
        a(f"v_add_f32 v{R+j}, v{R+j}, v{R+16+j}")
    a(f"v_add_f32 v{ZR}, v{ZR}, v{ZR+2}")
    VO16, VO4 = 238, 239
    a(f"v_mov_b32 v{VO16}, v{VW+1}\n v_mov_b32 v{VO4}, v{VW+3}")
    for e in range(2):
        a(f"buffer_store_dwordx4 {vr(R+4*e,4)}, v{VO16}, s[{SRD_WS}:{SRD_WS+3}], s{S_KVP} offen offset:{e*1024} sc1")
    a(f"""
    s_cmp_lg_u32 s{S_TG}, 0
    s_cbranch_scc1 .Lk2_noz
    buffer_store_dword v{ZR}, v{VO4}, s[{SRD_WS}:{SRD_WS+3}], s{S_ZP} offen sc1
    .Lk2_noz:
    """)
    stamp(a, 2, 1, SRD_WS, 248, S_ST)
    softmax(ACC["Q"][0], ACC["Q"][0], ACC["Q"][0]+8)
    a(f"""
    s_waitcnt vmcnt(0) lgkmcnt(0)
    s_barrier
    s_lshl_b32 s{S_T3}, s{S_JN}, 7
    s_add_u32 s{S_T3}, s{S_T3}, {hx(FLG_OFF+272*128)}
    s_cmp_lg_u32 s{S_W}, 0
    s_cbranch_scc1 .Lk2_nosig
    v_mov_b32 v{TT}, 1
    v_mov_b32 v{TT+1}, 0
    s_mov_b64 exec, 1
    buffer_atomic_add v{TT}, v{TT+1}, s[{SRD_WS}:{SRD_WS+3}], s{S_T3} offen sc1
    s_mov_b64 exec, -1
    .Lk2_nosig:
    """)
    if FU():
        a(f"s_lshl_b32 s{S_SIG}, s{S_I}, 7\n s_add_u32 s{S_SIG}, s{S_SIG}, {hx(FLG_OFF+264*128)}")
        k4_early(a, VL, "a")
    softmax(ACC["Q"][1], ACC["Q"][1], ACC["Q"][1]+8)
    stamp(a, 3, 1, SRD_WS, 248, S_ST)
    a(f"""
    s_cmp_lg_u32 s{S_W}, 0
    s_cbranch_scc1 .Lk2_polled
    s_mov_b32 s{S_CNT}, {OPT['spin']}
    v_mov_b32 v{TT+1}, 0
    .Lk2_poll:
    buffer_load_dword v{TT}, v{TT+1}, s[{SRD_WS}:{SRD_WS+3}], s{S_T3} offen sc1
    s_waitcnt vmcnt(0)
    v_readfirstlane_b32 s{S_T0}, v{TT}
    s_sub_u32 s{S_CNT}, s{S_CNT}, 1
    s_cmp_eq_u32 s{S_CNT}, 0
    s_cbranch_scc1 .Lk2_polled
    s_cmp_lt_u32 s{S_T0}, 8
    s_cbranch_scc1 .Lk2_poll
    .Lk2_polled:
    s_barrier
    """)
    stamp(a, 4, 1, SRD_WS, 248, S_ST)
    a(f"""
    s_lshl_b32 s{S_T0}, s{S_HEAD}, 16
    s_lshl_b32 s{S_T1}, s{S_TG}, 11
    s_add_u32 s{S_T0}, s{S_T0}, s{S_T1}
    s_add_u32 s{S_T0}, s{S_T0}, {hx(KVP_OFF)}
    s_lshl_b32 s{S_T1}, s{S_HEAD}, 11
    s_add_u32 s{S_T1}, s{S_T1}, {hx(ZP_OFF)}
    """)
    L = 96
    ZL = 160
    for k in range(8):
        for e in range(2):
            a(f"buffer_load_dwordx4 {vr(L+(k*2+e)*4,4)}, v{VO16}, s[{SRD_WS}:{SRD_WS+3}], s{S_T0} offen offset:{e*1024} sc1")
        if k < 7:
            a(f"s_add_u32 s{S_T0}, s{S_T0}, 8192")
    for k in range(8):
        a(f"buffer_load_dword v{ZL+k}, v{VO4}, s[{SRD_WS}:{SRD_WS+3}], s{S_T1} offen offset:{k*256} sc1")
    KVF, ZF = 67584, 75776
    a(f"""
    s_lshl_b32 s{S_T0}, s{S_W}, 10
    s_add_u32 s{S_T0}, s{S_T0}, {KVF}
    v_add_u32 v{TT}, s{S_T0}, v{VO16}
    s_lshl_b32 s{S_T0}, s{S_W}, 7
    s_add_u32 s{S_T0}, s{S_T0}, {ZF}
    v_lshlrev_b32 v{TT+1}, 1, v{VL}
    v_add_u32 v{TT+1}, s{S_T0}, v{TT+1}
    v_lshrrev_b32 v{TT+2}, 5, v{VL}
    v_lshlrev_b32 v{TT+2}, 3, v{TT+2}
    v_add_u32 v{TT+2}, s{S_T0}, v{TT+2}
    s_lshl_b32 s{S_T0}, s{S_CH}, 12
    s_add_u32 s{S_T0}, s{S_T0}, {KVF}
    v_add_u32 v{MX}, s{S_T0}, v{VO16}
    """)
    for k in range(1, 8):
        a(f"s_waitcnt vmcnt({8 + 2*(7-k)})")
        for j in range(8):
            a(f"v_add_f32 v{L+j}, v{L+j}, v{L+8*k+j}")
    pack(L, L, 4)
    a(f"ds_write_b128 v{TT}, {vr(L,4)}")
    a("s_waitcnt vmcnt(0)")
    for k in range(4):
        a(f"v_add_f32 v{ZL+k}, v{ZL+k}, v{ZL+4+k}")
    a(f"v_add_f32 v{ZL}, v{ZL}, v{ZL+2}\n v_add_f32 v{ZL+1}, v{ZL+1}, v{ZL+3}\n v_add_f32 v{ZL}, v{ZL}, v{ZL+1}")
    a(f"v_cvt_pk_bf16_f32 v{ZL}, v{ZL}, v{ZL}")
    a(f"ds_write_b16 v{TT+1}, v{ZL}")
    a("s_waitcnt lgkmcnt(0)\n s_barrier")
    KF = 96
    ZFR = 112
    for k in range(4):
        a(f"ds_read_b128 {vr(KF+4*k,4)}, v{MX} offset:{k*1024}")
    for k in range(4):
        a(f"ds_read2_b64 {vr(ZFR+4*k,4)}, v{TT+2} offset0:{4*k} offset1:{4*k+2}")
    a(f"""
    s_lshl_b32 s{S_T0}, s{S_I}, 1
    s_lshr_b32 s{S_T1}, s{S_TG}, 1
    s_add_u32 s{S_T0}, s{S_T0}, s{S_T1}
    s_mul_i32 s{S_T0}, s{S_T0}, 144
    s_add_u32 s{S_T0}, s{S_T0}, s{S_HEAD}
    s_add_u32 s{S_T0}, s{S_T0}, 112
    s_lshl_b32 s{S_T0}, s{S_T0}, 13
    s_add_u32 s{S_T0}, s{S_T0}, {hx(HO_OFF)}
    s_and_b32 s{S_T1}, s{S_TG}, 1
    s_lshl_b32 s{S_T1}, s{S_T1}, 10
    s_add_u32 s{S_T0}, s{S_T0}, s{S_T1}
    s_add_u32 s{S_T1}, s{S_T0}, 4096
    v_lshrrev_b32 v{TT}, 5, v{VL}
    v_lshlrev_b32 v{TT}, 11, v{TT}
    v_and_b32 v{TT+1}, 31, v{VL}
    v_lshl_add_u32 v{TT}, v{TT+1}, 4, v{TT}
    s_waitcnt lgkmcnt(0)
    """)
    NUM = [128, 144]; DEN = [160, 206]
    for tt in range(2):
        q = ACC["Q"][tt]
        for k in range(4):
            a(mf32(DEN[tt], ZFR+4*k, q+4*k, None if k == 0 else DEN[tt]))
            a(mf32(NUM[tt], KF+4*k, q+4*k, None if k == 0 else NUM[tt]))
    a("s_nop 15\n s_nop 3")
    O = 32
    for tt in range(2):
        d = DEN[tt]
        a(f"v_add_f32 v{d}, {hx(f2u(1e-6))}, v{d}")
        a(f"v_rcp_f32 v{d}, v{d}")
        a("s_nop 0")
        for k in range(16):
            a(f"v_mul_f32 v{NUM[tt]+k}, v{NUM[tt]+k}, v{d}")
        ob = O + 8*tt
        for aa in range(4):
            dst = ob + 4*(aa & 1) + 2*(aa >> 1)
            for j in range(2):
                a(f"v_cvt_pk_bf16_f32 v{dst+j}, v{NUM[tt]+4*aa+2*j}, v{NUM[tt]+4*aa+2*j+1}")
        a(f"buffer_store_dwordx4 {vr(ob,4)}, v{TT}, s[{SRD_WS}:{SRD_WS+3}], s{S_T0} offen offset:{tt*512}{SC()}")
        a(f"buffer_store_dwordx4 {vr(ob+4,4)}, v{TT}, s[{SRD_WS}:{SRD_WS+3}], s{S_T1} offen offset:{tt*512}{SC()}")
    stamp(a, 5, 1, SRD_WS, 248, S_ST)
    if not FU(): a("s_waitcnt vmcnt(0)")

def k4():
    D = OPT["k4_depth"]; N0 = OPT["k4_n0"]
    a = Asm()
    SA, SB, SWS, SX = 4, 8, 12, 16
    S_MT, S_NT, S_KH, S_TG4, S_CH4 = 20, 21, 22, 23, 24
    S_AO, S_BO, S_DST, S_END, S_SW, S_SR, S_M0, S_N, S_BG = 25, 26, 27, 28, 29, 30, 31, 32, 33
    T0, T1, T2, T3 = 36, 37, 38, 39
    S_WO = 40
    S_TILE = 42
    ACCM, ACCS = 0, 32
    X, Y = 64, 88
    XR = 112
    VTOK, VW0, VW1, VTOKC, VW0C, VW1C, VDA, VDB0, VDB1, VL, VXO, VT = 128, 129, 130, 131, 132, 133, 134, 135, 136, 137, 138, 140
    a(f"""
    s_cmp_ge_u32 s2, 256
    s_cbranch_scc1 .Lk4_end
    s_load_dwordx2 s[{SA}:{SA+1}], s[0:1], 88
    s_load_dwordx2 s[{SWS}:{SWS+1}], s[0:1], 88
    s_load_dwordx2 s[{SB}:{SB+1}], s[0:1], 56
    s_load_dwordx2 s[{S_WO}:{S_WO+1}], s[0:1], 24
    s_load_dwordx2 s[{SX}:{SX+1}], s[0:1], 64
    v_lshrrev_b32 v1, 6, v0
    v_and_b32 v{VL}, 63, v0
    v_mov_b32 v{VXO}, 0
    s_and_b32 s{T0}, s2, 7
    v_readfirstlane_b32 s3, v1
    s_lshr_b32 s{T1}, s2, 3
    s_and_b32 s{S_KH}, s{T0}, 1
    s_bfe_u32 s{T2}, s{T0}, 0x10001
    s_lshl_b32 s{T2}, s{T2}, 3
    s_and_b32 s{S_MT}, s{T1}, 7
    s_add_u32 s{S_MT}, s{S_MT}, s{T2}
    s_lshr_b32 s{T2}, s{T0}, 2
    s_lshl_b32 s{T2}, s{T2}, 2
    s_lshr_b32 s{S_NT}, s{T1}, 3
    s_add_u32 s{S_NT}, s{S_NT}, s{T2}
    s_lshl_b32 s{S_TILE}, s{S_MT}, 3
    s_add_u32 s{S_TILE}, s{S_TILE}, s{S_NT}
    s_and_b32 s{S_TG4}, s3, 3
    s_lshr_b32 s{S_CH4}, s3, 2
    s_mov_b32 s{SA+2}, {hx(32*MB)}
    s_mov_b32 s{SA+3}, 0x00020000
    s_mov_b32 s{SWS+2}, {hx(256*MB)}
    s_mov_b32 s{SWS+3}, 0x00020000
    s_mov_b32 s{SB+2}, {hx(3584*2048)}
    s_mov_b32 s{SB+3}, 0x00020000
    s_mov_b32 s{SX+2}, 2048
    s_mov_b32 s{SX+3}, 0x00020000
    s_mov_b32 s{S_BG}, {hx(BIG)}
    s_mul_i32 s{S_DST}, s{S_KH}, {N0}
    s_cmp_eq_u32 s{S_KH}, 0
    s_cselect_b32 s{S_END}, {N0}, 72
    s_cselect_b32 s{S_N}, {N0}, {56-N0}
    s_mul_i32 s{S_AO}, s{S_MT}, {144*8192}
    s_lshl_b32 s{T0}, s{S_DST}, 14
    s_add_u32 s{S_AO}, s{S_AO}, s{T0}
    s_add_u32 s{S_AO}, s{S_AO}, {hx(HO_OFF-2048)}
    s_lshl_b32 s{S_BO}, s{S_DST}, 17
    s_lshl_b32 s{S_M0}, s3, 12
    s_mov_b32 s{S_SW}, 0
    s_mov_b32 s{S_SR}, 0
    """)
    a(f"""
    s_lshl_b32 s{T0}, s3, 11
    v_lshlrev_b32 v{VT}, 4, v{VL}
    v_add_u32 v{VDA}, s{T0}, v{VT}
    v_lshrrev_b32 v{VT}, 4, v{VL}
    v_and_b32 v{VT+1}, 15, v{VL}
    v_lshlrev_b32 v{VT+2}, 2, v{VT}
    v_xor_b32 v{VT+1}, v{VT+1}, v{VT+2}
    s_lshl_b32 s{T0}, s3, 3
    v_add_u32 v{VT}, s{T0}, v{VT}
    v_lshlrev_b32 v{VT}, 11, v{VT}
    v_lshl_add_u32 v{VT}, v{VT+1}, 4, v{VT}
    s_lshl_b32 s{T0}, s{S_NT}, 8
    v_add_u32 v{VDB0}, s{T0}, v{VT}
    v_add_u32 v{VDB1}, {4*2048-1024}, v{VDB0}
    """)
    a(f"""
    v_lshrrev_b32 v{VT}, 5, v{VL}
    v_and_b32 v{VT+1}, 31, v{VL}
    s_lshl_b32 s{T0}, s{S_TG4}, 5
    v_add_u32 v{VT+1}, s{T0}, v{VT+1}
    v_lshlrev_b32 v{VT+1}, 4, v{VT+1}
    v_lshl_add_u32 v{VTOKC}, v{VT}, 12, v{VT+1}
    v_bfe_u32 v{VT+1}, v{VL}, 2, 2
    v_lshl_add_u32 v{VT+2}, v{VT}, 2, v{VT+1}
    v_lshlrev_b32 v{VT+2}, 8, v{VT+2}
    s_lshl_b32 s{T0}, s{S_CH4}, 1
    v_xor_b32 v{VT+1}, s{T0}, v{VT+1}
    v_lshl_add_u32 v{VT+2}, v{VT+1}, 6, v{VT+2}
    v_bfe_u32 v{VT+1}, v{VL}, 4, 1
    v_lshl_add_u32 v{VT+2}, v{VT+1}, 5, v{VT+2}
    v_and_b32 v{VT+1}, 3, v{VL}
    v_lshl_add_u32 v{VW0C}, v{VT+1}, 3, v{VT+2}
    v_xor_b32 v{VW1C}, 64, v{VW0C}
    v_mov_b32 v{VTOK}, v{VTOKC}
    v_mov_b32 v{VW0}, v{VW0C}
    v_mov_b32 v{VW1}, v{VW1C}
    s_waitcnt lgkmcnt(0)
    """)
    stamp(a, 0, 2, SWS, 144, 56)
    a(f"""
    s_cmp_eq_u32 s{S_KH}, 0
    s_cbranch_scc1 .Lk4_nob
    s_lshl_b32 s{T0}, s{S_NT}, 8
    s_lshl_b32 s{T1}, s{S_CH4}, 7
    s_add_u32 s{T0}, s{T0}, s{T1}
    v_lshlrev_b32 v{VT+1}, 3, v{VT}
    """)
    for ct in range(2):
        for aa in range(4):
            k = ct*4+aa
            a(f"buffer_load_dwordx2 {vr(Y+2*k,2)}, v{VT+1}, s[{SX}:{SX+3}], s{T0} offen offset:{ct*64+aa*16}")
    a(f"""
    s_load_dwordx2 s[{SX}:{SX+1}], s[0:1], 0
    s_lshl_b32 s{T1}, s{S_MT}, 7
    s_lshl_b32 s{T2}, s{S_TG4}, 5
    s_add_u32 s{T1}, s{T1}, s{T2}
    v_lshrrev_b32 v{VT+1}, 3, v{VL}
    v_add_u32 v{VT+1}, s{T1}, v{VT+1}
    v_lshlrev_b32 v{VT+1}, 11, v{VT+1}
    v_and_b32 v{VT+2}, 7, v{VL}
    v_lshl_add_u32 v{VT+1}, v{VT+2}, 4, v{VT+1}
    v_add_u32 v{VXO}, s{T0}, v{VT+1}
    s_mov_b32 s{T1}, 16384
    s_mov_b32 s{T2}, 32768
    s_mov_b32 s{T3}, 49152
    s_waitcnt lgkmcnt(0)
    s_mov_b32 s{SX+2}, {hx(4*MB)}
    buffer_load_dwordx4 {vr(XR,4)}, v{VXO}, s[{SX}:{SX+3}], 0 offen
    buffer_load_dwordx4 {vr(XR+4,4)}, v{VXO}, s[{SX}:{SX+3}], s{T1} offen
    buffer_load_dwordx4 {vr(XR+8,4)}, v{VXO}, s[{SX}:{SX+3}], s{T2} offen
    buffer_load_dwordx4 {vr(XR+12,4)}, v{VXO}, s[{SX}:{SX+3}], s{T3} offen
    .Lk4_nob:
    """)
    def dma(sw_check, lab=None):
        s = []
        if sw_check:
            s.append(f"s_cmp_eq_u32 s{S_DST}, 56\n s_cbranch_scc0 {lab}")
            s.append(f"s_mov_b32 s{SB}, s{S_WO}\n s_mov_b32 s{SB+1}, s{S_WO+1}\n s_mov_b32 s{SB+2}, {hx(2*MB)}\n s_mov_b32 s{S_BO}, 0")
            s.append(f"{lab}:")
        s.append(f"s_cmp_lt_u32 s{S_DST}, s{S_END}")
        s.append(f"s_cselect_b32 s{T0}, s{S_AO}, s{S_BG}")
        s.append(f"s_cselect_b32 s{T1}, s{S_BO}, s{S_BG}")
        s.append(f"s_add_u32 m0, s{S_SW}, s{S_M0}")
        s.append(f"s_add_u32 s{S_AO}, s{S_AO}, 16384")
        s.append(f"buffer_load_dwordx4 v{VDB0}, s[{SB}:{SB+3}], s{T1} offen lds")
        p = ["\n".join(s)]
        p.append(f"buffer_load_dwordx4 v{VDB1}, s[{SB}:{SB+3}], s{T1} offen offset:1024 lds")
        p.append(f"buffer_load_dwordx4 v{VDA}, s[{SA}:{SA+3}], s{T0} offen offset:2048 lds")
        p.append(f"""buffer_load_dwordx4 v{VDA}, s[{SA}:{SA+3}], s{T0} offen offset:3072 lds
        s_add_u32 s{S_BO}, s{S_BO}, {64*2048}
        s_add_u32 s{S_DST}, s{S_DST}, 1
        s_add_u32 s{S_SW}, s{S_SW}, 32768
        s_cmp_ge_u32 s{S_SW}, {32768*D}
        s_cselect_b32 s{S_SW}, 0, s{S_SW}""")
        return p
    for d in range(D):
        for t in dma(False): a(t)
    a(f"""
    s_cmp_eq_u32 s{S_KH}, 0
    s_cbranch_scc1 .Lk4_z
    s_waitcnt vmcnt({4*D+4})
    s_mov_b32 s{T0}, 0xffff0000
    """)
    for k in range(16):
        a(f"v_lshlrev_b32 v{ACCM+2*k}, 16, v{Y+k}")
        a(f"v_and_b32 v{ACCM+2*k+1}, s{T0}, v{Y+k}")
    for k in range(32):
        a(f"v_mov_b32 v{ACCS+k}, 0")
    a("s_branch .Lk4_i\n .Lk4_z:")
    for k in range(32):
        a(f"v_mov_b32 v{ACCM+k}, 0")
    a(".Lk4_i:")
    def reads(b, blk):
        r = []
        for s in range(2):
            for ct in range(2):
                w = b + 8 + (s*2+ct)*4
                for hf in range(2):
                    r.append(f"ds_read_b64_tr_b16 {vr(w+2*hf,2)}, v{VW1 if ct else VW0} offset:{(4*blk+s+2*hf)*4096}")
                if ct == 0:
                    r.append(f"ds_read_b128 {vr(b+4*s,4)}, v{VTOK} offset:{(4*blk+2*s)*4096+2048}")
        return r
    def mf(b, acc):
        return [mf32(acc+16*ct, b+8+(s*2+ct)*4, b+4*s, acc+16*ct) for s in range(2) for ct in range(2)]
    a(f"s_waitcnt vmcnt({4*(D-1)})\n s_barrier")
    for t in reads(X, 0): a(t)
    def loop(tag, acc, sw):
        a(f".Lk4_{tag}:")
        for t in reads(Y, 1): a(t)
        a("s_waitcnt lgkmcnt(10)")
        for t in mf(X, acc): a(t)
        a(f"""
        s_add_u32 s{S_SR}, s{S_SR}, 32768
        s_cmp_ge_u32 s{S_SR}, {32768*D}
        s_cselect_b32 s{S_SR}, 0, s{S_SR}
        s_waitcnt lgkmcnt(0)
        v_add_u32 v{VTOK}, s{S_SR}, v{VTOKC}
        v_add_u32 v{VW0}, s{S_SR}, v{VW0C}
        v_add_u32 v{VW1}, s{S_SR}, v{VW1C}
        s_waitcnt vmcnt({4*(D-2)})
        s_barrier
        """)
        for t in reads(X, 0): a(t)
        dm = dma(sw, f".Lk4_{tag}_sw")
        m = mf(Y, acc)
        for i in range(4):
            a(m[i]); a(dm[i])
        a(f"""
        s_sub_u32 s{S_N}, s{S_N}, 1
        s_cmp_lg_u32 s{S_N}, 0
        s_cbranch_scc1 .Lk4_{tag}
        """)
    loop("lm", ACCM, True)
    a(f"""
    s_lshl_b32 s{T2}, s{S_TILE}, 16
    s_lshl_b32 s{T3}, s3, 13
    s_add_u32 s{T2}, s{T2}, s{T3}
    s_add_u32 s{T2}, s{T2}, {hx(MP_OFF)}
    s_add_u32 s{T3}, s{T2}, 4096
    s_lshl_b32 s{S_TILE}, s{S_TILE}, 7
    s_add_u32 s{S_TILE}, s{S_TILE}, {hx(FLG_OFF)}
    v_lshlrev_b32 v{VT}, 4, v{VL}
    s_cmp_eq_u32 s{S_KH}, 0
    s_cbranch_scc0 .Lk4_p1
    """)
    stamp(a, 1, 2, SWS, 144, 56)
    a("s_nop 15\n s_nop 3")
    for i in range(8):
        a(f"buffer_store_dwordx4 {vr(ACCM+4*i,4)}, v{VT}, s[{SWS}:{SWS+3}], s{T2 if i<4 else T3} offen offset:{(i&3)*1024} sc1")
    a(f"""
    s_waitcnt vmcnt(0) lgkmcnt(0)
    s_barrier
    s_cmp_lg_u32 s3, 0
    s_cbranch_scc1 .Lk4_end
    v_mov_b32 v{VT}, 1
    v_mov_b32 v{VT+1}, 0
    s_mov_b64 exec, 1
    buffer_store_dword v{VT}, v{VT+1}, s[{SWS}:{SWS+3}], s{S_TILE} offen sc1
    s_mov_b64 exec, -1
    """)
    stamp(a, 2, 2, SWS, 144, 56)
    a(f"""
    s_waitcnt vmcnt(0)
    s_branch .Lk4_end
    .Lk4_p1:
    s_mov_b32 s{S_N}, 16
    s_mov_b32 s50, s{T2}
    s_mov_b32 s51, s{T3}
    """)
    loop("ls", ACCS, False)
    stamp(a, 1, 2, SWS, 144, 56)
    a(f"""
    s_load_dwordx2 s[{SX}:{SX+1}], s[0:1], 72
    s_waitcnt vmcnt(0)
    s_cmp_lg_u32 s3, 0
    s_cbranch_scc1 .Lk4_polled
    s_mov_b32 s{S_N}, {OPT['spin']}
    v_mov_b32 v{VT+1}, 0
    .Lk4_poll:
    buffer_load_dword v{VT+2}, v{VT+1}, s[{SWS}:{SWS+3}], s{S_TILE} offen sc1
    s_waitcnt vmcnt(0)
    v_readfirstlane_b32 s{T0}, v{VT+2}
    s_sub_u32 s{S_N}, s{S_N}, 1
    s_cmp_eq_u32 s{S_N}, 0
    s_cbranch_scc1 .Lk4_polled
    s_cmp_eq_u32 s{T0}, 0
    s_cbranch_scc1 .Lk4_poll
    .Lk4_polled:
    s_waitcnt lgkmcnt(0)
    s_barrier
    """)
    stamp(a, 2, 2, SWS, 144, 56)
    PB = 64
    for i in range(8):
        a(f"buffer_load_dwordx4 {vr(PB+4*i,4)}, v{VT}, s[{SWS}:{SWS+3}], s{50 if i<4 else 51} offen offset:{(i&3)*1024} sc1")
    VWR, VRD = VT+1, VT+2
    a(f"""
    s_mul_i32 s{T0}, s3, 4608
    v_and_b32 v{VWR}, 31, v{VL}
    v_mul_u32_u24 v{VWR}, 144, v{VWR}
    v_lshrrev_b32 v{VT+3}, 5, v{VL}
    v_lshl_add_u32 v{VWR}, v{VT+3}, 3, v{VWR}
    v_add_u32 v{VWR}, s{T0}, v{VWR}
    v_lshrrev_b32 v{VRD}, 3, v{VL}
    v_mul_u32_u24 v{VRD}, 144, v{VRD}
    v_and_b32 v{VT+3}, 7, v{VL}
    v_lshl_add_u32 v{VRD}, v{VT+3}, 4, v{VRD}
    v_add_u32 v{VRD}, s{T0}, v{VRD}
    s_mov_b32 s{T0}, {hx(f2u(-LOG2E))}
    s_mov_b32 s{T1}, 16384
    s_mov_b32 s{T2}, 32768
    s_mov_b32 s{T3}, 49152
    s_mov_b32 s52, 0xffff0000
    """)
    TM = 96
    for i in range(0, 8, 2):
        a(f"s_waitcnt vmcnt({6-i})")
        n = 8
        m = [ACCM+4*i+k for k in range(n)]
        p = [PB+4*i+k for k in range(n)]
        s_ = [ACCS+4*i+k for k in range(n)]
        t = [TM+k for k in range(n)]
        for k in range(n): a(f"v_add_f32 v{m[k]}, v{m[k]}, v{p[k]}")
        for k in range(n): a(f"v_mul_f32 v{t[k]}, s{T0}, v{m[k]}")
        for k in range(n): a(f"v_exp_f32 v{t[k]}, v{t[k]}")
        for k in range(n): a(f"v_mul_f32 v{m[k]}, v{m[k]}, v{s_[k]}")
        for k in range(n): a(f"v_add_f32 v{t[k]}, 1.0, v{t[k]}")
        for k in range(n): a(f"v_rcp_f32 v{t[k]}, v{t[k]}")
        a("s_nop 0")
        for k in range(n): a(f"v_mul_f32 v{m[k]}, v{m[k]}, v{t[k]}")
        pk = TM + 8 + (i & 2)*2
        for k in range(4): a(f"v_cvt_pk_bf16_f32 v{pk+k}, v{m[2*k]}, v{m[2*k+1]}")
        for k in range(2):
            ii = i + k
            a(f"ds_write_b64 v{VWR}, {vr(pk+2*k,2)} offset:{(ii>>2)*64+(ii&3)*16}")
    a("s_waitcnt lgkmcnt(0)")
    for i in range(4):
        a(f"ds_read_b128 {vr(PB+4*i,4)}, v{VRD} offset:{i*1152}")
    so = ["0", f"s{T1}", f"s{T2}", f"s{T3}"]
    for i in range(4):
        a(f"s_waitcnt lgkmcnt({3-i})")
        for k in range(4):
            y = PB+4*i+k; x = XR+4*i+k; t = TM + 4*(k & 3)
            a(f"v_lshlrev_b32 v{t}, 16, v{y}")
            a(f"v_and_b32 v{t+1}, s52, v{y}")
            a(f"v_lshlrev_b32 v{t+2}, 16, v{x}")
            a(f"v_and_b32 v{t+3}, s52, v{x}")
            a(f"v_add_f32 v{t}, v{t}, v{t+2}")
            a(f"v_add_f32 v{t+1}, v{t+1}, v{t+3}")
            a(f"v_cvt_pk_bf16_f32 v{y}, v{t}, v{t+1}")
        a(f"buffer_store_dwordx4 {vr(PB+4*i,4)}, v{VXO}, s[{SX}:{SX+3}], {so[i]} offen")
    stamp(a, 3, 2, SWS, 144, 56)
    a("s_waitcnt vmcnt(0)")
    a(".Lk4_end:")
    return a.text()

def build(path):
    import k4b
    k4b.G.OPT.update(OPT)
    ks = [("ln_kernel", k1(), 40, 40, 48),
          ("mid_kernel", k2(), 256, 256, 96),
          ("fin_kernel", k4(), 152, 152, 64) if OPT.get("k4v", 2) == 1 else ("fin_kernel", k4b.k4(), 208, 208, 96)]
    if FU():
        ks = [ks[0], ("mid_kernel", ks[1][1] + ks[2][1], 256, 256, 96)]
    ks = [(l, hazard.fix(b, OPT.get("v", 0)), x, y, z) for (l, b, x, y, z) in ks]
    ls = [("ln_kernel", (512,1,1), (256,1,1), 0),
          ("mid_kernel", (256,1,1), (512,1,1), K2_LDS),
          ("fin_kernel", (256,1,1), (512,1,1), 32768*OPT["k4_depth"] if OPT.get("k4v", 2) == 1 else k4b.K4_LDS)]
    if FU():
        ls = [ls[0], ("mid_kernel", (256,1,1), (512,1,1), k4b.K4_LDS)]
    import re
    for (l, b, nv, acc, ns) in ks:
        mv = max([int(x) for x in re.findall(r"\bv(\d+)\b", b)] + [int(x) for x in re.findall(r"\bv\[\d+:(\d+)\]", b)])
        ms = max([int(x) for x in re.findall(r"\bs(\d+)\b", b)] + [int(x) for x in re.findall(r"\bs\[\d+:(\d+)\]", b)])
        assert mv < nv and ms < ns, (l, mv, ms)
    open(path, "w").write(build_file(ks, ls))

if __name__ == "__main__":
    out = sys.argv[1]
    for kv in sys.argv[2:]:
        k, v = kv.split("=")
        OPT[k] = int(v)
    build(out)
```

```python
import sys, struct, math
from asmlib import *
import hazard

MB = 1 << 20
XN_OFF = 0
HO_OFF = 8 * MB
KVP_OFF = 32 * MB
ZP_OFF = 36 * MB
MP_OFF = 40 * MB
FLG_OFF = 48 * MB
TS_OFF = 200 * MB
BIG = 0x10000000
LOG2E = 1.4426950408889634

def f2u(x):
    return struct.unpack("<I", struct.pack("<f", x))[0]
def hx(x):
    return "0x%08x" % (x & 0xffffffff)
def vr(b, n):
    return f"v[{b}:{b+n-1}]" if n > 1 else f"v{b}"

OPT = dict(stamp=False, k4_depth=4, k4_n0=36, spin=200000)

def srd(a, d, ptr, size):
    if ptr != d:
        a(f"s_mov_b32 s{d}, s{ptr}")
        a(f"s_mov_b32 s{d+1}, s{ptr+1}")
    a(f"s_mov_b32 s{d+2}, {hx(size)}")
    a(f"s_mov_b32 s{d+3}, 0x00020000")

def stamp(a, idx, kern, srdws, vt, st):
    if not OPT["stamp"]:
        return
    a(f"s_memtime s[{st}:{st+1}]")
    a(f"s_memrealtime s[{st+2}:{st+3}]")
    a(f"s_lshl_b32 s{st+4}, s2, 3")
    a(f"s_add_u32 s{st+4}, s{st+4}, s3")
    a(f"s_lshl_b32 s{st+4}, s{st+4}, 8")
    a(f"s_add_u32 s{st+4}, s{st+4}, {hx(TS_OFF + kern*2*MB + idx*16)}")
    a("s_waitcnt lgkmcnt(0)")
    for k in range(4):
        a(f"v_mov_b32 v{vt+k}, s{st+k}")
    a(f"v_mov_b32 v{vt+4}, 0")
    a(f"buffer_store_dwordx4 v[{vt}:{vt+3}], v{vt+4}, s[{srdws}:{srdws+3}], s{st+4} offen")

def wave_sum(a, v, t):
    for m in ["quad_perm:[1,0,3,2]", "quad_perm:[2,3,0,1]", "row_half_mirror", "row_mirror"]:
        a("s_nop 1")
        a(f"v_add_f32_dpp v{v}, v{v}, v{v} {m} row_mask:0xf bank_mask:0xf")
    for op in ["v_permlane16_swap_b32", "v_permlane32_swap_b32"]:
        a(f"v_mov_b32 v{t}, v{v}")
        a("s_nop 1")
        a(f"{op} v{v}, v{t}")
        a("s_nop 1")
        a(f"v_add_f32 v{v}, v{v}, v{t}")

def k1():
    a = Asm()
    a(f"""
    s_cmp_ge_u32 s2, 512
    s_cbranch_scc1 .Lk1_end
    s_load_dwordx2 s[4:5], s[0:1], 0
    s_load_dwordx2 s[8:9], s[0:1], 88
    v_lshrrev_b32 v1, 6, v0
    v_and_b32 v2, 63, v0
    s_lshl_b32 s3, s2, 2
    v_add_u32 v1, s3, v1
    v_lshlrev_b32 v1, 11, v1
    v_lshl_add_u32 v1, v2, 4, v1
    s_mov_b32 s6, {hx(4*MB)}
    s_mov_b32 s7, 0x00020000
    s_mov_b32 s10, {hx(256*MB)}
    s_mov_b32 s11, 0x00020000
    s_mov_b32 s12, 0xffff0000
    s_waitcnt lgkmcnt(0)
    buffer_load_dwordx4 v[4:7], v1, s[4:7], 0 offen
    buffer_load_dwordx4 v[8:11], v1, s[4:7], 0 offen offset:1024
    v_lshrrev_b32 v2, 6, v0
    v_readfirstlane_b32 s3, v2
    """)
    stamp(a, 0, 0, 8, 32, 16)
    pf = OPT.get("pf1", 0)
    npf = 0
    if pf:
        a(f"""
        s_lshl_b32 s13, s2, 2
        s_add_u32 s13, s13, s3
        v_and_b32 v2, 63, v0
        v_lshlrev_b32 v2, 6, v2
        """)
        for bit, (ka, nb) in enumerate([(8, 1024*6144), (40, 1024*7168), (56, 3584*2048), (24, 2*MB)]):
            if pf >> bit & 1:
                r = 24 + 4*bit
                frac = OPT.get("pf1_frac", 1) if bit < 2 else 1
                per = nb // 2048 // frac
                a(f"""
                s_load_dwordx2 s[{r}:{r+1}], s[0:1], {ka}
                s_mov_b32 s{r+2}, {hx(nb)}
                s_mov_b32 s{r+3}, 0x00020000
                s_mul_i32 s14, s13, {per}
                v_cmp_gt_u32 vcc, {per}, v2
                s_waitcnt lgkmcnt(0)
                s_and_saveexec_b64 s[16:17], vcc
                buffer_load_dword v{36+bit}, v2, s[{r}:{r+3}], s14 offen
                s_mov_b64 exec, s[16:17]
                """)
                npf += 1
    a(f"s_waitcnt vmcnt({npf})")
    for i in range(8):
        a(f"v_lshlrev_b32 v{12+2*i}, 16, v{4+i}")
        a(f"v_and_b32 v{13+2*i}, s12, v{4+i}")
    for i in range(8):
        a(f"v_add_f32 v{28+i}, v{12+2*i}, v{13+2*i}")
    for i in range(4):
        a(f"v_add_f32 v{28+i}, v{28+i}, v{32+i}")
    a("v_add_f32 v28, v28, v30\n v_add_f32 v29, v29, v31\n v_add_f32 v28, v28, v29")
    wave_sum(a, 28, 29)
    a(f"v_mul_f32 v28, {hx(f2u(1.0/1024))}, v28")
    for i in range(16):
        a(f"v_sub_f32 v{12+i}, v{12+i}, v28")
    for i in range(4):
        a(f"v_mul_f32 v{30+i}, v{12+i}, v{12+i}")
    for i in range(4, 16):
        a(f"v_fmac_f32 v{30+(i&3)}, v{12+i}, v{12+i}")
    a("v_add_f32 v30, v30, v32\n v_add_f32 v31, v31, v33\n v_add_f32 v30, v30, v31")
    wave_sum(a, 30, 31)
    a(f"v_mov_b32 v31, {hx(f2u(1e-5))}")
    a(f"v_fmac_f32 v31, {hx(f2u(1.0/1024))}, v30")
    a("v_rsq_f32 v31, v31")
    a("s_nop 0")
    for i in range(16):
        a(f"v_mul_f32 v{12+i}, v{12+i}, v31")
    for i in range(8):
        a(f"v_cvt_pk_bf16_f32 v{4+i}, v{12+2*i}, v{13+2*i}")
    a("""
    buffer_store_dwordx4 v[4:7], v1, s[8:11], 0 offen
    buffer_store_dwordx4 v[8:11], v1, s[8:11], 0 offen offset:1024
    """)
    a(f"""
    s_cmp_ge_u32 s2, 296
    s_cbranch_scc1 .Lk1_noflag
    s_cmp_lg_u32 s3, 0
    s_cbranch_scc1 .Lk1_noflag
    v_lshlrev_b32 v2, 2, v0
    s_mov_b64 exec, 15
    s_lshl_b32 s13, s2, 7
    s_add_u32 s13, s13, {hx(FLG_OFF)}
    v_mov_b32 v3, 0
    buffer_store_dword v3, v2, s[8:11], s13 offen
    s_mov_b64 exec, -1
    .Lk1_noflag:
    s_waitcnt vmcnt(0)
    """)
    stamp(a, 1, 0, 8, 32, 16)
    a("""
    s_waitcnt vmcnt(0)
    .Lk1_end:
    """)
    return a.text()

BRING = 98304
SLOTB_M = 14464
SLOTB_A = 12288
WPHI_L = 147456
K2_LDS = 156160

S_W = 3
SRD_A = 4
SRD_B = 8
SRD_WS = 12
SRD_T = 16
S_I = 20
S_JN = 21
S_TG = 22
S_CH = 23
S_CUR, S_NXT, S_PRV = 24, 25, 26
S_BPAR = 27
S_AROW = 28
S_KA = 29
S_BOFF = 30
S_M0A = 31
S_M0B = 32
S_CNT = 33
S_BIG = 34
S_T0, S_T1, S_T2, S_T3 = 36, 37, 38, 39
S_EXB = 40
S_ST = 56
S_C0, S_C1 = 48, 49

class Pipe:
    pass

def k2_dma_A(a, vA, half, slot_sreg, ks_expr_add):
    ins = []
    pre = []
    pre.append(f"s_add_u32 s{S_T0}, s{S_KA}, {ks_expr_add}")
    pre.append(f"s_cmp_lt_u32 s{S_T0}, 2048")
    pre.append(f"s_cselect_b32 s{S_T1}, s{S_AROW}, s{S_BIG}")
    pre.append(f"s_add_u32 s{S_T0}, s{S_T0}, s{S_T1}")
    if half:
        pre.append(f"s_add_u32 s{S_T0}, s{S_T0}, 262144")
    pre.append(f"s_add_u32 s{S_T1}, s{slot_sreg}, s{S_M0A}")
    pre.append(f"s_add_u32 m0, s{S_T1}, {16384*half}")
    pre.append("s_nop 0")
    ins.append("\n".join(pre) + f"\nbuffer_load_dwordx4 v{vA}, s[{SRD_A}:{SRD_A+3}], s{S_T0} offen lds")
    ins.append(f"buffer_load_dwordx4 v{vA+1}, s[{SRD_A}:{SRD_A+3}], s{S_T0} offen offset:1024 lds")
    return ins

SRD_PF = 64
SRD_PF2 = 68
S_PF, S_PFS, S_PFS2 = 72, 73, 74
V_PF, V_PF2, V_PFD = 253, 254, 255
def k2_dma_B(a, vB, slot_add, e1off, rowbytes, pf=1):
    s = []
    s.append(f"s_add_u32 s{S_T1}, s{S_M0B}, s{S_BPAR}")
    s.append(f"s_add_u32 m0, s{S_T1}, {slot_add}")
    s.append(f"s_mov_b64 exec, s[{S_EXB}:{S_EXB+1}]")
    s.append(f"buffer_load_dwordx4 v{vB}, s[{SRD_B}:{SRD_B+3}], s{S_BOFF} offen lds")
    s.append(f"buffer_load_dwordx4 v{vB+1}, s[{SRD_B}:{SRD_B+3}], s{S_BOFF} offen offset:{e1off} lds")
    if OPT.get("pf2", 0):
        if pf:
            s.append(f"buffer_load_dword v{V_PFD}, v{V_PF}, s[{SRD_PF}:{SRD_PF+3}], s{S_PF} offen")
            s.append(f"s_add_u32 s{S_PF}, s{S_PF}, s{S_PFS}")
        else:
            s.append(f"buffer_load_dword v{V_PFD}, v{V_PF}, s[{SRD_PF}:{SRD_PF+3}], s{S_BIG} offen")
    s.append("s_mov_b64 exec, -1")
    s.append(f"s_add_u32 s{S_BOFF}, s{S_BOFF}, {32*rowbytes}")
    return ["\n".join(s)]

def interleave(a, mf, fill, npre, pre_bar):
    for m in mf[:npre]:
        a(m)
    a(pre_bar)
    rest = mf[npre:]
    for p, t in fill:
        if p < 0:
            a(t)
    for i, m in enumerate(rest):
        a(m)
        for p, t in fill:
            if p == i:
                a(t)
    for p, t in fill:
        if p >= len(rest):
            a(t)

def k2_main(a, tag, mfmas, reads, upd, vDA, vDB, slotb, e1off, rowbytes, npre, rpos, dpos):
    a(f"s_mov_b32 s{S_KA}, 0\n s_mov_b32 s{S_BPAR}, 0")
    for t in k2_dma_A(a, vDA, 0, S_CUR, 0): a(t)
    for t in k2_dma_A(a, vDA, 1, S_CUR, 0): a(t)
    npro = OPT.get("pf2_pro", 0)
    PFX = 1 if OPT.get("pf2", 0) else 0
    for t in k2_dma_B(a, vDB, 0, e1off, rowbytes, npro >= 4): a(t)
    for t in k2_dma_A(a, vDA, 0, S_NXT, 128): a(t)
    for t in k2_dma_B(a, vDB, slotb, e1off, rowbytes, npro >= 3): a(t)
    for t in k2_dma_A(a, vDA, 1, S_NXT, 128): a(t)
    for t in k2_dma_B(a, vDB, 2*slotb, e1off, rowbytes, npro >= 2): a(t)
    for t in k2_dma_A(a, vDA, 0, S_PRV, 256): a(t)
    for t in k2_dma_B(a, vDB, 3*slotb, e1off, rowbytes, npro >= 1): a(t)
    a(f"s_mov_b32 s{S_KA}, 256")
    yield "prologue"
    a(f"s_waitcnt vmcnt({12+3*PFX})\n s_barrier")
    for t in reads(0, 0, 0): a(t)
    a(f"s_mov_b32 s{S_CNT}, 16")
    a(f".Lk2_{tag}_loop:")
    a("s_waitcnt lgkmcnt(0)")
    rd = reads(1, 1, slotb)
    dm = k2_dma_A(a, vDA, 1, S_PRV, 0) + k2_dma_B(a, vDB, 0, e1off, rowbytes)
    if OPT.get("k2_nodma", 0): dm = []
    if OPT.get("k2_noread", 0): rd = []
    fill = [(rpos(i), t) for i, t in enumerate(rd)] + [(dpos[i], t) for i, t in enumerate(dm)]
    interleave(a, mfmas(0), fill, npre, f"s_waitcnt vmcnt({8+2*PFX})\n s_barrier")
    a("s_waitcnt lgkmcnt(0)")
    rd = reads(0, 0, 0)
    dm = k2_dma_A(a, vDA, 0, S_CUR, 128) + k2_dma_B(a, vDB, slotb, e1off, rowbytes)
    if OPT.get("k2_nodma", 0): dm = []
    if OPT.get("k2_noread", 0): rd = []
    fill = [(rpos(i), t) for i, t in enumerate(rd)] + [(dpos[i], t) for i, t in enumerate(dm)]
    interleave(a, mfmas(1), fill, npre, upd + f"\n s_waitcnt vmcnt({8+2*PFX})\n s_barrier")
    if PFX:
        a(f"""
        s_cmp_lg_u32 s{S_CNT}, {OPT.get("pf2_sw", 11)}
        s_cbranch_scc1 .Lk2_{tag}_nosw
        s_mov_b32 s{SRD_PF}, s{SRD_PF2}
        s_mov_b32 s{SRD_PF+1}, s{SRD_PF2+1}
        s_mov_b32 s{SRD_PF+2}, s{SRD_PF2+2}
        s_mov_b32 s{S_PF}, 0
        s_mov_b32 s{S_PFS}, s{S_PFS2}
        v_mov_b32 v{V_PF}, v{V_PF2}
        .Lk2_{tag}_nosw:
        """)
    a(f"""
    s_xor_b32 s{S_BPAR}, s{S_BPAR}, {2*slotb}
    s_mov_b32 s{S_T0}, s{S_CUR}
    s_mov_b32 s{S_CUR}, s{S_NXT}
    s_mov_b32 s{S_NXT}, s{S_PRV}
    s_mov_b32 s{S_PRV}, s{S_T0}
    s_add_u32 s{S_KA}, s{S_KA}, 128
    s_sub_u32 s{S_CNT}, s{S_CNT}, 1
    s_cmp_lg_u32 s{S_CNT}, 0
    s_cbranch_scc1 .Lk2_{tag}_loop
    """)
    yield "done"

def k2_pf_setup(a, VL, VT, own_ka, own_nb, rowbytes, nl, ka2, nb2, att):
    if not OPT.get("pf2", 0): return
    r0 = OPT.get("pf2_r0", 256) - 64*OPT.get("pf2_pro", 0)
    a(f"""
    s_load_dwordx2 s[{SRD_PF}:{SRD_PF+1}], s[0:1], {own_ka}
    s_load_dwordx2 s[{SRD_PF2}:{SRD_PF2+1}], s[0:1], {ka2}
    s_mov_b32 s{SRD_PF+2}, {hx(own_nb)}
    s_mov_b32 s{SRD_PF+3}, 0x00020000
    s_mov_b32 s{SRD_PF2+2}, {hx(nb2)}
    s_mov_b32 s{SRD_PF2+3}, 0x00020000
    s_mov_b32 s{S_PF}, {hx(r0*rowbytes)}
    s_mov_b32 s{S_PFS}, {hx(64*rowbytes)}
    s_mov_b32 s{S_PFS2}, {hx(1024*nl*64)}
    s_lshl_b32 s{S_T0}, s{S_I}, 3
    s_add_u32 s{S_T0}, s{S_T0}, s{S_W}
    s_lshl_b32 s{S_T1}, s{S_JN}, 6
    s_add_u32 s{S_T1}, s{S_T1}, s{S_T0}
    s_mul_i32 s{S_T1}, s{S_T1}, {nl*64}
    s_mul_i32 s{S_T0}, s{S_T0}, {rowbytes}
    s_mul_i32 s{S_T2}, s{S_JN}, {128 if att else 448}
    s_add_u32 s{S_T0}, s{S_T0}, s{S_T2}
    v_lshlrev_b32 v{VT}, 6, v{VL}
    v_add_u32 v{V_PF2}, s{S_T1}, v{VT}
    """)
    if att:
        a(f"""
        v_lshrrev_b32 v{VT}, 1, v{VL}
        v_lshlrev_b32 v{VT}, 11, v{VT}
        v_and_b32 v{VT+1}, 1, v{VL}
        v_lshl_add_u32 v{VT}, v{VT+1}, 6, v{VT}
        """)
    a(f"""
    v_add_u32 v{V_PF}, s{S_T0}, v{VT}
    v_mov_b32 v{VT}, s{S_BIG}
    v_cmp_gt_u32 vcc, {nl}, v{VL}
    v_cndmask_b32 v{V_PF}, v{VT}, v{V_PF}, vcc
    v_cndmask_b32 v{V_PF2}, v{VT}, v{V_PF2}, vcc
    """)

def FU(): return OPT.get("fuse", 0)
def SC(): return " sc1" if FU() else ""
def MAPJN():
    if FU() or OPT.get("remap", 0):
        return f"""s_lshr_b32 s{S_JN}, s{S_T0}, 1
        s_lshl_b32 s{S_JN}, s{S_JN}, 2
        s_add_u32 s{S_JN}, s{S_JN}, s{S_T1}
        s_and_b32 s{S_T3}, s{S_T0}, 1"""
    return f"""s_lshl_b32 s{S_JN}, s{S_T0}, 1
    s_lshr_b32 s{S_T2}, s{S_T1}, 1
    s_add_u32 s{S_JN}, s{S_JN}, s{S_T2}
    s_and_b32 s{S_T3}, s{S_T1}, 1"""
S_SIG = 84
def DYN():
    if OPT.get("scr", 0):
        return f"""s_and_b32 s{S_T0}, s2, 7
        s_lshl_b32 s{S_T0}, s{S_T0}, 5
        s_lshr_b32 s2, s2, 3
        s_or_b32 s2, s2, s{S_T0}"""
    if not OPT.get("dyn", 0): return ""
    return f"""v_mov_b32 v2, {163840-4}
    s_cmp_lg_u32 s{S_W}, 0
    s_cbranch_scc1 .Ldyn_wait
    s_getreg_b32 s{S_T0}, hwreg(HW_REG_XCC_ID, 0, 3)
    s_mov_b32 s{S_T3}, 0
    v_mov_b32 v3, 0
    s_mov_b64 exec, 1
    s_waitcnt lgkmcnt(0)
    .Ldyn_loop:
    s_lshl_b32 s{S_T1}, s{S_T0}, 7
    s_add_u32 s{S_T1}, s{S_T1}, {hx(FLG_OFF + 288*128)}
    v_mov_b32 v1, 1
    buffer_atomic_add v1, v3, s[{SRD_WS}:{SRD_WS+3}], s{S_T1} offen sc0 sc1
    s_waitcnt vmcnt(0)
    v_readfirstlane_b32 s{S_T2}, v1
    s_cmp_lt_u32 s{S_T2}, 32
    s_cbranch_scc1 .Ldyn_got
    s_add_u32 s{S_T0}, s{S_T0}, 1
    s_and_b32 s{S_T0}, s{S_T0}, 7
    s_add_u32 s{S_T3}, s{S_T3}, 1
    s_cmp_lt_u32 s{S_T3}, 8
    s_cbranch_scc1 .Ldyn_loop
    .Ldyn_got:
    s_lshl_b32 s{S_T2}, s{S_T2}, 3
    s_or_b32 s{S_T2}, s{S_T2}, s{S_T0}
    s_and_b32 s{S_T2}, s{S_T2}, 255
    v_mov_b32 v1, s{S_T2}
    ds_write_b32 v2, v1
    s_mov_b64 exec, -1
    s_waitcnt lgkmcnt(0)
    .Ldyn_wait:
    s_barrier
    ds_read_b32 v1, v2
    s_waitcnt lgkmcnt(0)
    v_readfirstlane_b32 s2, v1
    s_nop 3"""
def k4_early(a, VL, tag):
    if not FU(): return
    n0 = OPT.get("n0", 26)
    VB, VT = 176, 180
    a(f"""
    s_cmp_lt_u32 s3, 4
    s_cbranch_scc1 .Lk4e_{tag}
    s_load_dwordx2 s[76:77], s[0:1], 56
    s_mov_b32 s78, {hx(3584*2048)}
    s_mov_b32 s79, 0x00020000
    s_and_b32 s80, s2, 4
    s_lshr_b32 s81, s2, 6
    s_add_u32 s80, s80, s81
    s_and_b32 s82, s2, 1
    s_mul_i32 s82, s82, {n0*131072}
    s_and_b32 s81, s3, 3
    s_lshl_b32 s83, s81, 12
    s_add_u32 s83, s83, 16384
    v_lshrrev_b32 v{VT}, 4, v{VL}
    v_and_b32 v{VT+1}, 15, v{VL}
    v_lshlrev_b32 v{VT+2}, 1, v{VT}
    v_xor_b32 v{VT+1}, v{VT+1}, v{VT+2}
    s_lshl_b32 s81, s81, 4
    v_add_u32 v{VT}, s81, v{VT}
    v_lshlrev_b32 v{VT}, 11, v{VT}
    v_lshl_add_u32 v{VT}, v{VT+1}, 4, v{VT}
    s_lshl_b32 s80, s80, 8
    v_add_u32 v{VB}, s80, v{VT}
    v_xor_b32 v{VB+1}, 128, v{VB}
    v_add_u32 v{VB+2}, {2*(8192-1024)}, v{VB}
    v_add_u32 v{VB+3}, {3*(8192-1024)}, v{VB+1}
    v_add_u32 v{VB+1}, {8192-1024}, v{VB+1}
    s_waitcnt lgkmcnt(0)
    """)
    for sl in range(5):
        a(f"s_add_u32 m0, s83, {sl*32768}")
        for i in range(4):
            a(f"buffer_load_dwordx4 v{VB+i}, s[76:79], s82 offen offset:{i*1024} lds")
        a("s_add_u32 s82, s82, 131072")
    a(f".Lk4e_{tag}:")

def k2():
    a = Asm()
    VL = 240
    VT = 241
    a(f"""
    s_cmp_ge_u32 s2, 256
    s_cbranch_scc1 {'.Lk4_end' if FU() else '.Lk2_end'}
    s_load_dwordx2 s[{SRD_A}:{SRD_A+1}], s[0:1], 88
    s_load_dwordx2 s[{SRD_WS}:{SRD_WS+1}], s[0:1], 88
    v_lshrrev_b32 v1, 6, v0
    v_and_b32 v{VL}, 63, v0
    v_readfirstlane_b32 s{S_W}, v1
    s_mov_b32 s{SRD_WS+2}, {hx(256*MB)}
    s_mov_b32 s{SRD_WS+3}, 0x00020000
    {DYN()}
    s_and_b32 s{S_T0}, s2, 7
    s_lshr_b32 s{S_T1}, s2, 3
    s_and_b32 s{S_I}, s{S_T1}, 7
    s_lshr_b32 s{S_T1}, s{S_T1}, 3
    {MAPJN()}
    s_and_b32 s{S_TG}, s{S_W}, 3
    s_lshr_b32 s{S_CH}, s{S_W}, 2
    s_mov_b32 s{S_CUR}, 0
    s_mov_b32 s{S_NXT}, 32768
    s_mov_b32 s{S_PRV}, 65536
    s_lshl_b32 s{S_AROW}, s{S_I}, 19
    s_mov_b32 s{S_BOFF}, 0
    s_lshl_b32 s{S_M0A}, s{S_W}, 11
    s_mov_b32 s{S_BIG}, {hx(BIG)}
    s_mov_b32 s{SRD_A+2}, {hx(4*MB)}
    s_mov_b32 s{SRD_A+3}, 0x00020000
    """)
    VDA, VDB = 236, 238
    a(f"""
    v_lshrrev_b32 v{VT}, 3, v{VL}
    s_lshl_b32 s{S_T0}, s{S_W}, 4
    v_add_u32 v{VT}, s{S_T0}, v{VT}
    v_lshlrev_b32 v{VT}, 11, v{VT}
    v_and_b32 v{VT+1}, 7, v{VL}
    v_lshrrev_b32 v{VT+2}, 4, v{VL}
    v_xor_b32 v{VT+1}, v{VT+1}, v{VT+2}
    v_lshl_add_u32 v{VDA}, v{VT+1}, 4, v{VT}
    v_xor_b32 v{VDA+1}, 64, v{VDA}
    v_add_u32 v{VDA+1}, {8*2048-1024}, v{VDA+1}
    """)
    if OPT.get("k2_force", 0): a(f"s_mov_b32 s{S_T3}, {2-OPT['k2_force']}")
    a(f"""
    s_cmp_eq_u32 s{S_T3}, 0
    s_cbranch_scc1 .Lk2_att
    """)
    k2_mlp(a, VL, VT, VDA, VDB)
    a("s_branch .Lk2_end")
    a(".Lk2_att:")
    k2_att(a, VL, VT, VDA, VDB)
    a(".Lk2_end:")
    if FU():
        a(f"""
        s_waitcnt vmcnt(0) lgkmcnt(0)
        s_barrier
        s_cmp_lg_u32 s3, 5
        s_cbranch_scc1 .Lk2_nosig2
        v_mov_b32 v1, 1
        v_mov_b32 v2, 0
        s_mov_b64 exec, 1
        buffer_atomic_add v1, v2, s[{SRD_WS}:{SRD_WS+3}], s{S_SIG} offen sc1
        s_mov_b64 exec, -1
        .Lk2_nosig2:
        """)
    return a.text()

def k2_mlp(a, VL, VT, VDA, VDB):
    SET = [112, 156]
    VA0, VA1, VA0C, VA1C, VB, VBC = 200, 201, 202, 203, 204, 205
    VBIAS = 206
    a(f"""
    s_load_dwordx2 s[{SRD_B}:{SRD_B+1}], s[0:1], 40
    s_load_dwordx2 s[{SRD_T}:{SRD_T+1}], s[0:1], 48
    s_mov_b32 s{SRD_B+2}, {hx(1024*7168)}
    s_mov_b32 s{SRD_B+3}, 0x00020000
    s_mov_b32 s{SRD_T+2}, 7168
    s_mov_b32 s{SRD_T+3}, 0x00020000
    s_mov_b32 s{S_EXB}, -1
    s_mov_b32 s{S_EXB+1}, 0x00ffffff
    """)
    k2_pf_setup(a, VL, VT, 40, 1024*7168, 7168, 7, 56, 3584*2048, False)
    a(f"""
    v_cmp_le_u32 vcc, 28, v{VL}
    v_cndmask_b32 v{VT}, 0, 1, vcc
    v_mul_u32_u24 v{VT+1}, 28, v{VT}
    v_sub_u32 v{VT+1}, v{VL}, v{VT+1}
    v_lshrrev_b32 v{VT+2}, 1, v{VT+1}
    v_and_b32 v{VT+1}, 1, v{VT+1}
    v_add_u32 v{VT+3}, -1, v{VT+2}
    v_cmp_gt_u32 vcc, 6, v{VT+2}
    v_cndmask_b32 v{VT+3}, v{VT+3}, v{VT+2}, vcc
    v_cmp_eq_u32 vcc, 6, v{VT+2}
    v_cndmask_b32 v{VT+3}, v{VT+3}, 12, vcc
    v_cmp_le_u32 vcc, 13, v{VT+2}
    v_cndmask_b32 v{VT+3}, v{VT+3}, 13, vcc
    v_lshlrev_b32 v{VT+3}, 5, v{VT+3}
    v_lshl_add_u32 v{VT+3}, v{VT+1}, 4, v{VT+3}
    s_lshl_b32 s{S_T0}, s{S_W}, 2
    v_add_u32 v{VT}, s{S_T0}, v{VT}
    v_mul_u32_u24 v{VT}, 7168, v{VT}
    v_add_u32 v{VT}, v{VT}, v{VT+3}
    s_mul_i32 s{S_T0}, s{S_JN}, 448
    v_add_u32 v{VDB}, s{S_T0}, v{VT}
    v_add_u32 v{VDB+1}, {2*7168-896}, v{VDB}
    s_mul_i32 s{S_M0B}, s{S_W}, 1792
    s_lshr_b32 s{S_T0}, s{S_W}, 1
    s_lshl_b32 s{S_T0}, s{S_T0}, 5
    s_add_u32 s{S_M0B}, s{S_M0B}, s{S_T0}
    s_add_u32 s{S_M0B}, s{S_M0B}, {BRING}
    """)
    a(f"""
    v_and_b32 v{VT}, 15, v{VL}
    v_lshrrev_b32 v{VT+1}, 1, v{VT}
    v_lshrrev_b32 v{VT+2}, 4, v{VL}
    v_xor_b32 v{VT+1}, v{VT+1}, v{VT+2}
    s_lshl_b32 s{S_T0}, s{S_TG}, 6
    v_add_u32 v{VT}, s{S_T0}, v{VT}
    v_lshlrev_b32 v{VT}, 7, v{VT}
    v_lshl_add_u32 v{VA0C}, v{VT+1}, 4, v{VT}
    v_xor_b32 v{VA1C}, 64, v{VA0C}
    v_mov_b32 v{VA0}, v{VA0C}
    v_mov_b32 v{VA1}, v{VA1C}
    v_bfe_u32 v{VT}, v{VL}, 2, 2
    v_lshl_add_u32 v{VT}, v{VT+2}, 3, v{VT}
    v_mul_u32_u24 v{VT}, 448, v{VT}
    v_lshl_add_u32 v{VT}, v{VT+2}, 5, v{VT}
    v_and_b32 v{VT+1}, 3, v{VL}
    v_lshl_add_u32 v{VT}, v{VT+1}, 3, v{VT}
    s_mul_i32 s{S_T0}, s{S_CH}, 224
    s_add_u32 s{S_T0}, s{S_T0}, {BRING}
    v_add_u32 v{VBC}, s{S_T0}, v{VT}
    v_mov_b32 v{VB}, v{VBC}
    """)
    a(f"""
    s_mul_i32 s{S_T0}, s{S_JN}, 448
    s_mul_i32 s{S_T1}, s{S_CH}, 192
    s_add_u32 s{S_T1}, s{S_T1}, s{S_T0}
    s_lshl_b32 s{S_T2}, s{S_CH}, 5
    s_add_u32 s{S_T2}, s{S_T2}, s{S_T0}
    v_lshlrev_b32 v{VT}, 3, v{VT+2}
    s_waitcnt lgkmcnt(0)
    """)
    stamp(a, 0, 1, SRD_WS, 248, S_ST)
    for c in range(6):
        a(f"buffer_load_dwordx2 v[{VBIAS+2*c}:{VBIAS+2*c+1}], v{VT}, s[{SRD_T}:{SRD_T+3}], s{S_T1} offen offset:{32*c}")
    a(f"buffer_load_dwordx2 v[{VBIAS+12}:{VBIAS+13}], v{VT}, s[{SRD_T}:{SRD_T+3}], s{S_T2} offen offset:384")

    def acc(c, tt): return (c*4+tt)*4
    def mfmas(s):
        b = SET[s]
        return [f"v_mfma_f32_16x16x32_bf16 {vr(acc(c,tt),4)}, {vr(b+16+4*c,4)}, {vr(b+4*tt,4)}, {vr(acc(c,tt),4)}"
                for c in range(7) for tt in range(4)]
    def reads(s, sub, bimm):
        b = SET[s]
        va = VA1 if sub else VA0
        r = []
        def w(c):
            for i in range(2):
                r.append(f"ds_read_b64_tr_b16 {vr(b+16+4*c+2*i,2)}, v{VB} offset:{bimm+i*1792+c*32}")
        w(0)
        for tt in range(4):
            r.append(f"ds_read_b128 {vr(b+4*tt,4)}, v{va} offset:{tt*2048}")
        for c in range(1, 7):
            w(c)
        return r
    upd = f"""
    s_xor_b32 s{S_T2}, s{S_BPAR}, {2*SLOTB_M}
    v_add_u32 v{VA0}, s{S_NXT}, v{VA0C}
    v_add_u32 v{VA1}, s{S_NXT}, v{VA1C}
    v_add_u32 v{VB}, s{S_T2}, v{VBC}
    """
    g = k2_main(a, "mlp", mfmas, reads, upd, VDA, VDB, SLOTB_M, 896, 7168, 4,
                lambda i: i - 1, [18, 20, 22])
    next(g)
    a(f"s_waitcnt vmcnt({22 if OPT.get('pf2', 0) else 18})")
    a(f"s_mov_b32 s{S_T0}, 0xffff0000")
    for c in range(7):
        for j in range(2):
            a(f"v_lshlrev_b32 v{acc(c,0)+2*j}, 16, v{VBIAS+2*c+j}")
            a(f"v_and_b32 v{acc(c,0)+2*j+1}, s{S_T0}, v{VBIAS+2*c+j}")
        for tt in range(1, 4):
            for r in range(4):
                a(f"v_mov_b32 v{acc(c,tt)+r}, v{acc(c,0)+r}")
    next(g)
    stamp(a, 1, 1, SRD_WS, 248, S_ST)
    c0 = -2.0*math.sqrt(2.0/math.pi)*LOG2E
    c1 = c0*0.044715
    a(f"""
    s_mov_b32 s{S_C0}, {hx(f2u(c0))}
    s_mov_b32 s{S_C1}, {hx(f2u(c1))}
    v_mov_b32 v{VT+4}, s{S_C0}
    s_lshl_b32 s{S_T0}, s{S_I}, 1
    s_lshr_b32 s{S_T1}, s{S_TG}, 1
    s_add_u32 s{S_T0}, s{S_T0}, s{S_T1}
    s_mul_i32 s{S_T0}, s{S_T0}, 144
    s_mul_i32 s{S_T1}, s{S_JN}, 7
    s_add_u32 s{S_T0}, s{S_T0}, s{S_T1}
    s_add_u32 s{S_T1}, s{S_T0}, 6
    s_mul_i32 s{S_T2}, s{S_CH}, 3
    s_add_u32 s{S_T0}, s{S_T0}, s{S_T2}
    s_lshl_b32 s{S_T0}, s{S_T0}, 13
    s_lshl_b32 s{S_T1}, s{S_T1}, 13
    s_add_u32 s{S_T0}, s{S_T0}, {hx(HO_OFF)}
    s_add_u32 s{S_T1}, s{S_T1}, {hx(HO_OFF)}
    s_lshl_b32 s{S_T2}, s{S_CH}, 3
    s_add_u32 s{S_T1}, s{S_T1}, s{S_T2}
    v_lshrrev_b32 v{VT}, 4, v{VL}
    v_lshlrev_b32 v{VT}, 11, v{VT}
    v_and_b32 v{VT+1}, 15, v{VL}
    v_lshl_add_u32 v{VT}, v{VT+1}, 4, v{VT}
    s_and_b32 s{S_T2}, s{S_TG}, 1
    s_lshl_b32 s{S_T2}, s{S_T2}, 10
    v_add_u32 v{VT}, s{S_T2}, v{VT}
    s_waitcnt lgkmcnt(0)
    s_nop 7
    """)
    T = 112
    def gelu4(regs, tb):
        n = len(regs)
        for k, u in enumerate(regs): a(f"v_mul_f32 v{tb+k}, v{u}, v{u}")
        for k, u in enumerate(regs): a(f"v_fma_f32 v{tb+k}, v{tb+k}, s{S_C1}, v{VT+4}")
        for k, u in enumerate(regs): a(f"v_mul_f32 v{tb+k}, v{tb+k}, v{u}")
        for k, u in enumerate(regs): a(f"v_exp_f32 v{tb+k}, v{tb+k}")
        for k, u in enumerate(regs): a(f"v_add_f32 v{tb+k}, 1.0, v{tb+k}")
        for k, u in enumerate(regs): a(f"v_rcp_f32 v{tb+k}, v{tb+k}")
        for k, u in enumerate(regs): a(f"v_mul_f32 v{tb+k}, v{tb+k}, v{u}")
    k = 0
    for b in range(3):
        for tt in range(4):
            regs = [acc(2*b, tt)+r for r in range(4)] + [acc(2*b+1, tt)+r for r in range(4)]
            tb = T + 8*(k & 1); pb = T + 16 + 4*(k & 3); k += 1
            gelu4(regs, tb)
            for j in range(4):
                a(f"v_cvt_pk_bf16_f32 v{pb+j}, v{tb+2*j}, v{tb+2*j+1}")
            a(f"buffer_store_dwordx4 {vr(pb,4)}, v{VT}, s[{SRD_WS}:{SRD_WS+3}], s{S_T0} offen offset:{tt*256}{SC()}")
        if b == 0 and FU():
            a(f"s_lshl_b32 s{S_SIG}, s{S_I}, 7\n s_add_u32 s{S_SIG}, s{S_SIG}, {hx(FLG_OFF+256*128)}")
            a("s_waitcnt vmcnt(4)\n s_barrier")
            k4_early(a, VL, "m")
        if b < 2:
            a(f"s_add_u32 s{S_T0}, s{S_T0}, 8192")
    for t2 in range(2):
        regs = [acc(6, 2*t2)+r for r in range(4)] + [acc(6, 2*t2+1)+r for r in range(4)]
        tb = T + 8*(k & 1); pb = T + 16 + 4*(k & 3); k += 1
        gelu4(regs, tb)
        for j in range(4):
            a(f"v_cvt_pk_bf16_f32 v{pb+j}, v{tb+2*j}, v{tb+2*j+1}")
        a(f"buffer_store_dwordx2 {vr(pb,2)}, v{VT}, s[{SRD_WS}:{SRD_WS+3}], s{S_T1} offen offset:{(2*t2)*256}{SC()}")
        a(f"buffer_store_dwordx2 {vr(pb+2,2)}, v{VT}, s[{SRD_WS}:{SRD_WS+3}], s{S_T1} offen offset:{(2*t2+1)*256}{SC()}")
    stamp(a, 2, 1, SRD_WS, 248, S_ST)
    if not FU():
        a("s_waitcnt vmcnt(0)")
        stamp(a, 3, 1, SRD_WS, 248, S_ST)
        a("s_waitcnt vmcnt(0)")

def mf32(d, A, B, C):
    c = vr(C, 16) if isinstance(C, int) and C >= 0 else "0"
    return f"v_mfma_f32_32x32x16_bf16 {vr(d,16)}, {vr(A,4)}, {vr(B,4)}, {c}"

def k2_att(a, VL, VT, VDA, VDB):
    ACC = dict(Q=[0, 16], K=[32, 48], V=[64, 80])
    SET = [96, 136]
    VA = [176, 177, 178, 179]; VAC = [180, 181, 182, 183]; VB, VBC = 184, 185
    a(f"""
    s_load_dwordx2 s[{SRD_B}:{SRD_B+1}], s[0:1], 8
    s_load_dwordx2 s[{SRD_T}:{SRD_T+1}], s[0:1], 16
    s_mov_b32 s{SRD_B+2}, {hx(1024*6144)}
    s_mov_b32 s{SRD_B+3}, 0x00020000
    s_mov_b32 s{SRD_T+2}, 65536
    s_mov_b32 s{SRD_T+3}, 0x00020000
    s_mov_b32 s{S_EXB}, -1
    s_mov_b32 s{S_EXB+1}, 0x0000ffff
    """)
    k2_pf_setup(a, VL, VT, 8, 1024*6144, 6144, 6, 24, 2*MB, True)
    a(f"""
    v_cmp_le_u32 vcc, 24, v{VL}
    v_cndmask_b32 v{VT}, 0, 1, vcc
    v_mul_u32_u24 v{VT+1}, 24, v{VT}
    v_sub_u32 v{VT+1}, v{VL}, v{VT+1}
    v_lshrrev_b32 v{VT+2}, 3, v{VT+1}
    v_min_u32 v{VT+2}, 2, v{VT+2}
    v_and_b32 v{VT+1}, 7, v{VT+1}
    v_lshlrev_b32 v{VT+2}, 11, v{VT+2}
    v_lshl_add_u32 v{VT+2}, v{VT+1}, 4, v{VT+2}
    s_lshl_b32 s{S_T0}, s{S_W}, 2
    v_add_u32 v{VT}, s{S_T0}, v{VT}
    v_mul_u32_u24 v{VT}, 6144, v{VT}
    s_lshl_b32 s{S_T0}, s{S_JN}, 7
    v_add_u32 v{VT}, s{S_T0}, v{VT}
    v_add_u32 v{VDB}, v{VT}, v{VT+2}
    v_xor_b32 v{VT+2}, 64, v{VT+2}
    v_add_u32 v{VDB+1}, v{VT}, v{VT+2}
    v_add_u32 v{VDB+1}, {2*6144-768}, v{VDB+1}
    s_mul_i32 s{S_M0B}, s{S_W}, 1536
    s_add_u32 s{S_M0B}, s{S_M0B}, {BRING}
    """)
    a(f"""
    v_and_b32 v{VT}, 31, v{VL}
    v_bfe_u32 v{VT+1}, v{VL}, 1, 3
    v_lshrrev_b32 v{VT+2}, 5, v{VL}
    v_xor_b32 v{VT+1}, v{VT+1}, v{VT+2}
    s_lshl_b32 s{S_T0}, s{S_TG}, 6
    v_add_u32 v{VT}, s{S_T0}, v{VT}
    v_lshlrev_b32 v{VT}, 7, v{VT}
    v_lshl_add_u32 v{VAC[0]}, v{VT+1}, 4, v{VT}
    v_xor_b32 v{VAC[1]}, 32, v{VAC[0]}
    v_xor_b32 v{VAC[2]}, 64, v{VAC[0]}
    v_xor_b32 v{VAC[3]}, 0x60, v{VAC[0]}
    v_mov_b32 v{VA[0]}, v{VAC[0]}
    v_mov_b32 v{VA[1]}, v{VAC[1]}
    v_mov_b32 v{VA[2]}, v{VAC[2]}
    v_mov_b32 v{VA[3]}, v{VAC[3]}
    v_bfe_u32 v{VT}, v{VL}, 2, 2
    v_lshl_add_u32 v{VT}, v{VT+2}, 3, v{VT}
    v_mul_u32_u24 v{VT}, 384, v{VT}
    v_bfe_u32 v{VT+1}, v{VL}, 3, 1
    v_xor_b32 v{VT+1}, s{S_CH}, v{VT+1}
    v_lshl_add_u32 v{VT}, v{VT+1}, 6, v{VT}
    v_bfe_u32 v{VT+1}, v{VL}, 4, 1
    v_lshl_add_u32 v{VT}, v{VT+1}, 5, v{VT}
    v_and_b32 v{VT+1}, 3, v{VL}
    v_lshl_add_u32 v{VT}, v{VT+1}, 3, v{VT}
    v_add_u32 v{VBC}, {BRING}, v{VT}
    v_mov_b32 v{VB}, v{VBC}
    """)
    a(f"""
    s_lshl_b32 s{S_T0}, s{S_JN}, 12
    s_lshl_b32 s{S_T1}, s{S_W}, 9
    s_add_u32 s{S_T0}, s{S_T0}, s{S_T1}
    s_add_u32 m0, s{S_T1}, {WPHI_L}
    v_lshlrev_b32 v{VT}, 4, v{VL}
    s_waitcnt lgkmcnt(0)
    """)
    stamp(a, 0, 1, SRD_WS, 248, S_ST)
    a(f"""
    s_mov_b32 exec_hi, 0
    buffer_load_dwordx4 v{VT}, s[{SRD_T}:{SRD_T+3}], s{S_T0} offen lds
    s_mov_b64 exec, -1
    """)
    def mfmas(s):
        b = SET[s]
        r = []
        for st in range(2):
            for m, nm in enumerate("QKV"):
                for tt in range(2):
                    wf = b + 16 + (st*3+m)*4
                    tf = b + (st*2+tt)*4
                    d = ACC[nm][tt]
                    if nm == "V":
                        r.append(mf32(d, tf, wf, d))
                    else:
                        r.append(mf32(d, wf, tf, d))
        return r
    def reads(s, sub, bimm):
        b = SET[s]
        r = []
        for st in range(2):
            va = VA[2*sub+st]
            def w(m):
                for i in range(2):
                    r.append(f"ds_read_b64_tr_b16 {vr(b+16+(st*3+m)*4+2*i,2)}, v{VB} offset:{bimm+st*6144+i*1536+m*128}")
            w(0)
            for tt in range(2):
                r.append(f"ds_read_b128 {vr(b+(st*2+tt)*4,4)}, v{va} offset:{tt*4096}")
            w(1); w(2)
        return r
    upd = f"s_xor_b32 s{S_T2}, s{S_BPAR}, {2*SLOTB_A}\n" + \
        "\n".join(f"v_add_u32 v{VA[k]}, s{S_NXT}, v{VAC[k]}" for k in range(4)) + \
        f"\nv_add_u32 v{VB}, s{S_T2}, v{VBC}"
    g = k2_main(a, "att", mfmas, reads, upd, VDA, VDB, SLOTB_A, 768, 6144, 2,
                lambda i: (i // 2) - 1, [7, 8, 9])
    next(g)
    for r in range(96):
        a(f"v_mov_b32 v{r}, 0")
    next(g)
    stamp(a, 1, 1, SRD_WS, 248, S_ST)
    WF = 186
    IDF = 194
    ONE = 202
    KV = [96, 112]
    ZA = [128, 144]
    P = 160
    E = [206, 220]
    EP, EM = 206, 222
    TR = 160
    MX, MN, SP, SM, TT = 241, 242, 243, 244, 245
    a(f"""
    s_mov_b32 s{S_C0}, {hx(f2u(LOG2E))}
    s_waitcnt vmcnt(0) lgkmcnt(0)
    s_barrier
    """)
    a(f"""
    v_lshrrev_b32 v{TT}, 5, v{VL}
    v_bfe_u32 v{TT+1}, v{VL}, 2, 2
    v_lshl_add_u32 v{TT+1}, v{TT}, 2, v{TT+1}
    v_lshlrev_b32 v{TT+1}, 6, v{TT+1}
    v_bfe_u32 v{TT+2}, v{VL}, 4, 1
    v_lshl_add_u32 v{TT+1}, v{TT+2}, 5, v{TT+1}
    v_and_b32 v{TT+2}, 3, v{VL}
    v_lshl_add_u32 v{TT+1}, v{TT+2}, 3, v{TT+1}
    s_lshl_b32 s{S_T0}, s{S_CH}, 11
    s_add_u32 s{S_T0}, s{S_T0}, {WPHI_L}
    v_add_u32 v{TT+1}, s{S_T0}, v{TT+1}
    """)
    for s in range(2):
        for i in range(2):
            a(f"ds_read_b64_tr_b16 {vr(WF+4*s+2*i,2)}, v{TT+1} offset:{(16*s+8*i)*64}")
    a(f"""
    v_and_b32 v{TT+2}, 31, v{VL}
    v_lshlrev_b32 v{TT}, 2, v{TT}
    v_sub_u32 v{TT+2}, v{TT+2}, v{TT}
    v_mov_b32 v{TT}, 0x3f80
    v_mov_b32 v{TT+3}, 0x3f800000
    """)
    for s in range(2):
        for k in range(4):
            base = 16*s + 8*(k >> 1) + 2*(k & 1)
            d = IDF + 4*s + k
            a(f"v_cmp_eq_u32 vcc, {base}, v{TT+2}")
            a(f"v_cndmask_b32 v{d}, 0, v{TT}, vcc")
            a(f"v_cmp_eq_u32 vcc, {base+1}, v{TT+2}")
            a(f"v_cndmask_b32 v{d}, v{d}, v{TT+3}, vcc")
    for k in range(4):
        a(f"v_mov_b32 v{ONE+k}, 0x3f803f80")

    def pack(dst, src, n=8):
        for j in range(n):
            a(f"v_cvt_pk_bf16_f32 v{dst+j}, v{src+2*j}, v{src+2*j+1}")

    def xhalf(op, v, t):
        a(f"v_mov_b32 v{t}, v{v}")
        a("s_nop 1")
        a(f"v_permlane32_swap_b32 v{v}, v{t}")
        a("s_nop 1")
        a(f"{op} v{v}, v{v}, v{t}")

    def softmax(src, outp, outm):
        pack(src, src)
        a("s_nop 1")
        a(mf32(P, WF, src, None))
        a(mf32(P, WF+4, src+4, P))
        a("s_nop 15\n s_nop 3")
        a(f"v_max3_f32 v{MX}, v{P}, v{P+1}, v{P+2}")
        a(f"v_min3_f32 v{MN}, v{P}, v{P+1}, v{P+2}")
        for k in range(3, 15, 2):
            a(f"v_max3_f32 v{MX}, v{MX}, v{P+k}, v{P+k+1}")
            a(f"v_min3_f32 v{MN}, v{MN}, v{P+k}, v{P+k+1}")
        a(f"v_max_f32 v{MX}, v{MX}, v{P+15}")
        a(f"v_min_f32 v{MN}, v{MN}, v{P+15}")
        a(f"v_mov_b32 v{TT}, v{MX}\n v_mov_b32 v{TT+1}, v{MN}\n s_nop 1")
        a(f"v_permlane32_swap_b32 v{MX}, v{TT}\n v_permlane32_swap_b32 v{MN}, v{TT+1}\n s_nop 1")
        a(f"v_max_f32 v{MX}, v{MX}, v{TT}\n v_min_f32 v{MN}, v{MN}, v{TT+1}")
        a(f"v_mul_f32 v{MX}, s{S_C0}, v{MX}\n v_mul_f32 v{MN}, s{S_C0}, v{MN}")
        for k in range(16):
            a(f"v_fma_f32 v{EP+k}, v{P+k}, s{S_C0}, -v{MX}")
            a(f"v_fma_f32 v{EM+k}, -v{P+k}, s{S_C0}, v{MN}")
        for k in range(16):
            a(f"v_exp_f32 v{EP+k}, v{EP+k}")
            a(f"v_exp_f32 v{EM+k}, v{EM+k}")
        a(f"v_add_f32 v{SP}, v{EP}, v{EP+1}\n v_add_f32 v{SM}, v{EM}, v{EM+1}")
        a(f"v_add_f32 v{TT}, v{EP+2}, v{EP+3}\n v_add_f32 v{TT+1}, v{EM+2}, v{EM+3}")
        for k in range(4, 16, 2):
            a(f"v_add_f32 v{SP}, v{SP}, v{EP+k}\n v_add_f32 v{SM}, v{SM}, v{EM+k}")
            a(f"v_add_f32 v{TT}, v{TT}, v{EP+k+1}\n v_add_f32 v{TT+1}, v{TT+1}, v{EM+k+1}")
        a(f"v_add_f32 v{SP}, v{SP}, v{TT}\n v_add_f32 v{SM}, v{SM}, v{TT+1}")
        a(f"v_mov_b32 v{TT}, v{SP}\n v_mov_b32 v{TT+1}, v{SM}\n s_nop 1")
        a(f"v_permlane32_swap_b32 v{SP}, v{TT}\n v_permlane32_swap_b32 v{SM}, v{TT+1}\n s_nop 1")
        a(f"v_add_f32 v{SP}, v{SP}, v{TT}\n v_add_f32 v{SM}, v{SM}, v{TT+1}")
        a(f"v_rcp_f32 v{SP}, v{SP}\n v_rcp_f32 v{SM}, v{SM}\n s_nop 0")
        for k in range(16):
            a(f"v_mul_f32 v{EP+k}, v{EP+k}, v{SP}")
            a(f"v_mul_f32 v{EM+k}, v{EM+k}, v{SM}")
        pack(outp, EP)
        pack(outm, EM)

    a("s_waitcnt lgkmcnt(0)")
    for tt in range(2):
        pack(ACC["V"][tt], ACC["V"][tt])
    for tt in range(2):
        src = ACC["K"][tt]
        softmax(src, src, src+8)
        for pm in range(2):
            ph = src + 8*pm
            a("s_nop 1")
            a(mf32(TR, ph, IDF, None))
            a(mf32(TR, ph+4, IDF+4, TR))
            a("s_nop 15\n s_nop 3")
            pack(EP, TR)
            a("s_nop 1")
            v = ACC["V"][tt]
            first = (tt == 0)
            a(mf32(KV[pm], EP, v, None if first else KV[pm]))
            a(mf32(ZA[pm], ONE, EP, None if first else ZA[pm]))
            a(mf32(KV[pm], EP+4, v+4, KV[pm]))
            a(mf32(ZA[pm], ONE, EP+4, ZA[pm]))
            a("s_nop 7")
    a("s_nop 15\n s_nop 3")
    VW = TT
    a(f"""
    s_lshl_b32 s{S_T0}, s{S_W}, 13
    v_lshlrev_b32 v{VW+1}, 4, v{VL}
    v_add_u32 v{VW}, s{S_T0}, v{VW+1}
    v_cmp_gt_u32 vcc, 32, v{VL}
    v_cndmask_b32 v{VW+2}, v{ZA[1]}, v{ZA[0]}, vcc
    s_lshl_b32 s{S_T0}, s{S_W}, 8
    s_add_u32 s{S_T0}, s{S_T0}, 65536
    v_lshlrev_b32 v{VW+3}, 2, v{VL}
    v_add_u32 v{VW+4}, s{S_T0}, v{VW+3}
    """)
    for i in range(8):
        a(f"ds_write_b128 v{VW}, {vr(KV[i>>2]+4*(i&3),4)} offset:{i*1024}")
    a(f"ds_write_b32 v{VW+4}, v{VW+2}")
    a(f"""
    s_lshl_b32 s{S_T0}, s{S_CH}, 15
    s_lshl_b32 s{S_T1}, s{S_TG}, 11
    s_add_u32 s{S_T0}, s{S_T0}, s{S_T1}
    v_add_u32 v{VW}, s{S_T0}, v{VW+1}
    s_lshl_b32 s{S_T0}, s{S_CH}, 10
    s_add_u32 s{S_T0}, s{S_T0}, 65536
    v_add_u32 v{VW+4}, s{S_T0}, v{VW+3}
    s_waitcnt lgkmcnt(0)
    s_barrier
    """)
    R = 96
    for k in range(4):
        for e in range(2):
            a(f"ds_read_b128 {vr(R+(k*2+e)*4,4)}, v{VW} offset:{k*8192+e*1024}")
    ZR = 128
    for k in range(4):
        a(f"ds_read_b32 v{ZR+k}, v{VW+4} offset:{k*256}")
    S_KVP, S_ZP, S_HEAD = 50, 51, 52
    a(f"""
    s_lshl_b32 s{S_HEAD}, s{S_JN}, 1
    s_add_u32 s{S_HEAD}, s{S_HEAD}, s{S_CH}
    s_lshl_b32 s{S_T0}, s{S_HEAD}, 3
    s_add_u32 s{S_T0}, s{S_T0}, s{S_I}
    s_lshl_b32 s{S_ZP}, s{S_T0}, 8
    s_add_u32 s{S_ZP}, s{S_ZP}, {hx(ZP_OFF)}
    s_lshl_b32 s{S_KVP}, s{S_T0}, 13
    s_lshl_b32 s{S_T1}, s{S_TG}, 11
    s_add_u32 s{S_KVP}, s{S_KVP}, s{S_T1}
    s_add_u32 s{S_KVP}, s{S_KVP}, {hx(KVP_OFF)}
    s_waitcnt lgkmcnt(0)
    """)
    for j in range(8):
        a(f"v_add_f32 v{R+j}, v{R+j}, v{R+8+j}")
        a(f"v_add_f32 v{R+16+j}, v{R+16+j}, v{R+24+j}")
    a(f"v_add_f32 v{ZR}, v{ZR}, v{ZR+1}\n v_add_f32 v{ZR+2}, v{ZR+2}, v{ZR+3}")
    for j in range(8):
        a(f"v_add_f32 v{R+j}, v{R+j}, v{R+16+j}")
    a(f"v_add_f32 v{ZR}, v{ZR}, v{ZR+2}")
    VO16, VO4 = 238, 239
    a(f"v_mov_b32 v{VO16}, v{VW+1}\n v_mov_b32 v{VO4}, v{VW+3}")
    for e in range(2):
        a(f"buffer_store_dwordx4 {vr(R+4*e,4)}, v{VO16}, s[{SRD_WS}:{SRD_WS+3}], s{S_KVP} offen offset:{e*1024} sc1")
    a(f"""
    s_cmp_lg_u32 s{S_TG}, 0
    s_cbranch_scc1 .Lk2_noz
    buffer_store_dword v{ZR}, v{VO4}, s[{SRD_WS}:{SRD_WS+3}], s{S_ZP} offen sc1
    .Lk2_noz:
    """)
    stamp(a, 2, 1, SRD_WS, 248, S_ST)
    softmax(ACC["Q"][0], ACC["Q"][0], ACC["Q"][0]+8)
    a(f"""
    s_waitcnt vmcnt(0) lgkmcnt(0)
    s_barrier
    s_lshl_b32 s{S_T3}, s{S_JN}, 7
    s_add_u32 s{S_T3}, s{S_T3}, {hx(FLG_OFF+272*128)}
    s_cmp_lg_u32 s{S_W}, 0
    s_cbranch_scc1 .Lk2_nosig
    v_mov_b32 v{TT}, 1
    v_mov_b32 v{TT+1}, 0
    s_mov_b64 exec, 1
    buffer_atomic_add v{TT}, v{TT+1}, s[{SRD_WS}:{SRD_WS+3}], s{S_T3} offen sc1
    s_mov_b64 exec, -1
    .Lk2_nosig:
    """)
    if FU():
        a(f"s_lshl_b32 s{S_SIG}, s{S_I}, 7\n s_add_u32 s{S_SIG}, s{S_SIG}, {hx(FLG_OFF+264*128)}")
        k4_early(a, VL, "a")
    softmax(ACC["Q"][1], ACC["Q"][1], ACC["Q"][1]+8)
    stamp(a, 3, 1, SRD_WS, 248, S_ST)
    a(f"""
    s_cmp_lg_u32 s{S_W}, 0
    s_cbranch_scc1 .Lk2_polled
    s_mov_b32 s{S_CNT}, {OPT['spin']}
    v_mov_b32 v{TT+1}, 0
    .Lk2_poll:
    buffer_load_dword v{TT}, v{TT+1}, s[{SRD_WS}:{SRD_WS+3}], s{S_T3} offen sc1
    s_waitcnt vmcnt(0)
    v_readfirstlane_b32 s{S_T0}, v{TT}
    s_sub_u32 s{S_CNT}, s{S_CNT}, 1
    s_cmp_eq_u32 s{S_CNT}, 0
    s_cbranch_scc1 .Lk2_polled
    s_cmp_lt_u32 s{S_T0}, 8
    s_cbranch_scc1 .Lk2_poll
    .Lk2_polled:
    s_barrier
    """)
    stamp(a, 4, 1, SRD_WS, 248, S_ST)
    a(f"""
    s_lshl_b32 s{S_T0}, s{S_HEAD}, 16
    s_lshl_b32 s{S_T1}, s{S_TG}, 11
    s_add_u32 s{S_T0}, s{S_T0}, s{S_T1}
    s_add_u32 s{S_T0}, s{S_T0}, {hx(KVP_OFF)}
    s_lshl_b32 s{S_T1}, s{S_HEAD}, 11
    s_add_u32 s{S_T1}, s{S_T1}, {hx(ZP_OFF)}
    """)
    L = 96
    ZL = 160
    for k in range(8):
        for e in range(2):
            a(f"buffer_load_dwordx4 {vr(L+(k*2+e)*4,4)}, v{VO16}, s[{SRD_WS}:{SRD_WS+3}], s{S_T0} offen offset:{e*1024} sc1")
        if k < 7:
            a(f"s_add_u32 s{S_T0}, s{S_T0}, 8192")
    for k in range(8):
        a(f"buffer_load_dword v{ZL+k}, v{VO4}, s[{SRD_WS}:{SRD_WS+3}], s{S_T1} offen offset:{k*256} sc1")
    KVF, ZF = 67584, 75776
    a(f"""
    s_lshl_b32 s{S_T0}, s{S_W}, 10
    s_add_u32 s{S_T0}, s{S_T0}, {KVF}
    v_add_u32 v{TT}, s{S_T0}, v{VO16}
    s_lshl_b32 s{S_T0}, s{S_W}, 7
    s_add_u32 s{S_T0}, s{S_T0}, {ZF}
    v_lshlrev_b32 v{TT+1}, 1, v{VL}
    v_add_u32 v{TT+1}, s{S_T0}, v{TT+1}
    v_lshrrev_b32 v{TT+2}, 5, v{VL}
    v_lshlrev_b32 v{TT+2}, 3, v{TT+2}
    v_add_u32 v{TT+2}, s{S_T0}, v{TT+2}
    s_lshl_b32 s{S_T0}, s{S_CH}, 12
    s_add_u32 s{S_T0}, s{S_T0}, {KVF}
    v_add_u32 v{MX}, s{S_T0}, v{VO16}
    """)
    for k in range(1, 8):
        a(f"s_waitcnt vmcnt({8 + 2*(7-k)})")
        for j in range(8):
            a(f"v_add_f32 v{L+j}, v{L+j}, v{L+8*k+j}")
    pack(L, L, 4)
    a(f"ds_write_b128 v{TT}, {vr(L,4)}")
    a("s_waitcnt vmcnt(0)")
    for k in range(4):
        a(f"v_add_f32 v{ZL+k}, v{ZL+k}, v{ZL+4+k}")
    a(f"v_add_f32 v{ZL}, v{ZL}, v{ZL+2}\n v_add_f32 v{ZL+1}, v{ZL+1}, v{ZL+3}\n v_add_f32 v{ZL}, v{ZL}, v{ZL+1}")
    a(f"v_cvt_pk_bf16_f32 v{ZL}, v{ZL}, v{ZL}")
    a(f"ds_write_b16 v{TT+1}, v{ZL}")
    a("s_waitcnt lgkmcnt(0)\n s_barrier")
    KF = 96
    ZFR = 112
    for k in range(4):
        a(f"ds_read_b128 {vr(KF+4*k,4)}, v{MX} offset:{k*1024}")
    for k in range(4):
        a(f"ds_read2_b64 {vr(ZFR+4*k,4)}, v{TT+2} offset0:{4*k} offset1:{4*k+2}")
    a(f"""
    s_lshl_b32 s{S_T0}, s{S_I}, 1
    s_lshr_b32 s{S_T1}, s{S_TG}, 1
    s_add_u32 s{S_T0}, s{S_T0}, s{S_T1}
    s_mul_i32 s{S_T0}, s{S_T0}, 144
    s_add_u32 s{S_T0}, s{S_T0}, s{S_HEAD}
    s_add_u32 s{S_T0}, s{S_T0}, 112
    s_lshl_b32 s{S_T0}, s{S_T0}, 13
    s_add_u32 s{S_T0}, s{S_T0}, {hx(HO_OFF)}
    s_and_b32 s{S_T1}, s{S_TG}, 1
    s_lshl_b32 s{S_T1}, s{S_T1}, 10
    s_add_u32 s{S_T0}, s{S_T0}, s{S_T1}
    s_add_u32 s{S_T1}, s{S_T0}, 4096
    v_lshrrev_b32 v{TT}, 5, v{VL}
    v_lshlrev_b32 v{TT}, 11, v{TT}
    v_and_b32 v{TT+1}, 31, v{VL}
    v_lshl_add_u32 v{TT}, v{TT+1}, 4, v{TT}
    s_waitcnt lgkmcnt(0)
    """)
    NUM = [128, 144]; DEN = [160, 206]
    for tt in range(2):
        q = ACC["Q"][tt]
        for k in range(4):
            a(mf32(DEN[tt], ZFR+4*k, q+4*k, None if k == 0 else DEN[tt]))
            a(mf32(NUM[tt], KF+4*k, q+4*k, None if k == 0 else NUM[tt]))
    a("s_nop 15\n s_nop 3")
    O = 32
    for tt in range(2):
        d = DEN[tt]
        a(f"v_add_f32 v{d}, {hx(f2u(1e-6))}, v{d}")
        a(f"v_rcp_f32 v{d}, v{d}")
        a("s_nop 0")
        for k in range(16):
            a(f"v_mul_f32 v{NUM[tt]+k}, v{NUM[tt]+k}, v{d}")
        ob = O + 8*tt
        for aa in range(4):
            dst = ob + 4*(aa & 1) + 2*(aa >> 1)
            for j in range(2):
                a(f"v_cvt_pk_bf16_f32 v{dst+j}, v{NUM[tt]+4*aa+2*j}, v{NUM[tt]+4*aa+2*j+1}")
        a(f"buffer_store_dwordx4 {vr(ob,4)}, v{TT}, s[{SRD_WS}:{SRD_WS+3}], s{S_T0} offen offset:{tt*512}{SC()}")
        a(f"buffer_store_dwordx4 {vr(ob+4,4)}, v{TT}, s[{SRD_WS}:{SRD_WS+3}], s{S_T1} offen offset:{tt*512}{SC()}")
    stamp(a, 5, 1, SRD_WS, 248, S_ST)
    if not FU(): a("s_waitcnt vmcnt(0)")

def k4():
    D = OPT["k4_depth"]; N0 = OPT["k4_n0"]
    a = Asm()
    SA, SB, SWS, SX = 4, 8, 12, 16
    S_MT, S_NT, S_KH, S_TG4, S_CH4 = 20, 21, 22, 23, 24
    S_AO, S_BO, S_DST, S_END, S_SW, S_SR, S_M0, S_N, S_BG = 25, 26, 27, 28, 29, 30, 31, 32, 33
    T0, T1, T2, T3 = 36, 37, 38, 39
    S_WO = 40
    S_TILE = 42
    ACCM, ACCS = 0, 32
    X, Y = 64, 88
    XR = 112
    VTOK, VW0, VW1, VTOKC, VW0C, VW1C, VDA, VDB0, VDB1, VL, VXO, VT = 128, 129, 130, 131, 132, 133, 134, 135, 136, 137, 138, 140
    a(f"""
    s_cmp_ge_u32 s2, 256
    s_cbranch_scc1 .Lk4_end
    s_load_dwordx2 s[{SA}:{SA+1}], s[0:1], 88
    s_load_dwordx2 s[{SWS}:{SWS+1}], s[0:1], 88
    s_load_dwordx2 s[{SB}:{SB+1}], s[0:1], 56
    s_load_dwordx2 s[{S_WO}:{S_WO+1}], s[0:1], 24
    s_load_dwordx2 s[{SX}:{SX+1}], s[0:1], 64
    v_lshrrev_b32 v1, 6, v0
    v_and_b32 v{VL}, 63, v0
    v_mov_b32 v{VXO}, 0
    s_and_b32 s{T0}, s2, 7
    v_readfirstlane_b32 s3, v1
    s_lshr_b32 s{T1}, s2, 3
    s_and_b32 s{S_KH}, s{T0}, 1
    s_bfe_u32 s{T2}, s{T0}, 0x10001
    s_lshl_b32 s{T2}, s{T2}, 3
    s_and_b32 s{S_MT}, s{T1}, 7
    s_add_u32 s{S_MT}, s{S_MT}, s{T2}
    s_lshr_b32 s{T2}, s{T0}, 2
    s_lshl_b32 s{T2}, s{T2}, 2
    s_lshr_b32 s{S_NT}, s{T1}, 3
    s_add_u32 s{S_NT}, s{S_NT}, s{T2}
    s_lshl_b32 s{S_TILE}, s{S_MT}, 3
    s_add_u32 s{S_TILE}, s{S_TILE}, s{S_NT}
    s_and_b32 s{S_TG4}, s3, 3
    s_lshr_b32 s{S_CH4}, s3, 2
    s_mov_b32 s{SA+2}, {hx(32*MB)}
    s_mov_b32 s{SA+3}, 0x00020000
    s_mov_b32 s{SWS+2}, {hx(256*MB)}
    s_mov_b32 s{SWS+3}, 0x00020000
    s_mov_b32 s{SB+2}, {hx(3584*2048)}
    s_mov_b32 s{SB+3}, 0x00020000
    s_mov_b32 s{SX+2}, 2048
    s_mov_b32 s{SX+3}, 0x00020000
    s_mov_b32 s{S_BG}, {hx(BIG)}
    s_mul_i32 s{S_DST}, s{S_KH}, {N0}
    s_cmp_eq_u32 s{S_KH}, 0
    s_cselect_b32 s{S_END}, {N0}, 72
    s_cselect_b32 s{S_N}, {N0}, {56-N0}
    s_mul_i32 s{S_AO}, s{S_MT}, {144*8192}
    s_lshl_b32 s{T0}, s{S_DST}, 14
    s_add_u32 s{S_AO}, s{S_AO}, s{T0}
    s_add_u32 s{S_AO}, s{S_AO}, {hx(HO_OFF-2048)}
    s_lshl_b32 s{S_BO}, s{S_DST}, 17
    s_lshl_b32 s{S_M0}, s3, 12
    s_mov_b32 s{S_SW}, 0
    s_mov_b32 s{S_SR}, 0
    """)
    a(f"""
    s_lshl_b32 s{T0}, s3, 11
    v_lshlrev_b32 v{VT}, 4, v{VL}
    v_add_u32 v{VDA}, s{T0}, v{VT}
    v_lshrrev_b32 v{VT}, 4, v{VL}
    v_and_b32 v{VT+1}, 15, v{VL}
    v_lshlrev_b32 v{VT+2}, 2, v{VT}
    v_xor_b32 v{VT+1}, v{VT+1}, v{VT+2}
    s_lshl_b32 s{T0}, s3, 3
    v_add_u32 v{VT}, s{T0}, v{VT}
    v_lshlrev_b32 v{VT}, 11, v{VT}
    v_lshl_add_u32 v{VT}, v{VT+1}, 4, v{VT}
    s_lshl_b32 s{T0}, s{S_NT}, 8
    v_add_u32 v{VDB0}, s{T0}, v{VT}
    v_add_u32 v{VDB1}, {4*2048-1024}, v{VDB0}
    """)
    a(f"""
    v_lshrrev_b32 v{VT}, 5, v{VL}
    v_and_b32 v{VT+1}, 31, v{VL}
    s_lshl_b32 s{T0}, s{S_TG4}, 5
    v_add_u32 v{VT+1}, s{T0}, v{VT+1}
    v_lshlrev_b32 v{VT+1}, 4, v{VT+1}
    v_lshl_add_u32 v{VTOKC}, v{VT}, 12, v{VT+1}
    v_bfe_u32 v{VT+1}, v{VL}, 2, 2
    v_lshl_add_u32 v{VT+2}, v{VT}, 2, v{VT+1}
    v_lshlrev_b32 v{VT+2}, 8, v{VT+2}
    s_lshl_b32 s{T0}, s{S_CH4}, 1
    v_xor_b32 v{VT+1}, s{T0}, v{VT+1}
    v_lshl_add_u32 v{VT+2}, v{VT+1}, 6, v{VT+2}
    v_bfe_u32 v{VT+1}, v{VL}, 4, 1
    v_lshl_add_u32 v{VT+2}, v{VT+1}, 5, v{VT+2}
    v_and_b32 v{VT+1}, 3, v{VL}
    v_lshl_add_u32 v{VW0C}, v{VT+1}, 3, v{VT+2}
    v_xor_b32 v{VW1C}, 64, v{VW0C}
    v_mov_b32 v{VTOK}, v{VTOKC}
    v_mov_b32 v{VW0}, v{VW0C}
    v_mov_b32 v{VW1}, v{VW1C}
    s_waitcnt lgkmcnt(0)
    """)
    stamp(a, 0, 2, SWS, 144, 56)
    a(f"""
    s_cmp_eq_u32 s{S_KH}, 0
    s_cbranch_scc1 .Lk4_nob
    s_lshl_b32 s{T0}, s{S_NT}, 8
    s_lshl_b32 s{T1}, s{S_CH4}, 7
    s_add_u32 s{T0}, s{T0}, s{T1}
    v_lshlrev_b32 v{VT+1}, 3, v{VT}
    """)
    for ct in range(2):
        for aa in range(4):
            k = ct*4+aa
            a(f"buffer_load_dwordx2 {vr(Y+2*k,2)}, v{VT+1}, s[{SX}:{SX+3}], s{T0} offen offset:{ct*64+aa*16}")
    a(f"""
    s_load_dwordx2 s[{SX}:{SX+1}], s[0:1], 0
    s_lshl_b32 s{T1}, s{S_MT}, 7
    s_lshl_b32 s{T2}, s{S_TG4}, 5
    s_add_u32 s{T1}, s{T1}, s{T2}
    v_lshrrev_b32 v{VT+1}, 3, v{VL}
    v_add_u32 v{VT+1}, s{T1}, v{VT+1}
    v_lshlrev_b32 v{VT+1}, 11, v{VT+1}
    v_and_b32 v{VT+2}, 7, v{VL}
    v_lshl_add_u32 v{VT+1}, v{VT+2}, 4, v{VT+1}
    v_add_u32 v{VXO}, s{T0}, v{VT+1}
    s_mov_b32 s{T1}, 16384
    s_mov_b32 s{T2}, 32768
    s_mov_b32 s{T3}, 49152
    s_waitcnt lgkmcnt(0)
    s_mov_b32 s{SX+2}, {hx(4*MB)}
    buffer_load_dwordx4 {vr(XR,4)}, v{VXO}, s[{SX}:{SX+3}], 0 offen
    buffer_load_dwordx4 {vr(XR+4,4)}, v{VXO}, s[{SX}:{SX+3}], s{T1} offen
    buffer_load_dwordx4 {vr(XR+8,4)}, v{VXO}, s[{SX}:{SX+3}], s{T2} offen
    buffer_load_dwordx4 {vr(XR+12,4)}, v{VXO}, s[{SX}:{SX+3}], s{T3} offen
    .Lk4_nob:
    """)
    def dma(sw_check, lab=None):
        s = []
        if sw_check:
            s.append(f"s_cmp_eq_u32 s{S_DST}, 56\n s_cbranch_scc0 {lab}")
            s.append(f"s_mov_b32 s{SB}, s{S_WO}\n s_mov_b32 s{SB+1}, s{S_WO+1}\n s_mov_b32 s{SB+2}, {hx(2*MB)}\n s_mov_b32 s{S_BO}, 0")
            s.append(f"{lab}:")
        s.append(f"s_cmp_lt_u32 s{S_DST}, s{S_END}")
        s.append(f"s_cselect_b32 s{T0}, s{S_AO}, s{S_BG}")
        s.append(f"s_cselect_b32 s{T1}, s{S_BO}, s{S_BG}")
        s.append(f"s_add_u32 m0, s{S_SW}, s{S_M0}")
        s.append(f"s_add_u32 s{S_AO}, s{S_AO}, 16384")
        s.append(f"buffer_load_dwordx4 v{VDB0}, s[{SB}:{SB+3}], s{T1} offen lds")
        p = ["\n".join(s)]
        p.append(f"buffer_load_dwordx4 v{VDB1}, s[{SB}:{SB+3}], s{T1} offen offset:1024 lds")
        p.append(f"buffer_load_dwordx4 v{VDA}, s[{SA}:{SA+3}], s{T0} offen offset:2048 lds")
        p.append(f"""buffer_load_dwordx4 v{VDA}, s[{SA}:{SA+3}], s{T0} offen offset:3072 lds
        s_add_u32 s{S_BO}, s{S_BO}, {64*2048}
        s_add_u32 s{S_DST}, s{S_DST}, 1
        s_add_u32 s{S_SW}, s{S_SW}, 32768
        s_cmp_ge_u32 s{S_SW}, {32768*D}
        s_cselect_b32 s{S_SW}, 0, s{S_SW}""")
        return p
    for d in range(D):
        for t in dma(False): a(t)
    a(f"""
    s_cmp_eq_u32 s{S_KH}, 0
    s_cbranch_scc1 .Lk4_z
    s_waitcnt vmcnt({4*D+4})
    s_mov_b32 s{T0}, 0xffff0000
    """)
    for k in range(16):
        a(f"v_lshlrev_b32 v{ACCM+2*k}, 16, v{Y+k}")
        a(f"v_and_b32 v{ACCM+2*k+1}, s{T0}, v{Y+k}")
    for k in range(32):
        a(f"v_mov_b32 v{ACCS+k}, 0")
    a("s_branch .Lk4_i\n .Lk4_z:")
    for k in range(32):
        a(f"v_mov_b32 v{ACCM+k}, 0")
    a(".Lk4_i:")
    def reads(b, blk):
        r = []
        for s in range(2):
            for ct in range(2):
                w = b + 8 + (s*2+ct)*4
                for hf in range(2):
                    r.append(f"ds_read_b64_tr_b16 {vr(w+2*hf,2)}, v{VW1 if ct else VW0} offset:{(4*blk+s+2*hf)*4096}")
                if ct == 0:
                    r.append(f"ds_read_b128 {vr(b+4*s,4)}, v{VTOK} offset:{(4*blk+2*s)*4096+2048}")
        return r
    def mf(b, acc):
        return [mf32(acc+16*ct, b+8+(s*2+ct)*4, b+4*s, acc+16*ct) for s in range(2) for ct in range(2)]
    a(f"s_waitcnt vmcnt({4*(D-1)})\n s_barrier")
    for t in reads(X, 0): a(t)
    def loop(tag, acc, sw):
        a(f".Lk4_{tag}:")
        for t in reads(Y, 1): a(t)
        a("s_waitcnt lgkmcnt(10)")
        for t in mf(X, acc): a(t)
        a(f"""
        s_add_u32 s{S_SR}, s{S_SR}, 32768
        s_cmp_ge_u32 s{S_SR}, {32768*D}
        s_cselect_b32 s{S_SR}, 0, s{S_SR}
        s_waitcnt lgkmcnt(0)
        v_add_u32 v{VTOK}, s{S_SR}, v{VTOKC}
        v_add_u32 v{VW0}, s{S_SR}, v{VW0C}
        v_add_u32 v{VW1}, s{S_SR}, v{VW1C}
        s_waitcnt vmcnt({4*(D-2)})
        s_barrier
        """)
        for t in reads(X, 0): a(t)
        dm = dma(sw, f".Lk4_{tag}_sw")
        m = mf(Y, acc)
        for i in range(4):
            a(m[i]); a(dm[i])
        a(f"""
        s_sub_u32 s{S_N}, s{S_N}, 1
        s_cmp_lg_u32 s{S_N}, 0
        s_cbranch_scc1 .Lk4_{tag}
        """)
    loop("lm", ACCM, True)
    a(f"""
    s_lshl_b32 s{T2}, s{S_TILE}, 16
    s_lshl_b32 s{T3}, s3, 13
    s_add_u32 s{T2}, s{T2}, s{T3}
    s_add_u32 s{T2}, s{T2}, {hx(MP_OFF)}
    s_add_u32 s{T3}, s{T2}, 4096
    s_lshl_b32 s{S_TILE}, s{S_TILE}, 7
    s_add_u32 s{S_TILE}, s{S_TILE}, {hx(FLG_OFF)}
    v_lshlrev_b32 v{VT}, 4, v{VL}
    s_cmp_eq_u32 s{S_KH}, 0
    s_cbranch_scc0 .Lk4_p1
    """)
    stamp(a, 1, 2, SWS, 144, 56)
    a("s_nop 15\n s_nop 3")
    for i in range(8):
        a(f"buffer_store_dwordx4 {vr(ACCM+4*i,4)}, v{VT}, s[{SWS}:{SWS+3}], s{T2 if i<4 else T3} offen offset:{(i&3)*1024} sc1")
    a(f"""
    s_waitcnt vmcnt(0) lgkmcnt(0)
    s_barrier
    s_cmp_lg_u32 s3, 0
    s_cbranch_scc1 .Lk4_end
    v_mov_b32 v{VT}, 1
    v_mov_b32 v{VT+1}, 0
    s_mov_b64 exec, 1
    buffer_store_dword v{VT}, v{VT+1}, s[{SWS}:{SWS+3}], s{S_TILE} offen sc1
    s_mov_b64 exec, -1
    """)
    stamp(a, 2, 2, SWS, 144, 56)
    a(f"""
    s_waitcnt vmcnt(0)
    s_branch .Lk4_end
    .Lk4_p1:
    s_mov_b32 s{S_N}, 16
    s_mov_b32 s50, s{T2}
    s_mov_b32 s51, s{T3}
    """)
    loop("ls", ACCS, False)
    stamp(a, 1, 2, SWS, 144, 56)
    a(f"""
    s_load_dwordx2 s[{SX}:{SX+1}], s[0:1], 72
    s_waitcnt vmcnt(0)
    s_cmp_lg_u32 s3, 0
    s_cbranch_scc1 .Lk4_polled
    s_mov_b32 s{S_N}, {OPT['spin']}
    v_mov_b32 v{VT+1}, 0
    .Lk4_poll:
    buffer_load_dword v{VT+2}, v{VT+1}, s[{SWS}:{SWS+3}], s{S_TILE} offen sc1
    s_waitcnt vmcnt(0)
    v_readfirstlane_b32 s{T0}, v{VT+2}
    s_sub_u32 s{S_N}, s{S_N}, 1
    s_cmp_eq_u32 s{S_N}, 0
    s_cbranch_scc1 .Lk4_polled
    s_cmp_eq_u32 s{T0}, 0
    s_cbranch_scc1 .Lk4_poll
    .Lk4_polled:
    s_waitcnt lgkmcnt(0)
    s_barrier
    """)
    stamp(a, 2, 2, SWS, 144, 56)
    PB = 64
    for i in range(8):
        a(f"buffer_load_dwordx4 {vr(PB+4*i,4)}, v{VT}, s[{SWS}:{SWS+3}], s{50 if i<4 else 51} offen offset:{(i&3)*1024} sc1")
    VWR, VRD = VT+1, VT+2
    a(f"""
    s_mul_i32 s{T0}, s3, 4608
    v_and_b32 v{VWR}, 31, v{VL}
    v_mul_u32_u24 v{VWR}, 144, v{VWR}
    v_lshrrev_b32 v{VT+3}, 5, v{VL}
    v_lshl_add_u32 v{VWR}, v{VT+3}, 3, v{VWR}
    v_add_u32 v{VWR}, s{T0}, v{VWR}
    v_lshrrev_b32 v{VRD}, 3, v{VL}
    v_mul_u32_u24 v{VRD}, 144, v{VRD}
    v_and_b32 v{VT+3}, 7, v{VL}
    v_lshl_add_u32 v{VRD}, v{VT+3}, 4, v{VRD}
    v_add_u32 v{VRD}, s{T0}, v{VRD}
    s_mov_b32 s{T0}, {hx(f2u(-LOG2E))}
    s_mov_b32 s{T1}, 16384
    s_mov_b32 s{T2}, 32768
    s_mov_b32 s{T3}, 49152
    s_mov_b32 s52, 0xffff0000
    """)
    TM = 96
    for i in range(0, 8, 2):
        a(f"s_waitcnt vmcnt({6-i})")
        n = 8
        m = [ACCM+4*i+k for k in range(n)]
        p = [PB+4*i+k for k in range(n)]
        s_ = [ACCS+4*i+k for k in range(n)]
        t = [TM+k for k in range(n)]
        for k in range(n): a(f"v_add_f32 v{m[k]}, v{m[k]}, v{p[k]}")
        for k in range(n): a(f"v_mul_f32 v{t[k]}, s{T0}, v{m[k]}")
        for k in range(n): a(f"v_exp_f32 v{t[k]}, v{t[k]}")
        for k in range(n): a(f"v_mul_f32 v{m[k]}, v{m[k]}, v{s_[k]}")
        for k in range(n): a(f"v_add_f32 v{t[k]}, 1.0, v{t[k]}")
        for k in range(n): a(f"v_rcp_f32 v{t[k]}, v{t[k]}")
        a("s_nop 0")
        for k in range(n): a(f"v_mul_f32 v{m[k]}, v{m[k]}, v{t[k]}")
        pk = TM + 8 + (i & 2)*2
        for k in range(4): a(f"v_cvt_pk_bf16_f32 v{pk+k}, v{m[2*k]}, v{m[2*k+1]}")
        for k in range(2):
            ii = i + k
            a(f"ds_write_b64 v{VWR}, {vr(pk+2*k,2)} offset:{(ii>>2)*64+(ii&3)*16}")
    a("s_waitcnt lgkmcnt(0)")
    for i in range(4):
        a(f"ds_read_b128 {vr(PB+4*i,4)}, v{VRD} offset:{i*1152}")
    so = ["0", f"s{T1}", f"s{T2}", f"s{T3}"]
    for i in range(4):
        a(f"s_waitcnt lgkmcnt({3-i})")
        for k in range(4):
            y = PB+4*i+k; x = XR+4*i+k; t = TM + 4*(k & 3)
            a(f"v_lshlrev_b32 v{t}, 16, v{y}")
            a(f"v_and_b32 v{t+1}, s52, v{y}")
            a(f"v_lshlrev_b32 v{t+2}, 16, v{x}")
            a(f"v_and_b32 v{t+3}, s52, v{x}")
            a(f"v_add_f32 v{t}, v{t}, v{t+2}")
            a(f"v_add_f32 v{t+1}, v{t+1}, v{t+3}")
            a(f"v_cvt_pk_bf16_f32 v{y}, v{t}, v{t+1}")
        a(f"buffer_store_dwordx4 {vr(PB+4*i,4)}, v{VXO}, s[{SX}:{SX+3}], {so[i]} offen")
    stamp(a, 3, 2, SWS, 144, 56)
    a("s_waitcnt vmcnt(0)")
    a(".Lk4_end:")
    return a.text()

def build(path):
    import k4b
    k4b.G.OPT.update(OPT)
    ks = [("ln_kernel", k1(), 40, 40, 48),
          ("mid_kernel", k2(), 256, 256, 96),
          ("fin_kernel", k4(), 152, 152, 64) if OPT.get("k4v", 2) == 1 else ("fin_kernel", k4b.k4(), 208, 208, 96)]
    if FU():
        ks = [ks[0], ("mid_kernel", ks[1][1] + ks[2][1], 256, 256, 96)]
    ks = [(l, hazard.fix(b, OPT.get("v", 0)), x, y, z) for (l, b, x, y, z) in ks]
    ls = [("ln_kernel", (512,1,1), (256,1,1), 0),
          ("mid_kernel", (256,1,1), (512,1,1), K2_LDS),
          ("fin_kernel", (256,1,1), (512,1,1), 32768*OPT["k4_depth"] if OPT.get("k4v", 2) == 1 else k4b.K4_LDS)]
    if FU():
        ls = [ls[0], ("mid_kernel", (256,1,1), (512,1,1), k4b.K4_LDS)]
    import re
    for (l, b, nv, acc, ns) in ks:
        mv = max([int(x) for x in re.findall(r"\bv(\d+)\b", b)] + [int(x) for x in re.findall(r"\bv\[\d+:(\d+)\]", b)])
        ms = max([int(x) for x in re.findall(r"\bs(\d+)\b", b)] + [int(x) for x in re.findall(r"\bs\[\d+:(\d+)\]", b)])
        assert mv < nv and ms < ns, (l, mv, ms)
    open(path, "w").write(build_file(ks, ls))

if __name__ == "__main__":
    out = sys.argv[1]
    for kv in sys.argv[2:]:
        k, v = kv.split("=")
        OPT[k] = int(v)
    build(out)
```

```python
import sys, struct, math
from asmlib import *
import hazard

MB = 1 << 20
XN_OFF = 0
HO_OFF = 8 * MB
KVP_OFF = 32 * MB
ZP_OFF = 36 * MB
MP_OFF = 40 * MB
FLG_OFF = 48 * MB
TS_OFF = 200 * MB
BIG = 0x10000000
LOG2E = 1.4426950408889634

def f2u(x):
    return struct.unpack("<I", struct.pack("<f", x))[0]
def hx(x):
    return "0x%08x" % (x & 0xffffffff)
def vr(b, n):
    return f"v[{b}:{b+n-1}]" if n > 1 else f"v{b}"

OPT = dict(stamp=False, k4_depth=4, k4_n0=36, spin=200000)

def srd(a, d, ptr, size):
    if ptr != d:
        a(f"s_mov_b32 s{d}, s{ptr}")
        a(f"s_mov_b32 s{d+1}, s{ptr+1}")
    a(f"s_mov_b32 s{d+2}, {hx(size)}")
    a(f"s_mov_b32 s{d+3}, 0x00020000")

def stamp(a, idx, kern, srdws, vt, st):
    if not OPT["stamp"]:
        return
    a(f"s_memtime s[{st}:{st+1}]")
    a(f"s_memrealtime s[{st+2}:{st+3}]")
    a(f"s_lshl_b32 s{st+4}, s2, 3")
    a(f"s_add_u32 s{st+4}, s{st+4}, s3")
    a(f"s_lshl_b32 s{st+4}, s{st+4}, 8")
    a(f"s_add_u32 s{st+4}, s{st+4}, {hx(TS_OFF + kern*2*MB + idx*16)}")
    a("s_waitcnt lgkmcnt(0)")
    for k in range(4):
        a(f"v_mov_b32 v{vt+k}, s{st+k}")
    a(f"v_mov_b32 v{vt+4}, 0")
    a(f"buffer_store_dwordx4 v[{vt}:{vt+3}], v{vt+4}, s[{srdws}:{srdws+3}], s{st+4} offen")

def wave_sum(a, v, t):
    for m in ["quad_perm:[1,0,3,2]", "quad_perm:[2,3,0,1]", "row_half_mirror", "row_mirror"]:
        a("s_nop 1")
        a(f"v_add_f32_dpp v{v}, v{v}, v{v} {m} row_mask:0xf bank_mask:0xf")
    for op in ["v_permlane16_swap_b32", "v_permlane32_swap_b32"]:
        a(f"v_mov_b32 v{t}, v{v}")
        a("s_nop 1")
        a(f"{op} v{v}, v{t}")
        a("s_nop 1")
        a(f"v_add_f32 v{v}, v{v}, v{t}")

def k1():
    a = Asm()
    a(f"""
    s_cmp_ge_u32 s2, 512
    s_cbranch_scc1 .Lk1_end
    s_load_dwordx2 s[4:5], s[0:1], 0
    s_load_dwordx2 s[8:9], s[0:1], 88
    v_lshrrev_b32 v1, 6, v0
    v_and_b32 v2, 63, v0
    s_lshl_b32 s3, s2, 2
    v_add_u32 v1, s3, v1
    v_lshlrev_b32 v1, 11, v1
    v_lshl_add_u32 v1, v2, 4, v1
    s_mov_b32 s6, {hx(4*MB)}
    s_mov_b32 s7, 0x00020000
    s_mov_b32 s10, {hx(256*MB)}
    s_mov_b32 s11, 0x00020000
    s_mov_b32 s12, 0xffff0000
    s_waitcnt lgkmcnt(0)
    buffer_load_dwordx4 v[4:7], v1, s[4:7], 0 offen
    buffer_load_dwordx4 v[8:11], v1, s[4:7], 0 offen offset:1024
    v_lshrrev_b32 v2, 6, v0
    v_readfirstlane_b32 s3, v2
    """)
    stamp(a, 0, 0, 8, 32, 16)
    if OPT.get("cpf1", 0):
        a("v_and_b32 v38, 63, v0\n s_and_b32 s44, s2, 8\n s_lshr_b32 s44, s44, 1\n s_add_u32 s44, s44, s3")
        a(code_pf("k1", 40, 34, 38, 44, 38))
    pf = OPT.get("pf1", 0)
    npf = 1 if OPT.get("cpf1", 0) else 0
    if pf:
        a(f"""
        s_lshl_b32 s13, s2, 2
        s_add_u32 s13, s13, s3
        v_and_b32 v2, 63, v0
        v_lshlrev_b32 v2, 6, v2
        """)
        for bit, (ka, nb) in enumerate([(8, 1024*6144), (40, 1024*7168), (56, 3584*2048), (24, 2*MB)]):
            if pf >> bit & 1:
                r = 24 + 4*bit
                frac = OPT.get("pf1_frac", 1) if bit < 2 else 1
                per = nb // 2048 // frac
                a(f"""
                s_load_dwordx2 s[{r}:{r+1}], s[0:1], {ka}
                s_mov_b32 s{r+2}, {hx(nb)}
                s_mov_b32 s{r+3}, 0x00020000
                s_mul_i32 s14, s13, {per}
                v_cmp_gt_u32 vcc, {per}, v2
                s_waitcnt lgkmcnt(0)
                s_and_saveexec_b64 s[16:17], vcc
                buffer_load_dword v{36+bit}, v2, s[{r}:{r+3}], s14 offen
                s_mov_b64 exec, s[16:17]
                """)
                npf += 1
    a(f"s_waitcnt vmcnt({npf})")
    for i in range(8):
        a(f"v_lshlrev_b32 v{12+2*i}, 16, v{4+i}")
        a(f"v_and_b32 v{13+2*i}, s12, v{4+i}")
    for i in range(8):
        a(f"v_add_f32 v{28+i}, v{12+2*i}, v{13+2*i}")
    for i in range(4):
        a(f"v_add_f32 v{28+i}, v{28+i}, v{32+i}")
    a("v_add_f32 v28, v28, v30\n v_add_f32 v29, v29, v31\n v_add_f32 v28, v28, v29")
    wave_sum(a, 28, 29)
    a(f"v_mul_f32 v28, {hx(f2u(1.0/1024))}, v28")
    for i in range(16):
        a(f"v_sub_f32 v{12+i}, v{12+i}, v28")
    for i in range(4):
        a(f"v_mul_f32 v{30+i}, v{12+i}, v{12+i}")
    for i in range(4, 16):
        a(f"v_fmac_f32 v{30+(i&3)}, v{12+i}, v{12+i}")
    a("v_add_f32 v30, v30, v32\n v_add_f32 v31, v31, v33\n v_add_f32 v30, v30, v31")
    wave_sum(a, 30, 31)
    a(f"v_mov_b32 v31, {hx(f2u(1e-5))}")
    a(f"v_fmac_f32 v31, {hx(f2u(1.0/1024))}, v30")
    a("v_rsq_f32 v31, v31")
    a("s_nop 0")
    for i in range(16):
        a(f"v_mul_f32 v{12+i}, v{12+i}, v31")
    for i in range(8):
        a(f"v_cvt_pk_bf16_f32 v{4+i}, v{12+2*i}, v{13+2*i}")
    a("""
    buffer_store_dwordx4 v[4:7], v1, s[8:11], 0 offen
    buffer_store_dwordx4 v[8:11], v1, s[8:11], 0 offen offset:1024
    """)
    a(f"""
    s_cmp_ge_u32 s2, 296
    s_cbranch_scc1 .Lk1_noflag
    s_cmp_lg_u32 s3, 0
    s_cbranch_scc1 .Lk1_noflag
    v_lshlrev_b32 v2, 2, v0
    s_mov_b64 exec, 15
    s_lshl_b32 s13, s2, 7
    s_add_u32 s13, s13, {hx(FLG_OFF)}
    v_mov_b32 v3, 0
    buffer_store_dword v3, v2, s[8:11], s13 offen
    s_mov_b64 exec, -1
    .Lk1_noflag:
    s_waitcnt vmcnt(0)
    """)
    stamp(a, 1, 0, 8, 32, 16)
    a("""
    s_waitcnt vmcnt(0)
    .Lk1_end:
    """)
    return a.text()

BRING = 98304
SLOTB_M = 14464
SLOTB_A = 12288
WPHI_L = 147456
K2_LDS = 156160

S_W = 3
SRD_A = 4
SRD_B = 8
SRD_WS = 12
SRD_T = 16
S_I = 20
S_JN = 21
S_TG = 22
S_CH = 23
S_CUR, S_NXT, S_PRV = 24, 25, 26
S_BPAR = 27
S_AROW = 28
S_KA = 29
S_BOFF = 30
S_M0A = 31
S_M0B = 32
S_CNT = 33
S_BIG = 34
S_T0, S_T1, S_T2, S_T3 = 36, 37, 38, 39
S_EXB = 40
S_ST = 56
S_C0, S_C1 = 48, 49

class Pipe:
    pass

def k2_dma_A(a, vA, half, slot_sreg, ks_expr_add):
    ins = []
    pre = []
    pre.append(f"s_add_u32 s{S_T0}, s{S_KA}, {ks_expr_add}")
    pre.append(f"s_cmp_lt_u32 s{S_T0}, 2048")
    pre.append(f"s_cselect_b32 s{S_T1}, s{S_AROW}, s{S_BIG}")
    pre.append(f"s_add_u32 s{S_T0}, s{S_T0}, s{S_T1}")
    if half:
        pre.append(f"s_add_u32 s{S_T0}, s{S_T0}, 262144")
    pre.append(f"s_add_u32 s{S_T1}, s{slot_sreg}, s{S_M0A}")
    pre.append(f"s_add_u32 m0, s{S_T1}, {16384*half}")
    pre.append("s_nop 0")
    ins.append("\n".join(pre) + f"\nbuffer_load_dwordx4 v{vA}, s[{SRD_A}:{SRD_A+3}], s{S_T0} offen lds")
    ins.append(f"buffer_load_dwordx4 v{vA+1}, s[{SRD_A}:{SRD_A+3}], s{S_T0} offen offset:1024 lds")
    return ins

SRD_PF = 64
SRD_PF2 = 68
S_PF, S_PFS, S_PFS2 = 72, 73, 74
V_PF, V_PF2, V_PFD = 253, 254, 255
def code_pf(tag, srd, vt, vd, swave, vlane, nw=8):
    t = f"""s_getpc_b64 s[{srd}:{srd+1}]
    .Lpc_{tag}:
    s_add_u32 s{srd}, s{srd}, .Lmid0-.Lpc_{tag}
    s_addc_u32 s{srd+1}, s{srd+1}, {0 if tag == "k1" else -1}
    v_lshlrev_b32 v{vt}, 6, v{vlane}
    v_lshl_add_u32 v{vt}, s{swave}, 12, v{vt}
    v_min_u32 v{vt}, .Lk4_end-.Lmid0, v{vt}
    v_mov_b32 v{vt+1}, s{srd+1}
    v_add_co_u32 v{vt}, vcc, s{srd}, v{vt}
    v_addc_co_u32 v{vt+1}, vcc, 0, v{vt+1}, vcc
    global_load_dword v{vd}, v[{vt}:{vt+1}], off"""
    return t

def k2_dma_B(a, vB, slot_add, e1off, rowbytes, pf=1):
    s = []
    s.append(f"s_add_u32 s{S_T1}, s{S_M0B}, s{S_BPAR}")
    s.append(f"s_add_u32 m0, s{S_T1}, {slot_add}")
    s.append(f"s_mov_b64 exec, s[{S_EXB}:{S_EXB+1}]")
    s.append(f"buffer_load_dwordx4 v{vB}, s[{SRD_B}:{SRD_B+3}], s{S_BOFF} offen lds")
    s.append(f"buffer_load_dwordx4 v{vB+1}, s[{SRD_B}:{SRD_B+3}], s{S_BOFF} offen offset:{e1off} lds")
    if OPT.get("pf2", 0):
        if pf:
            s.append(f"buffer_load_dword v{V_PFD}, v{V_PF}, s[{SRD_PF}:{SRD_PF+3}], s{S_PF} offen")
            s.append(f"s_add_u32 s{S_PF}, s{S_PF}, s{S_PFS}")
        else:
            s.append(f"buffer_load_dword v{V_PFD}, v{V_PF}, s[{SRD_PF}:{SRD_PF+3}], s{S_BIG} offen")
    s.append("s_mov_b64 exec, -1")
    s.append(f"s_add_u32 s{S_BOFF}, s{S_BOFF}, {32*rowbytes}")
    return ["\n".join(s)]

def interleave(a, mf, fill, npre, pre_bar):
    for m in mf[:npre]:
        a(m)
    a(pre_bar)
    rest = mf[npre:]
    for p, t in fill:
        if p < 0:
            a(t)
    for i, m in enumerate(rest):
        a(m)
        for p, t in fill:
            if p == i:
                a(t)
    for p, t in fill:
        if p >= len(rest):
            a(t)

def k2_main(a, tag, mfmas, reads, upd, vDA, vDB, slotb, e1off, rowbytes, npre, rpos, dpos):
    a(f"s_mov_b32 s{S_KA}, 0\n s_mov_b32 s{S_BPAR}, 0")
    for t in k2_dma_A(a, vDA, 0, S_CUR, 0): a(t)
    for t in k2_dma_A(a, vDA, 1, S_CUR, 0): a(t)
    npro = OPT.get("pf2_pro", 0)
    PFX = 1 if OPT.get("pf2", 0) else 0
    for t in k2_dma_B(a, vDB, 0, e1off, rowbytes, npro >= 4): a(t)
    for t in k2_dma_A(a, vDA, 0, S_NXT, 128): a(t)
    for t in k2_dma_B(a, vDB, slotb, e1off, rowbytes, npro >= 3): a(t)
    for t in k2_dma_A(a, vDA, 1, S_NXT, 128): a(t)
    for t in k2_dma_B(a, vDB, 2*slotb, e1off, rowbytes, npro >= 2): a(t)
    for t in k2_dma_A(a, vDA, 0, S_PRV, 256): a(t)
    for t in k2_dma_B(a, vDB, 3*slotb, e1off, rowbytes, npro >= 1): a(t)
    a(f"s_mov_b32 s{S_KA}, 256")
    yield "prologue"
    a(f"s_waitcnt vmcnt({12+3*PFX})\n s_barrier")
    for t in reads(0, 0, 0): a(t)
    a(f"s_mov_b32 s{S_CNT}, 16")
    a(f".Lk2_{tag}_loop:")
    a("s_waitcnt lgkmcnt(0)")
    rd = reads(1, 1, slotb)
    dm = k2_dma_A(a, vDA, 1, S_PRV, 0) + k2_dma_B(a, vDB, 0, e1off, rowbytes)
    if OPT.get("k2_nodma", 0): dm = []
    if OPT.get("k2_noread", 0): rd = []
    fill = [(rpos(i), t) for i, t in enumerate(rd)] + [(dpos[i], t) for i, t in enumerate(dm)]
    interleave(a, mfmas(0), fill, npre, f"s_waitcnt vmcnt({8+2*PFX})\n s_barrier")
    a("s_waitcnt lgkmcnt(0)")
    rd = reads(0, 0, 0)
    dm = k2_dma_A(a, vDA, 0, S_CUR, 128) + k2_dma_B(a, vDB, slotb, e1off, rowbytes)
    if OPT.get("k2_nodma", 0): dm = []
    if OPT.get("k2_noread", 0): rd = []
    fill = [(rpos(i), t) for i, t in enumerate(rd)] + [(dpos[i], t) for i, t in enumerate(dm)]
    interleave(a, mfmas(1), fill, npre, upd + f"\n s_waitcnt vmcnt({8+2*PFX})\n s_barrier")
    if PFX:
        a(f"""
        s_cmp_lg_u32 s{S_CNT}, {OPT.get("pf2_sw", 11)}
        s_cbranch_scc1 .Lk2_{tag}_nosw
        s_mov_b32 s{SRD_PF}, s{SRD_PF2}
        s_mov_b32 s{SRD_PF+1}, s{SRD_PF2+1}
        s_mov_b32 s{SRD_PF+2}, s{SRD_PF2+2}
        s_mov_b32 s{S_PF}, 0
        s_mov_b32 s{S_PFS}, s{S_PFS2}
        v_mov_b32 v{V_PF}, v{V_PF2}
        .Lk2_{tag}_nosw:
        """)
    if OPT.get("cpf", 0):
        a(f"""
        s_cmp_lg_u32 s{S_CNT}, {OPT["cpf"]}
        s_cbranch_scc1 .Lk2_{tag}_nocp
        {code_pf(tag, 88, 242, V_PFD, S_W, 240)}
        .Lk2_{tag}_nocp:
        """)
    a(f"""
    s_xor_b32 s{S_BPAR}, s{S_BPAR}, {2*slotb}
    s_mov_b32 s{S_T0}, s{S_CUR}
    s_mov_b32 s{S_CUR}, s{S_NXT}
    s_mov_b32 s{S_NXT}, s{S_PRV}
    s_mov_b32 s{S_PRV}, s{S_T0}
    s_add_u32 s{S_KA}, s{S_KA}, 128
    s_sub_u32 s{S_CNT}, s{S_CNT}, 1
    s_cmp_lg_u32 s{S_CNT}, 0
    s_cbranch_scc1 .Lk2_{tag}_loop
    """)
    yield "done"

def k2_pf_setup(a, VL, VT, own_ka, own_nb, rowbytes, nl, ka2, nb2, att):
    if not OPT.get("pf2", 0): return
    r0 = OPT.get("pf2_r0", 256) - 64*OPT.get("pf2_pro", 0)
    a(f"""
    s_load_dwordx2 s[{SRD_PF}:{SRD_PF+1}], s[0:1], {own_ka}
    s_load_dwordx2 s[{SRD_PF2}:{SRD_PF2+1}], s[0:1], {ka2}
    s_mov_b32 s{SRD_PF+2}, {hx(own_nb)}
    s_mov_b32 s{SRD_PF+3}, 0x00020000
    s_mov_b32 s{SRD_PF2+2}, {hx(nb2)}
    s_mov_b32 s{SRD_PF2+3}, 0x00020000
    s_mov_b32 s{S_PF}, {hx(r0*rowbytes)}
    s_mov_b32 s{S_PFS}, {hx(64*rowbytes)}
    s_mov_b32 s{S_PFS2}, {hx(1024*nl*64)}
    s_lshl_b32 s{S_T0}, s{S_I}, 3
    s_add_u32 s{S_T0}, s{S_T0}, s{S_W}
    s_lshl_b32 s{S_T1}, s{S_JN}, 6
    s_add_u32 s{S_T1}, s{S_T1}, s{S_T0}
    s_mul_i32 s{S_T1}, s{S_T1}, {nl*64}
    s_mul_i32 s{S_T0}, s{S_T0}, {rowbytes}
    s_mul_i32 s{S_T2}, s{S_JN}, {128 if att else 448}
    s_add_u32 s{S_T0}, s{S_T0}, s{S_T2}
    v_lshlrev_b32 v{VT}, 6, v{VL}
    v_add_u32 v{V_PF2}, s{S_T1}, v{VT}
    """)
    if att:
        a(f"""
        v_lshrrev_b32 v{VT}, 1, v{VL}
        v_lshlrev_b32 v{VT}, 11, v{VT}
        v_and_b32 v{VT+1}, 1, v{VL}
        v_lshl_add_u32 v{VT}, v{VT+1}, 6, v{VT}
        """)
    a(f"""
    v_add_u32 v{V_PF}, s{S_T0}, v{VT}
    v_mov_b32 v{VT}, s{S_BIG}
    v_cmp_gt_u32 vcc, {nl}, v{VL}
    v_cndmask_b32 v{V_PF}, v{VT}, v{V_PF}, vcc
    v_cndmask_b32 v{V_PF2}, v{VT}, v{V_PF2}, vcc
    """)

def FU(): return OPT.get("fuse", 0)
def SC(): return " sc1" if FU() else ""
def MAPJN():
    if FU() or OPT.get("remap", 0):
        return f"""s_lshr_b32 s{S_JN}, s{S_T0}, 1
        s_lshl_b32 s{S_JN}, s{S_JN}, 2
        s_add_u32 s{S_JN}, s{S_JN}, s{S_T1}
        s_and_b32 s{S_T3}, s{S_T0}, 1"""
    return f"""s_lshl_b32 s{S_JN}, s{S_T0}, 1
    s_lshr_b32 s{S_T2}, s{S_T1}, 1
    s_add_u32 s{S_JN}, s{S_JN}, s{S_T2}
    s_and_b32 s{S_T3}, s{S_T1}, 1"""
S_SIG = 84
def DYN():
    if OPT.get("scr", 0):
        return f"""s_and_b32 s{S_T0}, s2, 7
        s_lshl_b32 s{S_T0}, s{S_T0}, 5
        s_lshr_b32 s2, s2, 3
        s_or_b32 s2, s2, s{S_T0}"""
    if not OPT.get("dyn", 0): return ""
    return f"""v_mov_b32 v2, {163840-4}
    s_cmp_lg_u32 s{S_W}, 0
    s_cbranch_scc1 .Ldyn_wait
    s_getreg_b32 s{S_T0}, hwreg(HW_REG_XCC_ID, 0, 3)
    s_mov_b32 s{S_T3}, 0
    v_mov_b32 v3, 0
    s_mov_b64 exec, 1
    s_waitcnt lgkmcnt(0)
    .Ldyn_loop:
    s_lshl_b32 s{S_T1}, s{S_T0}, 7
    s_add_u32 s{S_T1}, s{S_T1}, {hx(FLG_OFF + 288*128)}
    v_mov_b32 v1, 1
    buffer_atomic_add v1, v3, s[{SRD_WS}:{SRD_WS+3}], s{S_T1} offen sc0 sc1
    s_waitcnt vmcnt(0)
    v_readfirstlane_b32 s{S_T2}, v1
    s_cmp_lt_u32 s{S_T2}, 32
    s_cbranch_scc1 .Ldyn_got
    s_add_u32 s{S_T0}, s{S_T0}, 1
    s_and_b32 s{S_T0}, s{S_T0}, 7
    s_add_u32 s{S_T3}, s{S_T3}, 1
    s_cmp_lt_u32 s{S_T3}, 8
    s_cbranch_scc1 .Ldyn_loop
    .Ldyn_got:
    s_lshl_b32 s{S_T2}, s{S_T2}, 3
    s_or_b32 s{S_T2}, s{S_T2}, s{S_T0}
    s_and_b32 s{S_T2}, s{S_T2}, 255
    v_mov_b32 v1, s{S_T2}
    ds_write_b32 v2, v1
    s_mov_b64 exec, -1
    s_waitcnt lgkmcnt(0)
    .Ldyn_wait:
    s_barrier
    ds_read_b32 v1, v2
    s_waitcnt lgkmcnt(0)
    v_readfirstlane_b32 s2, v1
    s_nop 3"""
def k4_early(a, VL, tag):
    if not FU(): return
    n0 = OPT.get("n0", 26)
    VB, VT = 176, 180
    a(f"""
    s_cmp_lt_u32 s3, 4
    s_cbranch_scc1 .Lk4e_{tag}
    s_load_dwordx2 s[76:77], s[0:1], 56
    s_mov_b32 s78, {hx(3584*2048)}
    s_mov_b32 s79, 0x00020000
    s_and_b32 s80, s2, 4
    s_lshr_b32 s81, s2, 6
    s_add_u32 s80, s80, s81
    s_and_b32 s82, s2, 1
    s_mul_i32 s82, s82, {n0*131072}
    s_and_b32 s81, s3, 3
    s_lshl_b32 s83, s81, 12
    s_add_u32 s83, s83, 16384
    v_lshrrev_b32 v{VT}, 4, v{VL}
    v_and_b32 v{VT+1}, 15, v{VL}
    v_lshlrev_b32 v{VT+2}, 1, v{VT}
    v_xor_b32 v{VT+1}, v{VT+1}, v{VT+2}
    s_lshl_b32 s81, s81, 4
    v_add_u32 v{VT}, s81, v{VT}
    v_lshlrev_b32 v{VT}, 11, v{VT}
    v_lshl_add_u32 v{VT}, v{VT+1}, 4, v{VT}
    s_lshl_b32 s80, s80, 8
    v_add_u32 v{VB}, s80, v{VT}
    v_xor_b32 v{VB+1}, 128, v{VB}
    v_add_u32 v{VB+2}, {2*(8192-1024)}, v{VB}
    v_add_u32 v{VB+3}, {3*(8192-1024)}, v{VB+1}
    v_add_u32 v{VB+1}, {8192-1024}, v{VB+1}
    s_waitcnt lgkmcnt(0)
    """)
    for sl in range(5):
        a(f"s_add_u32 m0, s83, {sl*32768}")
        for i in range(4):
            a(f"buffer_load_dwordx4 v{VB+i}, s[76:79], s82 offen offset:{i*1024} lds")
        a("s_add_u32 s82, s82, 131072")
    a(f".Lk4e_{tag}:")

def k2():
    a = Asm()
    VL = 240
    VT = 241
    a(f"""
    .Lmid0:
    s_cmp_ge_u32 s2, 256
    s_cbranch_scc1 {'.Lk4_end' if FU() else '.Lk2_end'}
    s_load_dwordx2 s[{SRD_A}:{SRD_A+1}], s[0:1], 88
    s_load_dwordx2 s[{SRD_WS}:{SRD_WS+1}], s[0:1], 88
    v_lshrrev_b32 v1, 6, v0
    v_and_b32 v{VL}, 63, v0
    v_readfirstlane_b32 s{S_W}, v1
    s_mov_b32 s{SRD_WS+2}, {hx(256*MB)}
    s_mov_b32 s{SRD_WS+3}, 0x00020000
    {DYN()}
    s_and_b32 s{S_T0}, s2, 7
    s_lshr_b32 s{S_T1}, s2, 3
    s_and_b32 s{S_I}, s{S_T1}, 7
    s_lshr_b32 s{S_T1}, s{S_T1}, 3
    {MAPJN()}
    s_and_b32 s{S_TG}, s{S_W}, 3
    s_lshr_b32 s{S_CH}, s{S_W}, 2
    s_mov_b32 s{S_CUR}, 0
    s_mov_b32 s{S_NXT}, 32768
    s_mov_b32 s{S_PRV}, 65536
    s_lshl_b32 s{S_AROW}, s{S_I}, 19
    s_mov_b32 s{S_BOFF}, 0
    s_lshl_b32 s{S_M0A}, s{S_W}, 11
    s_mov_b32 s{S_BIG}, {hx(BIG)}
    s_mov_b32 s{SRD_A+2}, {hx(4*MB)}
    s_mov_b32 s{SRD_A+3}, 0x00020000
    """)
    if OPT.get("cpf0", 0): a(code_pf("k2", 88, 242, V_PFD, S_W, 240))
    VDA, VDB = 236, 238
    a(f"""
    v_lshrrev_b32 v{VT}, 3, v{VL}
    s_lshl_b32 s{S_T0}, s{S_W}, 4
    v_add_u32 v{VT}, s{S_T0}, v{VT}
    v_lshlrev_b32 v{VT}, 11, v{VT}
    v_and_b32 v{VT+1}, 7, v{VL}
    v_lshrrev_b32 v{VT+2}, 4, v{VL}
    v_xor_b32 v{VT+1}, v{VT+1}, v{VT+2}
    v_lshl_add_u32 v{VDA}, v{VT+1}, 4, v{VT}
    v_xor_b32 v{VDA+1}, 64, v{VDA}
    v_add_u32 v{VDA+1}, {8*2048-1024}, v{VDA+1}
    """)
    if OPT.get("k2_force", 0): a(f"s_mov_b32 s{S_T3}, {2-OPT['k2_force']}")
    a(f"""
    s_cmp_eq_u32 s{S_T3}, 0
    s_cbranch_scc1 .Lk2_att
    """)
    k2_mlp(a, VL, VT, VDA, VDB)
    a("s_branch .Lk2_end")
    a(".Lk2_att:")
    k2_att(a, VL, VT, VDA, VDB)
    a(".Lk2_end:")
    if FU():
        a(f"""
        s_waitcnt vmcnt(0) lgkmcnt(0)
        s_barrier
        s_cmp_lg_u32 s3, 5
        s_cbranch_scc1 .Lk2_nosig2
        v_mov_b32 v1, 1
        v_mov_b32 v2, 0
        s_mov_b64 exec, 1
        buffer_atomic_add v1, v2, s[{SRD_WS}:{SRD_WS+3}], s{S_SIG} offen sc1
        s_mov_b64 exec, -1
        .Lk2_nosig2:
        """)
    return a.text()

def k2_mlp(a, VL, VT, VDA, VDB):
    SET = [112, 156]
    VA0, VA1, VA0C, VA1C, VB, VBC = 200, 201, 202, 203, 204, 205
    VBIAS = 206
    a(f"""
    s_load_dwordx2 s[{SRD_B}:{SRD_B+1}], s[0:1], 40
    s_load_dwordx2 s[{SRD_T}:{SRD_T+1}], s[0:1], 48
    s_mov_b32 s{SRD_B+2}, {hx(1024*7168)}
    s_mov_b32 s{SRD_B+3}, 0x00020000
    s_mov_b32 s{SRD_T+2}, 7168
    s_mov_b32 s{SRD_T+3}, 0x00020000
    s_mov_b32 s{S_EXB}, -1
    s_mov_b32 s{S_EXB+1}, 0x00ffffff
    """)
    k2_pf_setup(a, VL, VT, 40, 1024*7168, 7168, 7, 56, 3584*2048, False)
    a(f"""
    v_cmp_le_u32 vcc, 28, v{VL}
    v_cndmask_b32 v{VT}, 0, 1, vcc
    v_mul_u32_u24 v{VT+1}, 28, v{VT}
    v_sub_u32 v{VT+1}, v{VL}, v{VT+1}
    v_lshrrev_b32 v{VT+2}, 1, v{VT+1}
    v_and_b32 v{VT+1}, 1, v{VT+1}
    v_add_u32 v{VT+3}, -1, v{VT+2}
    v_cmp_gt_u32 vcc, 6, v{VT+2}
    v_cndmask_b32 v{VT+3}, v{VT+3}, v{VT+2}, vcc
    v_cmp_eq_u32 vcc, 6, v{VT+2}
    v_cndmask_b32 v{VT+3}, v{VT+3}, 12, vcc
    v_cmp_le_u32 vcc, 13, v{VT+2}
    v_cndmask_b32 v{VT+3}, v{VT+3}, 13, vcc
    v_lshlrev_b32 v{VT+3}, 5, v{VT+3}
    v_lshl_add_u32 v{VT+3}, v{VT+1}, 4, v{VT+3}
    s_lshl_b32 s{S_T0}, s{S_W}, 2
    v_add_u32 v{VT}, s{S_T0}, v{VT}
    v_mul_u32_u24 v{VT}, 7168, v{VT}
    v_add_u32 v{VT}, v{VT}, v{VT+3}
    s_mul_i32 s{S_T0}, s{S_JN}, 448
    v_add_u32 v{VDB}, s{S_T0}, v{VT}
    v_add_u32 v{VDB+1}, {2*7168-896}, v{VDB}
    s_mul_i32 s{S_M0B}, s{S_W}, 1792
    s_lshr_b32 s{S_T0}, s{S_W}, 1
    s_lshl_b32 s{S_T0}, s{S_T0}, 5
    s_add_u32 s{S_M0B}, s{S_M0B}, s{S_T0}
    s_add_u32 s{S_M0B}, s{S_M0B}, {BRING}
    """)
    a(f"""
    v_and_b32 v{VT}, 15, v{VL}
    v_lshrrev_b32 v{VT+1}, 1, v{VT}
    v_lshrrev_b32 v{VT+2}, 4, v{VL}
    v_xor_b32 v{VT+1}, v{VT+1}, v{VT+2}
    s_lshl_b32 s{S_T0}, s{S_TG}, 6
    v_add_u32 v{VT}, s{S_T0}, v{VT}
    v_lshlrev_b32 v{VT}, 7, v{VT}
    v_lshl_add_u32 v{VA0C}, v{VT+1}, 4, v{VT}
    v_xor_b32 v{VA1C}, 64, v{VA0C}
    v_mov_b32 v{VA0}, v{VA0C}
    v_mov_b32 v{VA1}, v{VA1C}
    v_bfe_u32 v{VT}, v{VL}, 2, 2
    v_lshl_add_u32 v{VT}, v{VT+2}, 3, v{VT}
    v_mul_u32_u24 v{VT}, 448, v{VT}
    v_lshl_add_u32 v{VT}, v{VT+2}, 5, v{VT}
    v_and_b32 v{VT+1}, 3, v{VL}
    v_lshl_add_u32 v{VT}, v{VT+1}, 3, v{VT}
    s_mul_i32 s{S_T0}, s{S_CH}, 224
    s_add_u32 s{S_T0}, s{S_T0}, {BRING}
    v_add_u32 v{VBC}, s{S_T0}, v{VT}
    v_mov_b32 v{VB}, v{VBC}
    """)
    a(f"""
    s_mul_i32 s{S_T0}, s{S_JN}, 448
    s_mul_i32 s{S_T1}, s{S_CH}, 192
    s_add_u32 s{S_T1}, s{S_T1}, s{S_T0}
    s_lshl_b32 s{S_T2}, s{S_CH}, 5
    s_add_u32 s{S_T2}, s{S_T2}, s{S_T0}
    v_lshlrev_b32 v{VT}, 3, v{VT+2}
    s_waitcnt lgkmcnt(0)
    """)
    stamp(a, 0, 1, SRD_WS, 248, S_ST)
    for c in range(6):
        a(f"buffer_load_dwordx2 v[{VBIAS+2*c}:{VBIAS+2*c+1}], v{VT}, s[{SRD_T}:{SRD_T+3}], s{S_T1} offen offset:{32*c}")
    a(f"buffer_load_dwordx2 v[{VBIAS+12}:{VBIAS+13}], v{VT}, s[{SRD_T}:{SRD_T+3}], s{S_T2} offen offset:384")

    def acc(c, tt): return (c*4+tt)*4
    def mfmas(s):
        b = SET[s]
        return [f"v_mfma_f32_16x16x32_bf16 {vr(acc(c,tt),4)}, {vr(b+16+4*c,4)}, {vr(b+4*tt,4)}, {vr(acc(c,tt),4)}"
                for c in range(7) for tt in range(4)]
    def reads(s, sub, bimm):
        b = SET[s]
        va = VA1 if sub else VA0
        r = []
        def w(c):
            for i in range(2):
                r.append(f"ds_read_b64_tr_b16 {vr(b+16+4*c+2*i,2)}, v{VB} offset:{bimm+i*1792+c*32}")
        w(0)
        for tt in range(4):
            r.append(f"ds_read_b128 {vr(b+4*tt,4)}, v{va} offset:{tt*2048}")
        for c in range(1, 7):
            w(c)
        return r
    upd = f"""
    s_xor_b32 s{S_T2}, s{S_BPAR}, {2*SLOTB_M}
    v_add_u32 v{VA0}, s{S_NXT}, v{VA0C}
    v_add_u32 v{VA1}, s{S_NXT}, v{VA1C}
    v_add_u32 v{VB}, s{S_T2}, v{VBC}
    """
    g = k2_main(a, "mlp", mfmas, reads, upd, VDA, VDB, SLOTB_M, 896, 7168, 4,
                lambda i: i - 1, [18, 20, 22])
    next(g)
    a(f"s_waitcnt vmcnt({22 if OPT.get('pf2', 0) else 18})")
    a(f"s_mov_b32 s{S_T0}, 0xffff0000")
    for c in range(7):
        for j in range(2):
            a(f"v_lshlrev_b32 v{acc(c,0)+2*j}, 16, v{VBIAS+2*c+j}")
            a(f"v_and_b32 v{acc(c,0)+2*j+1}, s{S_T0}, v{VBIAS+2*c+j}")
        for tt in range(1, 4):
            for r in range(4):
                a(f"v_mov_b32 v{acc(c,tt)+r}, v{acc(c,0)+r}")
    next(g)
    stamp(a, 1, 1, SRD_WS, 248, S_ST)
    c0 = -2.0*math.sqrt(2.0/math.pi)*LOG2E
    c1 = c0*0.044715
    a(f"""
    s_mov_b32 s{S_C0}, {hx(f2u(c0))}
    s_mov_b32 s{S_C1}, {hx(f2u(c1))}
    v_mov_b32 v{VT+4}, s{S_C0}
    s_lshl_b32 s{S_T0}, s{S_I}, 1
    s_lshr_b32 s{S_T1}, s{S_TG}, 1
    s_add_u32 s{S_T0}, s{S_T0}, s{S_T1}
    s_mul_i32 s{S_T0}, s{S_T0}, 144
    s_mul_i32 s{S_T1}, s{S_JN}, 7
    s_add_u32 s{S_T0}, s{S_T0}, s{S_T1}
    s_add_u32 s{S_T1}, s{S_T0}, 6
    s_mul_i32 s{S_T2}, s{S_CH}, 3
    s_add_u32 s{S_T0}, s{S_T0}, s{S_T2}
    s_lshl_b32 s{S_T0}, s{S_T0}, 13
    s_lshl_b32 s{S_T1}, s{S_T1}, 13
    s_add_u32 s{S_T0}, s{S_T0}, {hx(HO_OFF)}
    s_add_u32 s{S_T1}, s{S_T1}, {hx(HO_OFF)}
    s_lshl_b32 s{S_T2}, s{S_CH}, 3
    s_add_u32 s{S_T1}, s{S_T1}, s{S_T2}
    v_lshrrev_b32 v{VT}, 4, v{VL}
    v_lshlrev_b32 v{VT}, 11, v{VT}
    v_and_b32 v{VT+1}, 15, v{VL}
    v_lshl_add_u32 v{VT}, v{VT+1}, 4, v{VT}
    s_and_b32 s{S_T2}, s{S_TG}, 1
    s_lshl_b32 s{S_T2}, s{S_T2}, 10
    v_add_u32 v{VT}, s{S_T2}, v{VT}
    s_waitcnt lgkmcnt(0)
    s_nop 7
    """)
    T = 112
    def gelu4(regs, tb):
        n = len(regs)
        for k, u in enumerate(regs): a(f"v_mul_f32 v{tb+k}, v{u}, v{u}")
        for k, u in enumerate(regs): a(f"v_fma_f32 v{tb+k}, v{tb+k}, s{S_C1}, v{VT+4}")
        for k, u in enumerate(regs): a(f"v_mul_f32 v{tb+k}, v{tb+k}, v{u}")
        for k, u in enumerate(regs): a(f"v_exp_f32 v{tb+k}, v{tb+k}")
        for k, u in enumerate(regs): a(f"v_add_f32 v{tb+k}, 1.0, v{tb+k}")
        for k, u in enumerate(regs): a(f"v_rcp_f32 v{tb+k}, v{tb+k}")
        for k, u in enumerate(regs): a(f"v_mul_f32 v{tb+k}, v{tb+k}, v{u}")
    k = 0
    for b in range(3):
        for tt in range(4):
            regs = [acc(2*b, tt)+r for r in range(4)] + [acc(2*b+1, tt)+r for r in range(4)]
            tb = T + 8*(k & 1); pb = T + 16 + 4*(k & 3); k += 1
            gelu4(regs, tb)
            for j in range(4):
                a(f"v_cvt_pk_bf16_f32 v{pb+j}, v{tb+2*j}, v{tb+2*j+1}")
            a(f"buffer_store_dwordx4 {vr(pb,4)}, v{VT}, s[{SRD_WS}:{SRD_WS+3}], s{S_T0} offen offset:{tt*256}{SC()}")
        if b == 0 and FU():
            a(f"s_lshl_b32 s{S_SIG}, s{S_I}, 7\n s_add_u32 s{S_SIG}, s{S_SIG}, {hx(FLG_OFF+256*128)}")
            a("s_waitcnt vmcnt(4)\n s_barrier")
            k4_early(a, VL, "m")
        if b < 2:
            a(f"s_add_u32 s{S_T0}, s{S_T0}, 8192")
    for t2 in range(2):
        regs = [acc(6, 2*t2)+r for r in range(4)] + [acc(6, 2*t2+1)+r for r in range(4)]
        tb = T + 8*(k & 1); pb = T + 16 + 4*(k & 3); k += 1
        gelu4(regs, tb)
        for j in range(4):
            a(f"v_cvt_pk_bf16_f32 v{pb+j}, v{tb+2*j}, v{tb+2*j+1}")
        a(f"buffer_store_dwordx2 {vr(pb,2)}, v{VT}, s[{SRD_WS}:{SRD_WS+3}], s{S_T1} offen offset:{(2*t2)*256}{SC()}")
        a(f"buffer_store_dwordx2 {vr(pb+2,2)}, v{VT}, s[{SRD_WS}:{SRD_WS+3}], s{S_T1} offen offset:{(2*t2+1)*256}{SC()}")
    stamp(a, 2, 1, SRD_WS, 248, S_ST)
    if not FU():
        a("s_waitcnt vmcnt(0)")
        stamp(a, 3, 1, SRD_WS, 248, S_ST)
        a("s_waitcnt vmcnt(0)")

def mf32(d, A, B, C):
    c = vr(C, 16) if isinstance(C, int) and C >= 0 else "0"
    return f"v_mfma_f32_32x32x16_bf16 {vr(d,16)}, {vr(A,4)}, {vr(B,4)}, {c}"

def k2_att(a, VL, VT, VDA, VDB):
    ACC = dict(Q=[0, 16], K=[32, 48], V=[64, 80])
    SET = [96, 136]
    VA = [176, 177, 178, 179]; VAC = [180, 181, 182, 183]; VB, VBC = 184, 185
    a(f"""
    s_load_dwordx2 s[{SRD_B}:{SRD_B+1}], s[0:1], 8
    s_load_dwordx2 s[{SRD_T}:{SRD_T+1}], s[0:1], 16
    s_mov_b32 s{SRD_B+2}, {hx(1024*6144)}
    s_mov_b32 s{SRD_B+3}, 0x00020000
    s_mov_b32 s{SRD_T+2}, 65536
    s_mov_b32 s{SRD_T+3}, 0x00020000
    s_mov_b32 s{S_EXB}, -1
    s_mov_b32 s{S_EXB+1}, 0x0000ffff
    """)
    k2_pf_setup(a, VL, VT, 8, 1024*6144, 6144, 6, 24, 2*MB, True)
    a(f"""
    v_cmp_le_u32 vcc, 24, v{VL}
    v_cndmask_b32 v{VT}, 0, 1, vcc
    v_mul_u32_u24 v{VT+1}, 24, v{VT}
    v_sub_u32 v{VT+1}, v{VL}, v{VT+1}
    v_lshrrev_b32 v{VT+2}, 3, v{VT+1}
    v_min_u32 v{VT+2}, 2, v{VT+2}
    v_and_b32 v{VT+1}, 7, v{VT+1}
    v_lshlrev_b32 v{VT+2}, 11, v{VT+2}
    v_lshl_add_u32 v{VT+2}, v{VT+1}, 4, v{VT+2}
    s_lshl_b32 s{S_T0}, s{S_W}, 2
    v_add_u32 v{VT}, s{S_T0}, v{VT}
    v_mul_u32_u24 v{VT}, 6144, v{VT}
    s_lshl_b32 s{S_T0}, s{S_JN}, 7
    v_add_u32 v{VT}, s{S_T0}, v{VT}
    v_add_u32 v{VDB}, v{VT}, v{VT+2}
    v_xor_b32 v{VT+2}, 64, v{VT+2}
    v_add_u32 v{VDB+1}, v{VT}, v{VT+2}
    v_add_u32 v{VDB+1}, {2*6144-768}, v{VDB+1}
    s_mul_i32 s{S_M0B}, s{S_W}, 1536
    s_add_u32 s{S_M0B}, s{S_M0B}, {BRING}
    """)
    a(f"""
    v_and_b32 v{VT}, 31, v{VL}
    v_bfe_u32 v{VT+1}, v{VL}, 1, 3
    v_lshrrev_b32 v{VT+2}, 5, v{VL}
    v_xor_b32 v{VT+1}, v{VT+1}, v{VT+2}
    s_lshl_b32 s{S_T0}, s{S_TG}, 6
    v_add_u32 v{VT}, s{S_T0}, v{VT}
    v_lshlrev_b32 v{VT}, 7, v{VT}
    v_lshl_add_u32 v{VAC[0]}, v{VT+1}, 4, v{VT}
    v_xor_b32 v{VAC[1]}, 32, v{VAC[0]}
    v_xor_b32 v{VAC[2]}, 64, v{VAC[0]}
    v_xor_b32 v{VAC[3]}, 0x60, v{VAC[0]}
    v_mov_b32 v{VA[0]}, v{VAC[0]}
    v_mov_b32 v{VA[1]}, v{VAC[1]}
    v_mov_b32 v{VA[2]}, v{VAC[2]}
    v_mov_b32 v{VA[3]}, v{VAC[3]}
    v_bfe_u32 v{VT}, v{VL}, 2, 2
    v_lshl_add_u32 v{VT}, v{VT+2}, 3, v{VT}
    v_mul_u32_u24 v{VT}, 384, v{VT}
    v_bfe_u32 v{VT+1}, v{VL}, 3, 1
    v_xor_b32 v{VT+1}, s{S_CH}, v{VT+1}
    v_lshl_add_u32 v{VT}, v{VT+1}, 6, v{VT}
    v_bfe_u32 v{VT+1}, v{VL}, 4, 1
    v_lshl_add_u32 v{VT}, v{VT+1}, 5, v{VT}
    v_and_b32 v{VT+1}, 3, v{VL}
    v_lshl_add_u32 v{VT}, v{VT+1}, 3, v{VT}
    v_add_u32 v{VBC}, {BRING}, v{VT}
    v_mov_b32 v{VB}, v{VBC}
    """)
    a(f"""
    s_lshl_b32 s{S_T0}, s{S_JN}, 12
    s_lshl_b32 s{S_T1}, s{S_W}, 9
    s_add_u32 s{S_T0}, s{S_T0}, s{S_T1}
    s_add_u32 m0, s{S_T1}, {WPHI_L}
    v_lshlrev_b32 v{VT}, 4, v{VL}
    s_waitcnt lgkmcnt(0)
    """)
    stamp(a, 0, 1, SRD_WS, 248, S_ST)
    a(f"""
    s_mov_b32 exec_hi, 0
    buffer_load_dwordx4 v{VT}, s[{SRD_T}:{SRD_T+3}], s{S_T0} offen lds
    s_mov_b64 exec, -1
    """)
    def mfmas(s):
        b = SET[s]
        r = []
        for st in range(2):
            for m, nm in enumerate("QKV"):
                for tt in range(2):
                    wf = b + 16 + (st*3+m)*4
                    tf = b + (st*2+tt)*4
                    d = ACC[nm][tt]
                    if nm == "V":
                        r.append(mf32(d, tf, wf, d))
                    else:
                        r.append(mf32(d, wf, tf, d))
        return r
    def reads(s, sub, bimm):
        b = SET[s]
        r = []
        for st in range(2):
            va = VA[2*sub+st]
            def w(m):
                for i in range(2):
                    r.append(f"ds_read_b64_tr_b16 {vr(b+16+(st*3+m)*4+2*i,2)}, v{VB} offset:{bimm+st*6144+i*1536+m*128}")
            w(0)
            for tt in range(2):
                r.append(f"ds_read_b128 {vr(b+(st*2+tt)*4,4)}, v{va} offset:{tt*4096}")
            w(1); w(2)
        return r
    upd = f"s_xor_b32 s{S_T2}, s{S_BPAR}, {2*SLOTB_A}\n" + \
        "\n".join(f"v_add_u32 v{VA[k]}, s{S_NXT}, v{VAC[k]}" for k in range(4)) + \
        f"\nv_add_u32 v{VB}, s{S_T2}, v{VBC}"
    g = k2_main(a, "att", mfmas, reads, upd, VDA, VDB, SLOTB_A, 768, 6144, 2,
                lambda i: (i // 2) - 1, [7, 8, 9])
    next(g)
    for r in range(96):
        a(f"v_mov_b32 v{r}, 0")
    next(g)
    stamp(a, 1, 1, SRD_WS, 248, S_ST)
    WF = 186
    IDF = 194
    ONE = 202
    KV = [96, 112]
    ZA = [128, 144]
    P = 160
    E = [206, 220]
    EP, EM = 206, 222
    TR = 160
    MX, MN, SP, SM, TT = 241, 242, 243, 244, 245
    a(f"""
    s_mov_b32 s{S_C0}, {hx(f2u(LOG2E))}
    s_waitcnt vmcnt(0) lgkmcnt(0)
    s_barrier
    """)
    a(f"""
    v_lshrrev_b32 v{TT}, 5, v{VL}
    v_bfe_u32 v{TT+1}, v{VL}, 2, 2
    v_lshl_add_u32 v{TT+1}, v{TT}, 2, v{TT+1}
    v_lshlrev_b32 v{TT+1}, 6, v{TT+1}
    v_bfe_u32 v{TT+2}, v{VL}, 4, 1
    v_lshl_add_u32 v{TT+1}, v{TT+2}, 5, v{TT+1}
    v_and_b32 v{TT+2}, 3, v{VL}
    v_lshl_add_u32 v{TT+1}, v{TT+2}, 3, v{TT+1}
    s_lshl_b32 s{S_T0}, s{S_CH}, 11
    s_add_u32 s{S_T0}, s{S_T0}, {WPHI_L}
    v_add_u32 v{TT+1}, s{S_T0}, v{TT+1}
    """)
    for s in range(2):
        for i in range(2):
            a(f"ds_read_b64_tr_b16 {vr(WF+4*s+2*i,2)}, v{TT+1} offset:{(16*s+8*i)*64}")
    a(f"""
    v_and_b32 v{TT+2}, 31, v{VL}
    v_lshlrev_b32 v{TT}, 2, v{TT}
    v_sub_u32 v{TT+2}, v{TT+2}, v{TT}
    v_mov_b32 v{TT}, 0x3f80
    v_mov_b32 v{TT+3}, 0x3f800000
    """)
    for s in range(2):
        for k in range(4):
            base = 16*s + 8*(k >> 1) + 2*(k & 1)
            d = IDF + 4*s + k
            a(f"v_cmp_eq_u32 vcc, {base}, v{TT+2}")
            a(f"v_cndmask_b32 v{d}, 0, v{TT}, vcc")
            a(f"v_cmp_eq_u32 vcc, {base+1}, v{TT+2}")
            a(f"v_cndmask_b32 v{d}, v{d}, v{TT+3}, vcc")
    for k in range(4):
        a(f"v_mov_b32 v{ONE+k}, 0x3f803f80")

    def pack(dst, src, n=8):
        for j in range(n):
            a(f"v_cvt_pk_bf16_f32 v{dst+j}, v{src+2*j}, v{src+2*j+1}")

    def xhalf(op, v, t):
        a(f"v_mov_b32 v{t}, v{v}")
        a("s_nop 1")
        a(f"v_permlane32_swap_b32 v{v}, v{t}")
        a("s_nop 1")
        a(f"{op} v{v}, v{v}, v{t}")

    def softmax(src, outp, outm):
        pack(src, src)
        a("s_nop 1")
        a(mf32(P, WF, src, None))
        a(mf32(P, WF+4, src+4, P))
        a("s_nop 15\n s_nop 3")
        a(f"v_max3_f32 v{MX}, v{P}, v{P+1}, v{P+2}")
        a(f"v_min3_f32 v{MN}, v{P}, v{P+1}, v{P+2}")
        for k in range(3, 15, 2):
            a(f"v_max3_f32 v{MX}, v{MX}, v{P+k}, v{P+k+1}")
            a(f"v_min3_f32 v{MN}, v{MN}, v{P+k}, v{P+k+1}")
        a(f"v_max_f32 v{MX}, v{MX}, v{P+15}")
        a(f"v_min_f32 v{MN}, v{MN}, v{P+15}")
        a(f"v_mov_b32 v{TT}, v{MX}\n v_mov_b32 v{TT+1}, v{MN}\n s_nop 1")
        a(f"v_permlane32_swap_b32 v{MX}, v{TT}\n v_permlane32_swap_b32 v{MN}, v{TT+1}\n s_nop 1")
        a(f"v_max_f32 v{MX}, v{MX}, v{TT}\n v_min_f32 v{MN}, v{MN}, v{TT+1}")
        a(f"v_mul_f32 v{MX}, s{S_C0}, v{MX}\n v_mul_f32 v{MN}, s{S_C0}, v{MN}")
        for k in range(16):
            a(f"v_fma_f32 v{EP+k}, v{P+k}, s{S_C0}, -v{MX}")
            a(f"v_fma_f32 v{EM+k}, -v{P+k}, s{S_C0}, v{MN}")
        for k in range(16):
            a(f"v_exp_f32 v{EP+k}, v{EP+k}")
            a(f"v_exp_f32 v{EM+k}, v{EM+k}")
        a(f"v_add_f32 v{SP}, v{EP}, v{EP+1}\n v_add_f32 v{SM}, v{EM}, v{EM+1}")
        a(f"v_add_f32 v{TT}, v{EP+2}, v{EP+3}\n v_add_f32 v{TT+1}, v{EM+2}, v{EM+3}")
        for k in range(4, 16, 2):
            a(f"v_add_f32 v{SP}, v{SP}, v{EP+k}\n v_add_f32 v{SM}, v{SM}, v{EM+k}")
            a(f"v_add_f32 v{TT}, v{TT}, v{EP+k+1}\n v_add_f32 v{TT+1}, v{TT+1}, v{EM+k+1}")
        a(f"v_add_f32 v{SP}, v{SP}, v{TT}\n v_add_f32 v{SM}, v{SM}, v{TT+1}")
        a(f"v_mov_b32 v{TT}, v{SP}\n v_mov_b32 v{TT+1}, v{SM}\n s_nop 1")
        a(f"v_permlane32_swap_b32 v{SP}, v{TT}\n v_permlane32_swap_b32 v{SM}, v{TT+1}\n s_nop 1")
        a(f"v_add_f32 v{SP}, v{SP}, v{TT}\n v_add_f32 v{SM}, v{SM}, v{TT+1}")
        a(f"v_rcp_f32 v{SP}, v{SP}\n v_rcp_f32 v{SM}, v{SM}\n s_nop 0")
        for k in range(16):
            a(f"v_mul_f32 v{EP+k}, v{EP+k}, v{SP}")
            a(f"v_mul_f32 v{EM+k}, v{EM+k}, v{SM}")
        pack(outp, EP)
        pack(outm, EM)

    a("s_waitcnt lgkmcnt(0)")
    for tt in range(2):
        pack(ACC["V"][tt], ACC["V"][tt])
    for tt in range(2):
        src = ACC["K"][tt]
        softmax(src, src, src+8)
        for pm in range(2):
            ph = src + 8*pm
            a("s_nop 1")
            a(mf32(TR, ph, IDF, None))
            a(mf32(TR, ph+4, IDF+4, TR))
            a("s_nop 15\n s_nop 3")
            pack(EP, TR)
            a("s_nop 1")
            v = ACC["V"][tt]
            first = (tt == 0)
            a(mf32(KV[pm], EP, v, None if first else KV[pm]))
            a(mf32(ZA[pm], ONE, EP, None if first else ZA[pm]))
            a(mf32(KV[pm], EP+4, v+4, KV[pm]))
            a(mf32(ZA[pm], ONE, EP+4, ZA[pm]))
            a("s_nop 7")
    a("s_nop 15\n s_nop 3")
    VW = TT
    a(f"""
    s_lshl_b32 s{S_T0}, s{S_W}, 13
    v_lshlrev_b32 v{VW+1}, 4, v{VL}
    v_add_u32 v{VW}, s{S_T0}, v{VW+1}
    v_cmp_gt_u32 vcc, 32, v{VL}
    v_cndmask_b32 v{VW+2}, v{ZA[1]}, v{ZA[0]}, vcc
    s_lshl_b32 s{S_T0}, s{S_W}, 8
    s_add_u32 s{S_T0}, s{S_T0}, 65536
    v_lshlrev_b32 v{VW+3}, 2, v{VL}
    v_add_u32 v{VW+4}, s{S_T0}, v{VW+3}
    """)
    for i in range(8):
        a(f"ds_write_b128 v{VW}, {vr(KV[i>>2]+4*(i&3),4)} offset:{i*1024}")
    a(f"ds_write_b32 v{VW+4}, v{VW+2}")
    a(f"""
    s_lshl_b32 s{S_T0}, s{S_CH}, 15
    s_lshl_b32 s{S_T1}, s{S_TG}, 11
    s_add_u32 s{S_T0}, s{S_T0}, s{S_T1}
    v_add_u32 v{VW}, s{S_T0}, v{VW+1}
    s_lshl_b32 s{S_T0}, s{S_CH}, 10
    s_add_u32 s{S_T0}, s{S_T0}, 65536
    v_add_u32 v{VW+4}, s{S_T0}, v{VW+3}
    s_waitcnt lgkmcnt(0)
    s_barrier
    """)
    R = 96
    for k in range(4):
        for e in range(2):
            a(f"ds_read_b128 {vr(R+(k*2+e)*4,4)}, v{VW} offset:{k*8192+e*1024}")
    ZR = 128
    for k in range(4):
        a(f"ds_read_b32 v{ZR+k}, v{VW+4} offset:{k*256}")
    S_KVP, S_ZP, S_HEAD = 50, 51, 52
    a(f"""
    s_lshl_b32 s{S_HEAD}, s{S_JN}, 1
    s_add_u32 s{S_HEAD}, s{S_HEAD}, s{S_CH}
    s_lshl_b32 s{S_T0}, s{S_HEAD}, 3
    s_add_u32 s{S_T0}, s{S_T0}, s{S_I}
    s_lshl_b32 s{S_ZP}, s{S_T0}, 8
    s_add_u32 s{S_ZP}, s{S_ZP}, {hx(ZP_OFF)}
    s_lshl_b32 s{S_KVP}, s{S_T0}, 13
    s_lshl_b32 s{S_T1}, s{S_TG}, 11
    s_add_u32 s{S_KVP}, s{S_KVP}, s{S_T1}
    s_add_u32 s{S_KVP}, s{S_KVP}, {hx(KVP_OFF)}
    s_waitcnt lgkmcnt(0)
    """)
    for j in range(8):
        a(f"v_add_f32 v{R+j}, v{R+j}, v{R+8+j}")
        a(f"v_add_f32 v{R+16+j}, v{R+16+j}, v{R+24+j}")
    a(f"v_add_f32 v{ZR}, v{ZR}, v{ZR+1}\n v_add_f32 v{ZR+2}, v{ZR+2}, v{ZR+3}")
    for j in range(8):
        a(f"v_add_f32 v{R+j}, v{R+j}, v{R+16+j}")
    a(f"v_add_f32 v{ZR}, v{ZR}, v{ZR+2}")
    VO16, VO4 = 238, 239
    a(f"v_mov_b32 v{VO16}, v{VW+1}\n v_mov_b32 v{VO4}, v{VW+3}")
    for e in range(2):
        a(f"buffer_store_dwordx4 {vr(R+4*e,4)}, v{VO16}, s[{SRD_WS}:{SRD_WS+3}], s{S_KVP} offen offset:{e*1024} sc1")
    a(f"""
    s_cmp_lg_u32 s{S_TG}, 0
    s_cbranch_scc1 .Lk2_noz
    buffer_store_dword v{ZR}, v{VO4}, s[{SRD_WS}:{SRD_WS+3}], s{S_ZP} offen sc1
    .Lk2_noz:
    """)
    stamp(a, 2, 1, SRD_WS, 248, S_ST)
    softmax(ACC["Q"][0], ACC["Q"][0], ACC["Q"][0]+8)
    a(f"""
    s_waitcnt vmcnt(0) lgkmcnt(0)
    s_barrier
    s_lshl_b32 s{S_T3}, s{S_JN}, 7
    s_add_u32 s{S_T3}, s{S_T3}, {hx(FLG_OFF+272*128)}
    s_cmp_lg_u32 s{S_W}, 0
    s_cbranch_scc1 .Lk2_nosig
    v_mov_b32 v{TT}, 1
    v_mov_b32 v{TT+1}, 0
    s_mov_b64 exec, 1
    buffer_atomic_add v{TT}, v{TT+1}, s[{SRD_WS}:{SRD_WS+3}], s{S_T3} offen sc1
    s_mov_b64 exec, -1
    .Lk2_nosig:
    """)
    if FU():
        a(f"s_lshl_b32 s{S_SIG}, s{S_I}, 7\n s_add_u32 s{S_SIG}, s{S_SIG}, {hx(FLG_OFF+264*128)}")
        k4_early(a, VL, "a")
    softmax(ACC["Q"][1], ACC["Q"][1], ACC["Q"][1]+8)
    stamp(a, 3, 1, SRD_WS, 248, S_ST)
    a(f"""
    s_cmp_lg_u32 s{S_W}, 0
    s_cbranch_scc1 .Lk2_polled
    s_mov_b32 s{S_CNT}, {OPT['spin']}
    v_mov_b32 v{TT+1}, 0
    .Lk2_poll:
    buffer_load_dword v{TT}, v{TT+1}, s[{SRD_WS}:{SRD_WS+3}], s{S_T3} offen sc1
    s_waitcnt vmcnt(0)
    v_readfirstlane_b32 s{S_T0}, v{TT}
    s_sub_u32 s{S_CNT}, s{S_CNT}, 1
    s_cmp_eq_u32 s{S_CNT}, 0
    s_cbranch_scc1 .Lk2_polled
    s_cmp_lt_u32 s{S_T0}, 8
    s_cbranch_scc1 .Lk2_poll
    .Lk2_polled:
    s_barrier
    """)
    stamp(a, 4, 1, SRD_WS, 248, S_ST)
    a(f"""
    s_lshl_b32 s{S_T0}, s{S_HEAD}, 16
    s_lshl_b32 s{S_T1}, s{S_TG}, 11
    s_add_u32 s{S_T0}, s{S_T0}, s{S_T1}
    s_add_u32 s{S_T0}, s{S_T0}, {hx(KVP_OFF)}
    s_lshl_b32 s{S_T1}, s{S_HEAD}, 11
    s_add_u32 s{S_T1}, s{S_T1}, {hx(ZP_OFF)}
    """)
    L = 96
    ZL = 160
    for k in range(8):
        for e in range(2):
            a(f"buffer_load_dwordx4 {vr(L+(k*2+e)*4,4)}, v{VO16}, s[{SRD_WS}:{SRD_WS+3}], s{S_T0} offen offset:{e*1024} sc1")
        if k < 7:
            a(f"s_add_u32 s{S_T0}, s{S_T0}, 8192")
    for k in range(8):
        a(f"buffer_load_dword v{ZL+k}, v{VO4}, s[{SRD_WS}:{SRD_WS+3}], s{S_T1} offen offset:{k*256} sc1")
    KVF, ZF = 67584, 75776
    a(f"""
    s_lshl_b32 s{S_T0}, s{S_W}, 10
    s_add_u32 s{S_T0}, s{S_T0}, {KVF}
    v_add_u32 v{TT}, s{S_T0}, v{VO16}
    s_lshl_b32 s{S_T0}, s{S_W}, 7
    s_add_u32 s{S_T0}, s{S_T0}, {ZF}
    v_lshlrev_b32 v{TT+1}, 1, v{VL}
    v_add_u32 v{TT+1}, s{S_T0}, v{TT+1}
    v_lshrrev_b32 v{TT+2}, 5, v{VL}
    v_lshlrev_b32 v{TT+2}, 3, v{TT+2}
    v_add_u32 v{TT+2}, s{S_T0}, v{TT+2}
    s_lshl_b32 s{S_T0}, s{S_CH}, 12
    s_add_u32 s{S_T0}, s{S_T0}, {KVF}
    v_add_u32 v{MX}, s{S_T0}, v{VO16}
    """)
    for k in range(1, 8):
        a(f"s_waitcnt vmcnt({8 + 2*(7-k)})")
        for j in range(8):
            a(f"v_add_f32 v{L+j}, v{L+j}, v{L+8*k+j}")
    pack(L, L, 4)
    a(f"ds_write_b128 v{TT}, {vr(L,4)}")
    a("s_waitcnt vmcnt(0)")
    for k in range(4):
        a(f"v_add_f32 v{ZL+k}, v{ZL+k}, v{ZL+4+k}")
    a(f"v_add_f32 v{ZL}, v{ZL}, v{ZL+2}\n v_add_f32 v{ZL+1}, v{ZL+1}, v{ZL+3}\n v_add_f32 v{ZL}, v{ZL}, v{ZL+1}")
    a(f"v_cvt_pk_bf16_f32 v{ZL}, v{ZL}, v{ZL}")
    a(f"ds_write_b16 v{TT+1}, v{ZL}")
    a("s_waitcnt lgkmcnt(0)\n s_barrier")
    KF = 96
    ZFR = 112
    for k in range(4):
        a(f"ds_read_b128 {vr(KF+4*k,4)}, v{MX} offset:{k*1024}")
    for k in range(4):
        a(f"ds_read2_b64 {vr(ZFR+4*k,4)}, v{TT+2} offset0:{4*k} offset1:{4*k+2}")
    a(f"""
    s_lshl_b32 s{S_T0}, s{S_I}, 1
    s_lshr_b32 s{S_T1}, s{S_TG}, 1
    s_add_u32 s{S_T0}, s{S_T0}, s{S_T1}
    s_mul_i32 s{S_T0}, s{S_T0}, 144
    s_add_u32 s{S_T0}, s{S_T0}, s{S_HEAD}
    s_add_u32 s{S_T0}, s{S_T0}, 112
    s_lshl_b32 s{S_T0}, s{S_T0}, 13
    s_add_u32 s{S_T0}, s{S_T0}, {hx(HO_OFF)}
    s_and_b32 s{S_T1}, s{S_TG}, 1
    s_lshl_b32 s{S_T1}, s{S_T1}, 10
    s_add_u32 s{S_T0}, s{S_T0}, s{S_T1}
    s_add_u32 s{S_T1}, s{S_T0}, 4096
    v_lshrrev_b32 v{TT}, 5, v{VL}
    v_lshlrev_b32 v{TT}, 11, v{TT}
    v_and_b32 v{TT+1}, 31, v{VL}
    v_lshl_add_u32 v{TT}, v{TT+1}, 4, v{TT}
    s_waitcnt lgkmcnt(0)
    """)
    NUM = [128, 144]; DEN = [160, 206]
    for tt in range(2):
        q = ACC["Q"][tt]
        for k in range(4):
            a(mf32(DEN[tt], ZFR+4*k, q+4*k, None if k == 0 else DEN[tt]))
            a(mf32(NUM[tt], KF+4*k, q+4*k, None if k == 0 else NUM[tt]))
    a("s_nop 15\n s_nop 3")
    O = 32
    for tt in range(2):
        d = DEN[tt]
        a(f"v_add_f32 v{d}, {hx(f2u(1e-6))}, v{d}")
        a(f"v_rcp_f32 v{d}, v{d}")
        a("s_nop 0")
        for k in range(16):
            a(f"v_mul_f32 v{NUM[tt]+k}, v{NUM[tt]+k}, v{d}")
        ob = O + 8*tt
        for aa in range(4):
            dst = ob + 4*(aa & 1) + 2*(aa >> 1)
            for j in range(2):
                a(f"v_cvt_pk_bf16_f32 v{dst+j}, v{NUM[tt]+4*aa+2*j}, v{NUM[tt]+4*aa+2*j+1}")
        a(f"buffer_store_dwordx4 {vr(ob,4)}, v{TT}, s[{SRD_WS}:{SRD_WS+3}], s{S_T0} offen offset:{tt*512}{SC()}")
        a(f"buffer_store_dwordx4 {vr(ob+4,4)}, v{TT}, s[{SRD_WS}:{SRD_WS+3}], s{S_T1} offen offset:{tt*512}{SC()}")
    stamp(a, 5, 1, SRD_WS, 248, S_ST)
    if not FU(): a("s_waitcnt vmcnt(0)")

def k4():
    D = OPT["k4_depth"]; N0 = OPT["k4_n0"]
    a = Asm()
    SA, SB, SWS, SX = 4, 8, 12, 16
    S_MT, S_NT, S_KH, S_TG4, S_CH4 = 20, 21, 22, 23, 24
    S_AO, S_BO, S_DST, S_END, S_SW, S_SR, S_M0, S_N, S_BG = 25, 26, 27, 28, 29, 30, 31, 32, 33
    T0, T1, T2, T3 = 36, 37, 38, 39
    S_WO = 40
    S_TILE = 42
    ACCM, ACCS = 0, 32
    X, Y = 64, 88
    XR = 112
    VTOK, VW0, VW1, VTOKC, VW0C, VW1C, VDA, VDB0, VDB1, VL, VXO, VT = 128, 129, 130, 131, 132, 133, 134, 135, 136, 137, 138, 140
    a(f"""
    s_cmp_ge_u32 s2, 256
    s_cbranch_scc1 .Lk4_end
    s_load_dwordx2 s[{SA}:{SA+1}], s[0:1], 88
    s_load_dwordx2 s[{SWS}:{SWS+1}], s[0:1], 88
    s_load_dwordx2 s[{SB}:{SB+1}], s[0:1], 56
    s_load_dwordx2 s[{S_WO}:{S_WO+1}], s[0:1], 24
    s_load_dwordx2 s[{SX}:{SX+1}], s[0:1], 64
    v_lshrrev_b32 v1, 6, v0
    v_and_b32 v{VL}, 63, v0
    v_mov_b32 v{VXO}, 0
    s_and_b32 s{T0}, s2, 7
    v_readfirstlane_b32 s3, v1
    s_lshr_b32 s{T1}, s2, 3
    s_and_b32 s{S_KH}, s{T0}, 1
    s_bfe_u32 s{T2}, s{T0}, 0x10001
    s_lshl_b32 s{T2}, s{T2}, 3
    s_and_b32 s{S_MT}, s{T1}, 7
    s_add_u32 s{S_MT}, s{S_MT}, s{T2}
    s_lshr_b32 s{T2}, s{T0}, 2
    s_lshl_b32 s{T2}, s{T2}, 2
    s_lshr_b32 s{S_NT}, s{T1}, 3
    s_add_u32 s{S_NT}, s{S_NT}, s{T2}
    s_lshl_b32 s{S_TILE}, s{S_MT}, 3
    s_add_u32 s{S_TILE}, s{S_TILE}, s{S_NT}
    s_and_b32 s{S_TG4}, s3, 3
    s_lshr_b32 s{S_CH4}, s3, 2
    s_mov_b32 s{SA+2}, {hx(32*MB)}
    s_mov_b32 s{SA+3}, 0x00020000
    s_mov_b32 s{SWS+2}, {hx(256*MB)}
    s_mov_b32 s{SWS+3}, 0x00020000
    s_mov_b32 s{SB+2}, {hx(3584*2048)}
    s_mov_b32 s{SB+3}, 0x00020000
    s_mov_b32 s{SX+2}, 2048
    s_mov_b32 s{SX+3}, 0x00020000
    s_mov_b32 s{S_BG}, {hx(BIG)}
    s_mul_i32 s{S_DST}, s{S_KH}, {N0}
    s_cmp_eq_u32 s{S_KH}, 0
    s_cselect_b32 s{S_END}, {N0}, 72
    s_cselect_b32 s{S_N}, {N0}, {56-N0}
    s_mul_i32 s{S_AO}, s{S_MT}, {144*8192}
    s_lshl_b32 s{T0}, s{S_DST}, 14
    s_add_u32 s{S_AO}, s{S_AO}, s{T0}
    s_add_u32 s{S_AO}, s{S_AO}, {hx(HO_OFF-2048)}
    s_lshl_b32 s{S_BO}, s{S_DST}, 17
    s_lshl_b32 s{S_M0}, s3, 12
    s_mov_b32 s{S_SW}, 0
    s_mov_b32 s{S_SR}, 0
    """)
    a(f"""
    s_lshl_b32 s{T0}, s3, 11
    v_lshlrev_b32 v{VT}, 4, v{VL}
    v_add_u32 v{VDA}, s{T0}, v{VT}
    v_lshrrev_b32 v{VT}, 4, v{VL}
    v_and_b32 v{VT+1}, 15, v{VL}
    v_lshlrev_b32 v{VT+2}, 2, v{VT}
    v_xor_b32 v{VT+1}, v{VT+1}, v{VT+2}
    s_lshl_b32 s{T0}, s3, 3
    v_add_u32 v{VT}, s{T0}, v{VT}
    v_lshlrev_b32 v{VT}, 11, v{VT}
    v_lshl_add_u32 v{VT}, v{VT+1}, 4, v{VT}
    s_lshl_b32 s{T0}, s{S_NT}, 8
    v_add_u32 v{VDB0}, s{T0}, v{VT}
    v_add_u32 v{VDB1}, {4*2048-1024}, v{VDB0}
    """)
    a(f"""
    v_lshrrev_b32 v{VT}, 5, v{VL}
    v_and_b32 v{VT+1}, 31, v{VL}
    s_lshl_b32 s{T0}, s{S_TG4}, 5
    v_add_u32 v{VT+1}, s{T0}, v{VT+1}
    v_lshlrev_b32 v{VT+1}, 4, v{VT+1}
    v_lshl_add_u32 v{VTOKC}, v{VT}, 12, v{VT+1}
    v_bfe_u32 v{VT+1}, v{VL}, 2, 2
    v_lshl_add_u32 v{VT+2}, v{VT}, 2, v{VT+1}
    v_lshlrev_b32 v{VT+2}, 8, v{VT+2}
    s_lshl_b32 s{T0}, s{S_CH4}, 1
    v_xor_b32 v{VT+1}, s{T0}, v{VT+1}
    v_lshl_add_u32 v{VT+2}, v{VT+1}, 6, v{VT+2}
    v_bfe_u32 v{VT+1}, v{VL}, 4, 1
    v_lshl_add_u32 v{VT+2}, v{VT+1}, 5, v{VT+2}
    v_and_b32 v{VT+1}, 3, v{VL}
    v_lshl_add_u32 v{VW0C}, v{VT+1}, 3, v{VT+2}
    v_xor_b32 v{VW1C}, 64, v{VW0C}
    v_mov_b32 v{VTOK}, v{VTOKC}
    v_mov_b32 v{VW0}, v{VW0C}
    v_mov_b32 v{VW1}, v{VW1C}
    s_waitcnt lgkmcnt(0)
    """)
    stamp(a, 0, 2, SWS, 144, 56)
    a(f"""
    s_cmp_eq_u32 s{S_KH}, 0
    s_cbranch_scc1 .Lk4_nob
    s_lshl_b32 s{T0}, s{S_NT}, 8
    s_lshl_b32 s{T1}, s{S_CH4}, 7
    s_add_u32 s{T0}, s{T0}, s{T1}
    v_lshlrev_b32 v{VT+1}, 3, v{VT}
    """)
    for ct in range(2):
        for aa in range(4):
            k = ct*4+aa
            a(f"buffer_load_dwordx2 {vr(Y+2*k,2)}, v{VT+1}, s[{SX}:{SX+3}], s{T0} offen offset:{ct*64+aa*16}")
    a(f"""
    s_load_dwordx2 s[{SX}:{SX+1}], s[0:1], 0
    s_lshl_b32 s{T1}, s{S_MT}, 7
    s_lshl_b32 s{T2}, s{S_TG4}, 5
    s_add_u32 s{T1}, s{T1}, s{T2}
    v_lshrrev_b32 v{VT+1}, 3, v{VL}
    v_add_u32 v{VT+1}, s{T1}, v{VT+1}
    v_lshlrev_b32 v{VT+1}, 11, v{VT+1}
    v_and_b32 v{VT+2}, 7, v{VL}
    v_lshl_add_u32 v{VT+1}, v{VT+2}, 4, v{VT+1}
    v_add_u32 v{VXO}, s{T0}, v{VT+1}
    s_mov_b32 s{T1}, 16384
    s_mov_b32 s{T2}, 32768
    s_mov_b32 s{T3}, 49152
    s_waitcnt lgkmcnt(0)
    s_mov_b32 s{SX+2}, {hx(4*MB)}
    buffer_load_dwordx4 {vr(XR,4)}, v{VXO}, s[{SX}:{SX+3}], 0 offen
    buffer_load_dwordx4 {vr(XR+4,4)}, v{VXO}, s[{SX}:{SX+3}], s{T1} offen
    buffer_load_dwordx4 {vr(XR+8,4)}, v{VXO}, s[{SX}:{SX+3}], s{T2} offen
    buffer_load_dwordx4 {vr(XR+12,4)}, v{VXO}, s[{SX}:{SX+3}], s{T3} offen
    .Lk4_nob:
    """)
    def dma(sw_check, lab=None):
        s = []
        if sw_check:
            s.append(f"s_cmp_eq_u32 s{S_DST}, 56\n s_cbranch_scc0 {lab}")
            s.append(f"s_mov_b32 s{SB}, s{S_WO}\n s_mov_b32 s{SB+1}, s{S_WO+1}\n s_mov_b32 s{SB+2}, {hx(2*MB)}\n s_mov_b32 s{S_BO}, 0")
            s.append(f"{lab}:")
        s.append(f"s_cmp_lt_u32 s{S_DST}, s{S_END}")
        s.append(f"s_cselect_b32 s{T0}, s{S_AO}, s{S_BG}")
        s.append(f"s_cselect_b32 s{T1}, s{S_BO}, s{S_BG}")
        s.append(f"s_add_u32 m0, s{S_SW}, s{S_M0}")
        s.append(f"s_add_u32 s{S_AO}, s{S_AO}, 16384")
        s.append(f"buffer_load_dwordx4 v{VDB0}, s[{SB}:{SB+3}], s{T1} offen lds")
        p = ["\n".join(s)]
        p.append(f"buffer_load_dwordx4 v{VDB1}, s[{SB}:{SB+3}], s{T1} offen offset:1024 lds")
        p.append(f"buffer_load_dwordx4 v{VDA}, s[{SA}:{SA+3}], s{T0} offen offset:2048 lds")
        p.append(f"""buffer_load_dwordx4 v{VDA}, s[{SA}:{SA+3}], s{T0} offen offset:3072 lds
        s_add_u32 s{S_BO}, s{S_BO}, {64*2048}
        s_add_u32 s{S_DST}, s{S_DST}, 1
        s_add_u32 s{S_SW}, s{S_SW}, 32768
        s_cmp_ge_u32 s{S_SW}, {32768*D}
        s_cselect_b32 s{S_SW}, 0, s{S_SW}""")
        return p
    for d in range(D):
        for t in dma(False): a(t)
    a(f"""
    s_cmp_eq_u32 s{S_KH}, 0
    s_cbranch_scc1 .Lk4_z
    s_waitcnt vmcnt({4*D+4})
    s_mov_b32 s{T0}, 0xffff0000
    """)
    for k in range(16):
        a(f"v_lshlrev_b32 v{ACCM+2*k}, 16, v{Y+k}")
        a(f"v_and_b32 v{ACCM+2*k+1}, s{T0}, v{Y+k}")
    for k in range(32):
        a(f"v_mov_b32 v{ACCS+k}, 0")
    a("s_branch .Lk4_i\n .Lk4_z:")
    for k in range(32):
        a(f"v_mov_b32 v{ACCM+k}, 0")
    a(".Lk4_i:")
    def reads(b, blk):
        r = []
        for s in range(2):
            for ct in range(2):
                w = b + 8 + (s*2+ct)*4
                for hf in range(2):
                    r.append(f"ds_read_b64_tr_b16 {vr(w+2*hf,2)}, v{VW1 if ct else VW0} offset:{(4*blk+s+2*hf)*4096}")
                if ct == 0:
                    r.append(f"ds_read_b128 {vr(b+4*s,4)}, v{VTOK} offset:{(4*blk+2*s)*4096+2048}")
        return r
    def mf(b, acc):
        return [mf32(acc+16*ct, b+8+(s*2+ct)*4, b+4*s, acc+16*ct) for s in range(2) for ct in range(2)]
    a(f"s_waitcnt vmcnt({4*(D-1)})\n s_barrier")
    for t in reads(X, 0): a(t)
    def loop(tag, acc, sw):
        a(f".Lk4_{tag}:")
        for t in reads(Y, 1): a(t)
        a("s_waitcnt lgkmcnt(10)")
        for t in mf(X, acc): a(t)
        a(f"""
        s_add_u32 s{S_SR}, s{S_SR}, 32768
        s_cmp_ge_u32 s{S_SR}, {32768*D}
        s_cselect_b32 s{S_SR}, 0, s{S_SR}
        s_waitcnt lgkmcnt(0)
        v_add_u32 v{VTOK}, s{S_SR}, v{VTOKC}
        v_add_u32 v{VW0}, s{S_SR}, v{VW0C}
        v_add_u32 v{VW1}, s{S_SR}, v{VW1C}
        s_waitcnt vmcnt({4*(D-2)})
        s_barrier
        """)
        for t in reads(X, 0): a(t)
        dm = dma(sw, f".Lk4_{tag}_sw")
        m = mf(Y, acc)
        for i in range(4):
            a(m[i]); a(dm[i])
        a(f"""
        s_sub_u32 s{S_N}, s{S_N}, 1
        s_cmp_lg_u32 s{S_N}, 0
        s_cbranch_scc1 .Lk4_{tag}
        """)
    loop("lm", ACCM, True)
    a(f"""
    s_lshl_b32 s{T2}, s{S_TILE}, 16
    s_lshl_b32 s{T3}, s3, 13
    s_add_u32 s{T2}, s{T2}, s{T3}
    s_add_u32 s{T2}, s{T2}, {hx(MP_OFF)}
    s_add_u32 s{T3}, s{T2}, 4096
    s_lshl_b32 s{S_TILE}, s{S_TILE}, 7
    s_add_u32 s{S_TILE}, s{S_TILE}, {hx(FLG_OFF)}
    v_lshlrev_b32 v{VT}, 4, v{VL}
    s_cmp_eq_u32 s{S_KH}, 0
    s_cbranch_scc0 .Lk4_p1
    """)
    stamp(a, 1, 2, SWS, 144, 56)
    a("s_nop 15\n s_nop 3")
    for i in range(8):
        a(f"buffer_store_dwordx4 {vr(ACCM+4*i,4)}, v{VT}, s[{SWS}:{SWS+3}], s{T2 if i<4 else T3} offen offset:{(i&3)*1024} sc1")
    a(f"""
    s_waitcnt vmcnt(0) lgkmcnt(0)
    s_barrier
    s_cmp_lg_u32 s3, 0
    s_cbranch_scc1 .Lk4_end
    v_mov_b32 v{VT}, 1
    v_mov_b32 v{VT+1}, 0
    s_mov_b64 exec, 1
    buffer_store_dword v{VT}, v{VT+1}, s[{SWS}:{SWS+3}], s{S_TILE} offen sc1
    s_mov_b64 exec, -1
    """)
    stamp(a, 2, 2, SWS, 144, 56)
    a(f"""
    s_waitcnt vmcnt(0)
    s_branch .Lk4_end
    .Lk4_p1:
    s_mov_b32 s{S_N}, 16
    s_mov_b32 s50, s{T2}
    s_mov_b32 s51, s{T3}
    """)
    loop("ls", ACCS, False)
    stamp(a, 1, 2, SWS, 144, 56)
    a(f"""
    s_load_dwordx2 s[{SX}:{SX+1}], s[0:1], 72
    s_waitcnt vmcnt(0)
    s_cmp_lg_u32 s3, 0
    s_cbranch_scc1 .Lk4_polled
    s_mov_b32 s{S_N}, {OPT['spin']}
    v_mov_b32 v{VT+1}, 0
    .Lk4_poll:
    buffer_load_dword v{VT+2}, v{VT+1}, s[{SWS}:{SWS+3}], s{S_TILE} offen sc1
    s_waitcnt vmcnt(0)
    v_readfirstlane_b32 s{T0}, v{VT+2}
    s_sub_u32 s{S_N}, s{S_N}, 1
    s_cmp_eq_u32 s{S_N}, 0
    s_cbranch_scc1 .Lk4_polled
    s_cmp_eq_u32 s{T0}, 0
    s_cbranch_scc1 .Lk4_poll
    .Lk4_polled:
    s_waitcnt lgkmcnt(0)
    s_barrier
    """)
    stamp(a, 2, 2, SWS, 144, 56)
    PB = 64
    for i in range(8):
        a(f"buffer_load_dwordx4 {vr(PB+4*i,4)}, v{VT}, s[{SWS}:{SWS+3}], s{50 if i<4 else 51} offen offset:{(i&3)*1024} sc1")
    VWR, VRD = VT+1, VT+2
    a(f"""
    s_mul_i32 s{T0}, s3, 4608
    v_and_b32 v{VWR}, 31, v{VL}
    v_mul_u32_u24 v{VWR}, 144, v{VWR}
    v_lshrrev_b32 v{VT+3}, 5, v{VL}
    v_lshl_add_u32 v{VWR}, v{VT+3}, 3, v{VWR}
    v_add_u32 v{VWR}, s{T0}, v{VWR}
    v_lshrrev_b32 v{VRD}, 3, v{VL}
    v_mul_u32_u24 v{VRD}, 144, v{VRD}
    v_and_b32 v{VT+3}, 7, v{VL}
    v_lshl_add_u32 v{VRD}, v{VT+3}, 4, v{VRD}
    v_add_u32 v{VRD}, s{T0}, v{VRD}
    s_mov_b32 s{T0}, {hx(f2u(-LOG2E))}
    s_mov_b32 s{T1}, 16384
    s_mov_b32 s{T2}, 32768
    s_mov_b32 s{T3}, 49152
    s_mov_b32 s52, 0xffff0000
    """)
    TM = 96
    for i in range(0, 8, 2):
        a(f"s_waitcnt vmcnt({6-i})")
        n = 8
        m = [ACCM+4*i+k for k in range(n)]
        p = [PB+4*i+k for k in range(n)]
        s_ = [ACCS+4*i+k for k in range(n)]
        t = [TM+k for k in range(n)]
        for k in range(n): a(f"v_add_f32 v{m[k]}, v{m[k]}, v{p[k]}")
        for k in range(n): a(f"v_mul_f32 v{t[k]}, s{T0}, v{m[k]}")
        for k in range(n): a(f"v_exp_f32 v{t[k]}, v{t[k]}")
        for k in range(n): a(f"v_mul_f32 v{m[k]}, v{m[k]}, v{s_[k]}")
        for k in range(n): a(f"v_add_f32 v{t[k]}, 1.0, v{t[k]}")
        for k in range(n): a(f"v_rcp_f32 v{t[k]}, v{t[k]}")
        a("s_nop 0")
        for k in range(n): a(f"v_mul_f32 v{m[k]}, v{m[k]}, v{t[k]}")
        pk = TM + 8 + (i & 2)*2
        for k in range(4): a(f"v_cvt_pk_bf16_f32 v{pk+k}, v{m[2*k]}, v{m[2*k+1]}")
        for k in range(2):
            ii = i + k
            a(f"ds_write_b64 v{VWR}, {vr(pk+2*k,2)} offset:{(ii>>2)*64+(ii&3)*16}")
    a("s_waitcnt lgkmcnt(0)")
    for i in range(4):
        a(f"ds_read_b128 {vr(PB+4*i,4)}, v{VRD} offset:{i*1152}")
    so = ["0", f"s{T1}", f"s{T2}", f"s{T3}"]
    for i in range(4):
        a(f"s_waitcnt lgkmcnt({3-i})")
        for k in range(4):
            y = PB+4*i+k; x = XR+4*i+k; t = TM + 4*(k & 3)
            a(f"v_lshlrev_b32 v{t}, 16, v{y}")
            a(f"v_and_b32 v{t+1}, s52, v{y}")
            a(f"v_lshlrev_b32 v{t+2}, 16, v{x}")
            a(f"v_and_b32 v{t+3}, s52, v{x}")
            a(f"v_add_f32 v{t}, v{t}, v{t+2}")
            a(f"v_add_f32 v{t+1}, v{t+1}, v{t+3}")
            a(f"v_cvt_pk_bf16_f32 v{y}, v{t}, v{t+1}")
        a(f"buffer_store_dwordx4 {vr(PB+4*i,4)}, v{VXO}, s[{SX}:{SX+3}], {so[i]} offen")
    stamp(a, 3, 2, SWS, 144, 56)
    a("s_waitcnt vmcnt(0)")
    a(".Lk4_end:")
    return a.text()

def build(path):
    import k4b
    k4b.G.OPT.update(OPT)
    ks = [("ln_kernel", k1(), 40, 40, 48),
          ("mid_kernel", k2(), 256, 256, 96),
          ("fin_kernel", k4(), 152, 152, 64) if OPT.get("k4v", 2) == 1 else ("fin_kernel", k4b.k4(), 208, 208, 96)]
    if FU():
        ks = [ks[0], ("mid_kernel", ks[1][1] + ks[2][1], 256, 256, 96)]
    ks = [(l, hazard.fix(b, OPT.get("v", 0)), x, y, z) for (l, b, x, y, z) in ks]
    ls = [("ln_kernel", (512,1,1), (256,1,1), 0),
          ("mid_kernel", (256,1,1), (512,1,1), K2_LDS),
          ("fin_kernel", (256,1,1), (512,1,1), 32768*OPT["k4_depth"] if OPT.get("k4v", 2) == 1 else k4b.K4_LDS)]
    if FU():
        ls = [ls[0], ("mid_kernel", (256,1,1), (512,1,1), k4b.K4_LDS)]
    import re
    for (l, b, nv, acc, ns) in ks:
        mv = max([int(x) for x in re.findall(r"\bv(\d+)\b", b)] + [int(x) for x in re.findall(r"\bv\[\d+:(\d+)\]", b)])
        ms = max([int(x) for x in re.findall(r"\bs(\d+)\b", b)] + [int(x) for x in re.findall(r"\bs\[\d+:(\d+)\]", b)])
        assert mv < nv and ms < ns, (l, mv, ms)
    open(path, "w").write(build_file(ks, ls))

if __name__ == "__main__":
    out = sys.argv[1]
    for kv in sys.argv[2:]:
        k, v = kv.split("=")
        OPT[k] = int(v)
    build(out)
```

```python
from asmlib import *
import gen as G
from gen import hx, f2u, vr, MB, HO_OFF, MP_OFF, FLG_OFF, LOG2E, stamp

NSLOT = 5
SLOT = 32768
K4_LDS = NSLOT * SLOT

def mf16(d, A, B):
    return f"v_mfma_f32_16x16x32_bf16 {vr(d,4)}, {vr(A,4)}, {vr(B,4)}, {vr(d,4)}"

def weave(a, mf, fill):
    for p, t in fill:
        if p < 0: a(t)
    for i, m in enumerate(mf):
        a(m)
        for p, t in fill:
            if p == i: a(t)
    for p, t in fill:
        if p >= len(mf): a(t)

def k4():
    OPT = G.OPT
    a = Asm()
    SWS, SB, SO, SX, SBI = 4, 8, 12, 16, 20
    S_MT, S_NT, S_P, S_WM, S_WN, S_TILE = 24, 25, 26, 27, 28, 29
    S_SLOT, S_DLT, S_CNT, S_AO, S_BO, S_M0A, S_M0B = 30, 31, 32, 33, 34, 35, 36
    T0, T1, T2, T3 = 40, 41, 42, 43
    S_PO0, S_PO1, S_PP0, S_PP1, S_FO, S_FP, S_MSK, S_C, S_HI, S_X1 = 44, 45, 46, 47, 48, 49, 50, 51, 52, 53
    ST = 56
    ACCM, ACCS, X, Y, XR = 0, 64, 96, 128, 160
    VTA, VTB, VTS, VW, VL, VXO, VL16, VZ = 176, 177, 178, 180, 184, 185, 186, 187
    VT = 188
    VST = 200
    TFLAG, TPOLL, TCHK, TEND = OPT.get("k4_tflag", 3), OPT.get("k4_tpoll", 6), OPT.get("k4_tchk", 9), 12
    BPOS = OPT.get("k4_bpos", 13)
    FU = OPT.get("fuse", 0)
    N0 = OPT.get("n0", 26) if FU else 28
    N1 = 56 - N0
    SC = " sc1" if FU else ""
    S_N, S_OP = 37, 38
    def tcap(i):
        return f"s_memtime s[{64+2*i}:{65+2*i}]" if OPT["stamp"] else ""
    def tdump(n):
        if not OPT["stamp"]: return
        a("s_waitcnt lgkmcnt(0)")
        for i in range(n):
            a(f"v_mov_b32 v{VST}, s{64+2*i}\n v_mov_b32 v{VST+1}, s{65+2*i}\n s_add_u32 s{ST+4}, s{ST+4}, 16")
            a(f"buffer_store_dwordx4 v[{VST}:{VST+3}], v{VST+4}, s[{SWS}:{SWS+3}], s{ST+4} offen")
    a(f"""
    {"" if FU else "s_cmp_ge_u32 s2, 256"}
    {"" if FU else "s_cbranch_scc1 .Lk4_end"}
    s_load_dwordx2 s[{SWS}:{SWS+1}], s[0:1], 88
    s_load_dwordx2 s[{SB}:{SB+1}], s[0:1], 56
    s_load_dwordx2 s[{SO}:{SO+1}], s[0:1], 24
    s_load_dwordx2 s[{SX}:{SX+1}], s[0:1], 0
    s_load_dwordx2 s[{SBI}:{SBI+1}], s[0:1], 64
    {"" if FU else "v_lshrrev_b32 v1, 6, v0"}
    {f"v_mov_b32 v{VL}, v240" if FU else f"v_and_b32 v{VL}, 63, v0"}
    s_and_b32 s{T0}, s2, 7
    {"" if FU else "v_readfirstlane_b32 s3, v1"}
    s_lshr_b32 s{T1}, s2, 3
    s_and_b32 s{S_P}, s{T0}, 1
    s_bfe_u32 s{T2}, s{T0}, 0x10001
    s_lshl_b32 s{T2}, s{T2}, 3
    s_and_b32 s{S_MT}, s{T1}, 7
    s_add_u32 s{S_MT}, s{S_MT}, s{T2}
    s_lshr_b32 s{T2}, s{T0}, 2
    s_lshl_b32 s{T2}, s{T2}, 2
    s_lshr_b32 s{S_NT}, s{T1}, 3
    s_add_u32 s{S_NT}, s{S_NT}, s{T2}
    s_mov_b32 s{SWS+2}, {hx(256*MB)}
    s_mov_b32 s{SWS+3}, 0x00020000
    s_mov_b32 s{SB+2}, {hx(3584*2048)}
    s_mov_b32 s{SB+3}, 0x00020000
    s_mov_b32 s{SO+2}, {hx(2*MB)}
    s_mov_b32 s{SO+3}, 0x00020000
    s_mov_b32 s{SX+2}, {hx(4*MB)}
    s_mov_b32 s{SX+3}, 0x00020000
    s_mov_b32 s{SBI+2}, 2048
    s_mov_b32 s{SBI+3}, 0x00020000
    s_mov_b32 s{S_SLOT}, 0
    s_cmp_eq_u32 s{S_P}, 0
    s_cselect_b32 s{S_N}, {N0}, {N1}
    s_lshr_b32 s{S_OP}, s{S_MT}, 1
    s_lshl_b32 s{S_OP}, s{S_OP}, 7
    s_add_u32 s{S_OP}, s{S_OP}, {hx(FLG_OFF+256*128)}
    s_cmp_lt_u32 s3, 4
    s_cbranch_scc1 .Lk4_cons
    """)
    VA, VAS, VB = 2, 3, (176 if FU else 8)
    a(f"""
    s_and_b32 s{S_WM}, s3, 3
    s_lshl_b32 s{S_M0A}, s{S_WM}, 12
    s_add_u32 s{S_M0B}, s{S_M0A}, 16384
    v_lshlrev_b32 v{VA}, 4, v{VL}
    v_add_u32 v{VA}, s{S_M0A}, v{VA}
    s_mul_i32 s{S_AO}, s{S_MT}, {144*8192}
    s_add_u32 s{S_AO}, s{S_AO}, {hx(HO_OFF)}
    s_add_u32 s{S_X1}, s{S_AO}, {112*8192}
    s_mul_i32 s{T0}, s{S_P}, {N0*16384}
    s_add_u32 s{S_AO}, s{S_AO}, s{T0}
    s_mul_i32 s{S_BO}, s{S_P}, {N0*131072}
    """)
    if not FU: a(f"""
    v_lshrrev_b32 v{VT}, 4, v{VL}
    v_and_b32 v{VT+1}, 15, v{VL}
    v_lshlrev_b32 v{VT+2}, 1, v{VT}
    v_xor_b32 v{VT+1}, v{VT+1}, v{VT+2}
    s_lshl_b32 s{T0}, s{S_WM}, 4
    v_add_u32 v{VT}, s{T0}, v{VT}
    v_lshlrev_b32 v{VT}, 11, v{VT}
    v_lshl_add_u32 v{VT}, v{VT+1}, 4, v{VT}
    s_lshl_b32 s{T0}, s{S_NT}, 8
    v_add_u32 v{VB}, s{T0}, v{VT}
    v_xor_b32 v{VB+1}, 128, v{VB}
    v_add_u32 v{VB+2}, {2*(8192-1024)}, v{VB}
    v_add_u32 v{VB+3}, {3*(8192-1024)}, v{VB+1}
    v_add_u32 v{VB+1}, {8192-1024}, v{VB+1}
    """)
    a(f"""
    v_lshrrev_b32 v{VT}, 5, v{VL}
    v_and_b32 v{VT+1}, 31, v{VL}
    v_lshl_add_u32 v{VT}, v{VT}, 6, v{VT+1}
    s_lshl_b32 s{T0}, s{S_P}, 5
    v_add_u32 v{VT}, s{T0}, v{VT}
    v_lshlrev_b32 v{VT}, 4, v{VT}
    v_add_u32 v{VAS}, s{S_M0A}, v{VT}
    v_add_u32 v{VAS+1}, 1024, v{VAS}
    s_waitcnt lgkmcnt(0)
    """)
    def adv():
        return f"""
        s_add_u32 s{S_AO}, s{S_AO}, {0 if OPT.get('k4_fake',0)&1 else 16384}
        s_add_u32 s{S_BO}, s{S_BO}, {0 if OPT.get('k4_fake',0)&2 else 131072}
        s_add_u32 s{S_SLOT}, s{S_SLOT}, {SLOT}
        s_cmp_ge_u32 s{S_SLOT}, {K4_LDS}
        s_cselect_b32 s{S_SLOT}, 0, s{S_SLOT}
        """
    PD = OPT.get("k4_pd", 0)
    PA = 1 if (PD and OPT.get("k4_pa", 0)) else 0
    VPF, VPB, VPD, VPA, S_PW = 6, 7, 8, 9, 44
    def pf(kind):
        if not PD or kind is None: return
        if kind == "w2":
            a(f"s_add_u32 s{T2}, s{S_BO}, {PD*131072}\n buffer_load_dword v{VPD}, v{VPF}, s[{SB}:{SB+3}], s{T2} offen sc1")
            if PA: a(f"s_add_u32 s{T2}, s{S_AO}, {PD*16384}\n buffer_load_dword v{VPD}, v{VPA}, s[{SWS}:{SWS+3}], s{T2} offen sc1")
        if kind == "wo0": a(f"buffer_load_dword v{VPD}, v{VPF}, s[{SO}:{SO+3}], s{S_PW} offen sc1\n s_add_u32 s{S_PW}, s{S_PW}, 131072")
        if kind == "wo": a(f"s_add_u32 s{T2}, s{S_BO}, {PD*131072}\n buffer_load_dword v{VPD}, v{VPF}, s[{SO}:{SO+3}], s{T2} offen sc1")
    def dma_m(kind=None):
        a(f"s_add_u32 m0, s{S_SLOT}, s{S_M0B}")
        for i in range(4):
            a(f"buffer_load_dwordx4 v{VB+i}, s[{SB}:{SB+3}], s{S_BO} offen offset:{i*1024} lds")
        a(f"s_add_u32 m0, s{S_SLOT}, s{S_M0A}")
        for i in range(4):
            a(f"buffer_load_dwordx4 v{VA}, s[{SWS}:{SWS+3}], s{S_AO} offen offset:{i*1024}{SC} lds")
        pf(kind)
        a(adv())
    def dma_s(kind=None):
        a(f"s_add_u32 m0, s{S_SLOT}, s{S_M0B}")
        for i in range(4):
            a(f"buffer_load_dwordx4 v{VB+i}, s[{SO}:{SO+3}], s{S_BO} offen offset:{i*1024} lds")
        a(f"s_add_u32 m0, s{S_SLOT}, s{S_M0A}")
        for i in range(2):
            a(f"buffer_load_dwordx4 v{VAS+i}, s[{SWS}:{SWS+3}], s{S_AO} offen offset:{i*1024}{SC} lds")
        pf(kind)
        a(adv())
    if FU:
        stamp(a, 0, 2, SWS, VST, ST)
        if PD:
            nb = (PD + 11) // 12
            a(f"""
            s_and_b32 s{T0}, s{S_MT}, 7
            s_lshl_b32 s{T0}, s{T0}, 14
            s_lshl_b32 s{T1}, s{S_NT}, 8
            s_add_u32 s{T0}, s{T0}, s{T1}
            v_and_b32 v{VT}, 15, v{VL}
            v_lshrrev_b32 v{VT+1}, 1, v{VT}
            v_and_b32 v{VT}, 1, v{VT}
            v_lshlrev_b32 v{VT+1}, 11, v{VT+1}
            v_lshl_add_u32 v{VT}, v{VT}, 7, v{VT+1}
            v_lshrrev_b32 v{VT+1}, 4, v{VL}
            v_lshl_add_u32 v{VPB}, v{VT+1}, 17, v{VT}
            v_add_u32 v{VPB}, s{T0}, v{VPB}
            s_lshl_b32 s{T1}, s{S_WM}, 12
            s_add_u32 s{T0}, s{T0}, s{T1}
            v_and_b32 v{VT}, {2048+128}, v{VT}
            v_add_u32 v{VPF}, s{T0}, v{VT}
            s_and_b32 s{T0}, s{S_NT}, 3
            s_lshl_b32 s{T0}, s{T0}, 12
            s_lshl_b32 s{T1}, s{S_WM}, 10
            s_add_u32 s{T0}, s{T0}, s{T1}
            v_and_b32 v{VT}, 7, v{VL}
            v_lshlrev_b32 v{VT}, 7, v{VT}
            v_add_u32 v{VPA}, s{T0}, v{VT}
            s_mov_b32 s{S_PW}, 0
            s_cmp_eq_u32 s3, 4
            s_cbranch_scc1 .Lk4_nob
            s_lshl_b32 s{T0}, s{S_WM}, 19
            s_add_u32 s{T0}, s{T0}, s{S_BO}
            s_add_u32 s{T0}, s{T0}, {131072}
            """)
            for j in range(nb):
                a(f"buffer_load_dword v{VPD}, v{VPB}, s[{SB}:{SB+3}], s{T0} offen sc1")
                if j + 1 < nb: a(f"s_add_u32 s{T0}, s{T0}, {12*131072}")
            a(".Lk4_nob:")
        a(f"""
        s_cmp_lg_u32 s3, 4
        s_cbranch_scc1 .Lk4_hok
        s_mov_b32 s{T1}, {OPT['spin']}
        v_mov_b32 v{VT+1}, 0
        .Lk4_hpoll:
        buffer_load_dword v{VT}, v{VT+1}, s[{SWS}:{SWS+3}], s{S_OP} offen sc1
        s_waitcnt vmcnt(0)
        v_readfirstlane_b32 s{T0}, v{VT}
        s_sub_u32 s{T1}, s{T1}, 1
        s_cmp_eq_u32 s{T1}, 0
        s_cbranch_scc1 .Lk4_hok
        s_cmp_lt_u32 s{T0}, 16
        s_cbranch_scc1 .Lk4_hpoll
        .Lk4_hok:
        s_barrier
        """)
        stamp(a, 1, 2, SWS, VST, ST)
        for sl in range(NSLOT):
            a(f"s_add_u32 m0, s{S_M0A}, {sl*SLOT}")
            for i in range(4):
                a(f"buffer_load_dwordx4 v{VA}, s[{SWS}:{SWS+3}], s{S_AO} offen offset:{i*1024}{SC} lds")
            a(f"s_add_u32 s{S_AO}, s{S_AO}, 16384")
        a(f"s_add_u32 s{S_BO}, s{S_BO}, {NSLOT*131072}")
        a("s_waitcnt vmcnt(16)\n s_barrier")
        GM = 8 + ((1 + PA) if PD else 0)
        for w in (12, 8 + GM, 4 + 2*GM):
            a(f"s_waitcnt vmcnt({w})\n s_barrier")
            dma_m("w2")
        a(f"s_sub_u32 s{S_CNT}, s{S_N}, {NSLOT+3+PD}\n .Lk4_pm:")
    else:
        a(f"s_mov_b32 s{S_CNT}, {NSLOT}\n .Lk4_pp:")
        dma_m()
        a(f"s_sub_u32 s{S_CNT}, s{S_CNT}, 1\n s_cmp_lg_u32 s{S_CNT}, 0\n s_cbranch_scc1 .Lk4_pp")
        stamp(a, 0, 2, SWS, VST, ST)
        a(f"s_waitcnt vmcnt({8*(NSLOT-1)})")
        stamp(a, 1, 2, SWS, VST, ST)
        a(f"s_barrier\n s_mov_b32 s{S_CNT}, {28-NSLOT}\n .Lk4_pm:")
    if not FU: GM = 8
    a(f"s_waitcnt vmcnt({GM*(NSLOT-2)})\n s_barrier")
    dma_m("w2")
    a(f"s_sub_u32 s{S_CNT}, s{S_CNT}, 1\n s_cmp_lg_u32 s{S_CNT}, 0\n s_cbranch_scc1 .Lk4_pm")
    if PD:
        assert FU and min(N0, N1) - NSLOT - 3 - PD >= 1 and PD < 16
        a(f"s_mov_b32 s{S_CNT}, {PD}\n .Lk4_pm2:\n s_waitcnt vmcnt({9*(NSLOT-2)})\n s_barrier")
        dma_m("wo0")
        a(f"s_sub_u32 s{S_CNT}, s{S_CNT}, 1\n s_cmp_lg_u32 s{S_CNT}, 0\n s_cbranch_scc1 .Lk4_pm2")
    a(f"""
    s_mov_b32 s{S_AO}, s{S_X1}
    s_mov_b32 s{S_BO}, 0
    s_lshr_b32 s{S_M0A}, s{S_M0A}, 1
    """)
    if PD:
        a(f"s_mov_b32 s{S_CNT}, {16-PD}\n .Lk4_ps1:\n s_waitcnt vmcnt({7*(NSLOT-2)})\n s_barrier")
        dma_s("wo")
        a(f"s_sub_u32 s{S_CNT}, s{S_CNT}, 1\n s_cmp_lg_u32 s{S_CNT}, 0\n s_cbranch_scc1 .Lk4_ps1")
    a(f"""
    s_mov_b32 s{S_CNT}, {PD if PD else 16}
    .Lk4_ps:
    s_waitcnt vmcnt({6*(NSLOT-2)})
    s_barrier
    """)
    dma_s()
    a(f"s_sub_u32 s{S_CNT}, s{S_CNT}, 1\n s_cmp_lg_u32 s{S_CNT}, 0\n s_cbranch_scc1 .Lk4_ps")
    for k in range(NSLOT-2, -1, -1):
        a(f"s_waitcnt vmcnt({6*k})\n s_barrier")
    stamp(a, 2, 2, SWS, VST, ST)
    a("s_waitcnt vmcnt(0)\n s_branch .Lk4_end")
    a(f"""
    .Lk4_cons:
    s_and_b32 s{S_WM}, s3, 1
    s_lshr_b32 s{S_WN}, s3, 1
    s_lshl_b32 s{S_TILE}, s{S_MT}, 3
    s_add_u32 s{S_TILE}, s{S_TILE}, s{S_NT}
    v_lshrrev_b32 v{VT}, 4, v{VL}
    v_and_b32 v{VT+1}, 15, v{VL}
    v_lshlrev_b32 v{VL16}, 4, v{VL}
    v_mov_b32 v{VZ}, 0
    s_lshl_b32 s{T0}, s{S_NT}, 8
    s_lshl_b32 s{T1}, s{S_WN}, 7
    s_add_u32 s{T0}, s{T0}, s{T1}
    v_lshlrev_b32 v{VT+2}, 3, v{VT}
    s_lshl_b32 s{T1}, s{S_MT}, 7
    s_lshl_b32 s{T2}, s{S_WM}, 6
    s_lshl_b32 s{T3}, s{S_P}, 5
    s_add_u32 s{T2}, s{T2}, s{T3}
    s_add_u32 s{T1}, s{T1}, s{T2}
    v_add_u32 v{VXO}, s{T1}, v{VT+1}
    v_lshlrev_b32 v{VXO}, 11, v{VXO}
    v_and_b32 v{VT+3}, 1, v{VT}
    v_lshl_add_u32 v{VXO}, v{VT+3}, 5, v{VXO}
    v_lshrrev_b32 v{VT+3}, 1, v{VT}
    v_lshl_add_u32 v{VXO}, v{VT+3}, 4, v{VXO}
    v_add_u32 v{VXO}, s{T0}, v{VXO}
    s_mov_b32 s{S_X1}, 32768
    s_waitcnt lgkmcnt(0)
    """)
    for j in range(4):
        a(f"buffer_load_dwordx2 {vr(Y+2*j,2)}, v{VT+2}, s[{SBI}:{SBI+3}], s{T0} offen offset:{32*j}")
    for i in range(2):
        for jp in range(2):
            a(f"buffer_load_dwordx4 {vr(XR+(i*2+jp)*4,4)}, v{VXO}, s[{SX}:{SX+3}], {'0' if i==0 else 's%d'%S_X1} offen offset:{64*jp}")
    stamp(a, 0, 2, SWS, VST, ST)
    if FU: a("s_barrier")
    a(f"""
    s_load_dwordx2 s[{SX}:{SX+1}], s[0:1], 72
    v_add_u32 v{VTA}, s{T2}, v{VT+1}
    v_lshlrev_b32 v{VTA}, 4, v{VTA}
    v_lshl_add_u32 v{VTA}, v{VT}, 11, v{VTA}
    v_xor_b32 v{VTB}, 512, v{VTA}
    s_lshl_b32 s{T1}, s{S_WM}, 5
    v_add_u32 v{VTS}, s{T1}, v{VT+1}
    v_lshlrev_b32 v{VTS}, 4, v{VTS}
    v_lshl_add_u32 v{VTS}, v{VT}, 10, v{VTS}
    s_cmp_eq_u32 s{S_P}, 0
    s_cselect_b32 s{T1}, {(N0 % NSLOT)*2}, {(N1 % NSLOT)*2}
    s_lshl_b32 s{T1}, s{T1}, 14
    v_add_u32 v{VTS}, s{T1}, v{VTS}
    v_lshrrev_b32 v{VT+1}, 2, v{VL}
    v_and_b32 v{VT+2}, 7, v{VT+1}
    v_lshlrev_b32 v{VT+2}, 5, v{VT+2}
    v_lshlrev_b32 v{VT+1}, 8, v{VT+1}
    v_and_b32 v{VT+3}, 3, v{VL}
    v_lshlrev_b32 v{VT+3}, 3, v{VT+3}
    s_lshl_b32 s{T1}, s{S_WN}, 7
    v_or_b32 v{VT+3}, s{T1}, v{VT+3}
    v_xor_b32 v{VT+3}, v{VT+3}, v{VT+2}
    v_add_u32 v{VT+1}, 16384, v{VT+1}
    v_add_u32 v{VW}, v{VT+1}, v{VT+3}
    v_xor_b32 v{VW+1}, 32, v{VW}
    v_xor_b32 v{VW+2}, 64, v{VW}
    v_xor_b32 v{VW+3}, 96, v{VW}
    s_lshl_b32 s{T1}, s{S_TILE}, 1
    s_add_u32 s{T1}, s{T1}, s{S_P}
    s_xor_b32 s{T2}, s{T1}, 1
    s_lshl_b32 s{T3}, s3, 2
    s_add_u32 s{T3}, s{T3}, {hx(FLG_OFF)}
    s_lshl_b32 s{S_FO}, s{T1}, 7
    s_add_u32 s{S_FO}, s{S_FO}, s{T3}
    s_lshl_b32 s{S_FP}, s{T2}, 7
    s_add_u32 s{S_FP}, s{S_FP}, s{T3}
    s_lshl_b32 s{T3}, s3, 13
    s_add_u32 s{T3}, s{T3}, {hx(MP_OFF)}
    s_lshl_b32 s{S_PO0}, s{T1}, 15
    s_add_u32 s{S_PO0}, s{S_PO0}, s{T3}
    s_add_u32 s{S_PO1}, s{S_PO0}, 4096
    s_lshl_b32 s{S_PP0}, s{T2}, 15
    s_add_u32 s{S_PP0}, s{S_PP0}, s{T3}
    s_add_u32 s{S_PP1}, s{S_PP0}, 4096
    s_mov_b32 s{S_MSK}, {hx((1<<TFLAG)|(1<<TPOLL)|(1<<TCHK))}
    s_mov_b32 s{S_C}, {hx(f2u(-LOG2E))}
    s_mov_b32 s{S_HI}, 0xffff0000
    """)
    for k in range(32, 96):
        a(f"v_mov_b32 v{k}, 0")
    a(f"s_waitcnt vmcnt({4 + (1 if OPT['stamp'] else 0)})")
    for j in range(4):
        for h in range(2):
            a(f"v_lshlrev_b32 v{ACCM+4*j+2*h}, 16, v{Y+2*j+h}")
            a(f"v_and_b32 v{ACCM+4*j+2*h+1}, s{S_HI}, v{Y+2*j+h}")
    for k in range(16):
        a(f"v_mov_b32 v{ACCM+16+k}, v{ACCM+k}")
    a("s_waitcnt lgkmcnt(0)")

    def rW(b, blk, j):
        return [f"ds_read_b64_tr_b16 {vr(b+4*j+2*hf,2)}, v{VW+j} offset:{blk*8192+hf*4096}" for hf in range(2)]
    def reads_m(b, blk):
        T = [f"ds_read_b128 {vr(b+16+4*i,4)}, v{VTA if i<2 else VTB} offset:{blk*8192+(i&1)*256}" for i in range(4)]
        r = []; s = 0
        for j in range(4):
            r += [(s, t) for t in rW(b, blk, j)]; s += 1
            r.append((s, T[j])); s += 1
        return r
    def reads_s(b, blk):
        T = [f"ds_read_b128 {vr(b+16+4*i,4)}, v{VTS} offset:{blk*4096+i*256}" for i in range(2)]
        r = [(0, t) for t in rW(b, blk, 0)] + [(1, T[0])] + [(2, t) for t in rW(b, blk, 1)] + [(3, T[1])]
        r += [(4, t) for t in rW(b, blk, 2)] + [(5, t) for t in rW(b, blk, 3)]
        return r
    def mf_m(b, order=(0, 1, 2, 3)):
        return [mf16(ACCM+(i*4+j)*4, b+4*j, b+16+4*i) for i in order for j in range(4)]
    def mf_s(b):
        return [mf16(ACCS+(i*4+j)*4, b+4*j, b+16+4*i) for i in range(2) for j in range(4)]
    slotadv = f"""
        s_add_u32 s{S_SLOT}, s{S_SLOT}, {SLOT}
        s_cmp_ge_u32 s{S_SLOT}, {K4_LDS}
        s_cselect_b32 s{S_SLOT}, 0, s{S_SLOT}
        s_cselect_b32 s{S_DLT}, {-(NSLOT-1)*SLOT}, s{S_X1}
        """
    def upd(regs): return [f"v_add_u32 v{r}, s{S_DLT}, v{r}" for r in regs]
    BAR = "s_waitcnt lgkmcnt(0)\n s_barrier"
    a("s_barrier")
    for _, t in reads_m(X, 0): a(t)
    def half0_m():
        a("s_waitcnt lgkmcnt(0)")
        u = upd([VW, VW+1, VW+2, VW+3, VTA, VTB])
        fill = [(p-1, t) for p, t in reads_m(Y, 1)] + [(7, slotadv)] + [(8+k//2, t) for k, t in enumerate(u)] + [(BPOS, BAR)]
        weave(a, mf_m(X), fill)
    a(f"s_sub_u32 s{S_CNT}, s{S_N}, 1\n .Lk4_cm:")
    if FU: a(f"s_bitcmp1_b32 {hx((1<<8)|(1<<5))}, s{S_CNT}\n s_cbranch_scc1 .Lk4_mside\n .Lk4_mback:")
    half0_m()
    weave(a, mf_m(Y), [(p, t) for p, t in reads_m(X, 0)] + [(12, f"s_sub_u32 s{S_CNT}, s{S_CNT}, 1\n s_cmp_lg_u32 s{S_CNT}, 0")])
    a("s_cbranch_scc1 .Lk4_cm")
    half0_m()
    weave(a, mf_m(Y, (2, 3, 0, 1)), [(p, t) for p, t in reads_s(X, 0)])
    stamp(a, 1, 2, SWS, VST, ST)
    def half0_s(extra=[], bar=True):
        a("s_waitcnt lgkmcnt(0)")
        fill = [(p-1, t) for p, t in reads_s(Y, 1)]
        if bar:
            u = upd([VW, VW+1, VW+2, VW+3, VTS])
            fill += [(4, slotadv)] + [(5+k//3, t) for k, t in enumerate(u)]
        fill += extra
        if bar: fill += [(OPT.get("k4_bpos_s", 7), BAR)]
        else: fill += [(7, "s_waitcnt lgkmcnt(0)")]
        weave(a, mf_s(X), fill)
    def half1_s(extra=[], rd=True):
        weave(a, mf_s(Y), ([(p, t) for p, t in reads_s(X, 0)] if rd else []) + extra)
    def pub(k):
        return f"buffer_store_dwordx4 {vr(ACCM+32+4*k,4)}, v{VL16}, s[{SWS}:{SWS+3}], s{S_PO0 if k<4 else S_PO1} offen offset:{(k&3)*1024} sc1"
    half0_s([(2*k, pub(k)) for k in range(4)])
    half1_s([(2*k+1, pub(4+k)) for k in range(4)])
    a(f"s_mov_b32 s{S_CNT}, 1\n .Lk4_cs:")
    a(f"s_bitcmp1_b32 s{S_MSK}, s{S_CNT}\n s_cbranch_scc1 .Lk4_side\n .Lk4_back:")
    half0_s()
    half1_s([(6, f"s_add_u32 s{S_CNT}, s{S_CNT}, 1\n s_cmp_lg_u32 s{S_CNT}, {TEND}")])
    a("s_cbranch_scc1 .Lk4_cs")
    def silu(k):
        m = [ACCM+4*k+r for r in range(4)]; p = [ACCM+32+4*k+r for r in range(4)]; t = [VT+r for r in range(4)]
        i, j = k >> 2, k & 3
        xr = XR + (i*2+(j >> 1))*4 + (j & 1)*2
        L = [f"s_waitcnt vmcnt({7-k})"]
        L += [f"v_add_f32 v{m[r]}, v{m[r]}, v{p[r]}" for r in range(4)]
        L += [f"v_mul_f32 v{t[r]}, s{S_C}, v{m[r]}" for r in range(4)]
        L += [f"v_exp_f32 v{t[r]}, v{t[r]}" for r in range(4)]
        L += [f"v_lshlrev_b32 v{p[0]}, 16, v{xr}", f"v_and_b32 v{p[1]}, s{S_HI}, v{xr}"]
        L += [f"v_add_f32 v{t[r]}, 1.0, v{t[r]}" for r in range(4)]
        L += [f"v_rcp_f32 v{t[r]}, v{t[r]}" for r in range(4)]
        L += [f"v_lshlrev_b32 v{p[2]}, 16, v{xr+1}", f"v_and_b32 v{p[3]}, s{S_HI}, v{xr+1}"]
        L += [f"v_mul_f32 v{m[r]}, v{m[r]}, v{t[r]}" for r in range(4)]
        n = len(L)
        return [(min(7, (q*8)//n), s) for q, s in enumerate(L)]
    for t in range(TEND, 16):
        last = t == 15
        if t <= TEND+1: a(tcap(5+t-TEND))
        half0_s(silu(2*(t-TEND)), bar=not last)
        half1_s(silu(2*(t-TEND)+1), rd=not last)
    stamp(a, 2, 2, SWS, VST, ST)
    for i in range(2):
        for jp in range(2):
            o = X + (i*2+jp)*4
            for jj in range(2):
                k = i*4 + jp*2 + jj
                for r in range(4):
                    a(f"v_fma_f32 v{ACCM+32+4*k+r}, v{ACCS+4*k+r}, v{ACCM+4*k+r}, v{ACCM+32+4*k+r}")
            for jj in range(2):
                k = i*4 + jp*2 + jj
                for h in range(2):
                    a(f"v_cvt_pk_bf16_f32 v{o+2*jj+h}, v{ACCM+32+4*k+2*h}, v{ACCM+32+4*k+2*h+1}")
    for q in range(4):
        o = X + q*4
        a(f"v_permlane16_swap_b32 v{o}, v{o+2}\n v_permlane16_swap_b32 v{o+1}, v{o+3}")
    for q in range(4):
        o = X + q*4
        a(f"buffer_store_dwordx4 {vr(o,4)}, v{VXO}, s[{SX}:{SX+3}], {'0' if q<2 else 's%d'%S_X1} offen offset:{64*(q&1)}")
    stamp(a, 3, 2, SWS, VST, ST)
    tdump(7)
    a("s_waitcnt vmcnt(0)\n s_branch .Lk4_end")
    a(f"""
    .Lk4_side:
    s_cmp_eq_u32 s{S_CNT}, {TPOLL}
    s_cbranch_scc1 .Lk4_poll
    s_cmp_eq_u32 s{S_CNT}, {TCHK}
    s_cbranch_scc1 .Lk4_chk
    {tcap(0)}
    v_mov_b32 v{VT}, 1
    s_waitcnt vmcnt(0)
    {tcap(1)}
    s_mov_b64 exec, 1
    buffer_store_dword v{VT}, v{VZ}, s[{SWS}:{SWS+3}], s{S_FO} offen sc1
    s_mov_b64 exec, -1
    """)
    for q in range(4):
        o = XR + q*4
        a(f"v_permlane16_swap_b32 v{o}, v{o+2}\n v_permlane16_swap_b32 v{o+1}, v{o+3}")
    a(f"""
    s_branch .Lk4_back
    .Lk4_poll:
    {tcap(2)}
    buffer_load_dword v{VT+4}, v{VZ}, s[{SWS}:{SWS+3}], s{S_FP} offen sc1
    s_branch .Lk4_back
    .Lk4_chk:
    {tcap(3)}
    s_mov_b32 s{T1}, {OPT['spin']}
    .Lk4_spin:
    s_waitcnt vmcnt(0)
    v_readfirstlane_b32 s{T0}, v{VT+4}
    s_sub_u32 s{T1}, s{T1}, 1
    s_cmp_lg_u32 s{T0}, 0
    s_cbranch_scc1 .Lk4_got
    s_cmp_eq_u32 s{T1}, 0
    s_cbranch_scc1 .Lk4_got
    buffer_load_dword v{VT+4}, v{VZ}, s[{SWS}:{SWS+3}], s{S_FP} offen sc1
    s_branch .Lk4_spin
    .Lk4_got:
    {tcap(4)}
    """)
    for k in range(8):
        a(f"buffer_load_dwordx4 {vr(ACCM+32+4*k,4)}, v{VL16}, s[{SWS}:{SWS+3}], s{S_PP0 if k<4 else S_PP1} offen offset:{(k&3)*1024} sc1")
    a("s_branch .Lk4_back")
    if FU: a(f"""
    .Lk4_mside:
    s_cmp_eq_u32 s{S_CNT}, 5
    s_cbranch_scc1 .Lk4_mchk
    buffer_load_dword v{VT+4}, v{VZ}, s[{SWS}:{SWS+3}], s{S_OP} offen offset:1024 sc1
    s_branch .Lk4_mback
    .Lk4_mchk:
    s_mov_b32 s{T1}, {OPT['spin']}
    .Lk4_mspin:
    s_waitcnt vmcnt(0)
    v_readfirstlane_b32 s{T0}, v{VT+4}
    s_sub_u32 s{T1}, s{T1}, 1
    s_cmp_ge_u32 s{T0}, 16
    s_cbranch_scc1 .Lk4_mback
    s_cmp_eq_u32 s{T1}, 0
    s_cbranch_scc1 .Lk4_mback
    buffer_load_dword v{VT+4}, v{VZ}, s[{SWS}:{SWS+3}], s{S_OP} offen offset:1024 sc1
    s_branch .Lk4_mspin
    """)
    a(".Lk4_end:")
    return a.text()
```

```python
import sys, struct, math
from asmlib import *
import hazard

MB = 1 << 20
XN_OFF = 0
HO_OFF = 8 * MB
KVP_OFF = 32 * MB
ZP_OFF = 36 * MB
MP_OFF = 40 * MB
FLG_OFF = 48 * MB
TS_OFF = 200 * MB
BIG = 0x10000000
LOG2E = 1.4426950408889634

def f2u(x):
    return struct.unpack("<I", struct.pack("<f", x))[0]
def hx(x):
    return "0x%08x" % (x & 0xffffffff)
def vr(b, n):
    return f"v[{b}:{b+n-1}]" if n > 1 else f"v{b}"

OPT = dict(stamp=False, k4_depth=4, k4_n0=36, spin=200000)

def srd(a, d, ptr, size):
    if ptr != d:
        a(f"s_mov_b32 s{d}, s{ptr}")
        a(f"s_mov_b32 s{d+1}, s{ptr+1}")
    a(f"s_mov_b32 s{d+2}, {hx(size)}")
    a(f"s_mov_b32 s{d+3}, 0x00020000")

def stamp(a, idx, kern, srdws, vt, st):
    if not OPT["stamp"]:
        return
    a(f"s_memtime s[{st}:{st+1}]")
    a(f"s_memrealtime s[{st+2}:{st+3}]")
    a(f"s_lshl_b32 s{st+4}, s2, 3")
    a(f"s_add_u32 s{st+4}, s{st+4}, s3")
    a(f"s_lshl_b32 s{st+4}, s{st+4}, 8")
    a(f"s_add_u32 s{st+4}, s{st+4}, {hx(TS_OFF + kern*2*MB + idx*16)}")
    a("s_waitcnt lgkmcnt(0)")
    for k in range(4):
        a(f"v_mov_b32 v{vt+k}, s{st+k}")
    a(f"v_mov_b32 v{vt+4}, 0")
    a(f"buffer_store_dwordx4 v[{vt}:{vt+3}], v{vt+4}, s[{srdws}:{srdws+3}], s{st+4} offen")

def wave_sum(a, v, t):
    for m in ["quad_perm:[1,0,3,2]", "quad_perm:[2,3,0,1]", "row_half_mirror", "row_mirror"]:
        a("s_nop 1")
        a(f"v_add_f32_dpp v{v}, v{v}, v{v} {m} row_mask:0xf bank_mask:0xf")
    for op in ["v_permlane16_swap_b32", "v_permlane32_swap_b32"]:
        a(f"v_mov_b32 v{t}, v{v}")
        a("s_nop 1")
        a(f"{op} v{v}, v{t}")
        a("s_nop 1")
        a(f"v_add_f32 v{v}, v{v}, v{t}")

def k1():
    a = Asm()
    a(f"""
    s_cmp_ge_u32 s2, 512
    s_cbranch_scc1 .Lk1_end
    s_load_dwordx2 s[4:5], s[0:1], 0
    s_load_dwordx2 s[8:9], s[0:1], 88
    v_lshrrev_b32 v1, 6, v0
    v_and_b32 v2, 63, v0
    s_lshl_b32 s3, s2, 2
    v_add_u32 v1, s3, v1
    v_lshlrev_b32 v1, 11, v1
    v_lshl_add_u32 v1, v2, 4, v1
    s_mov_b32 s6, {hx(4*MB)}
    s_mov_b32 s7, 0x00020000
    s_mov_b32 s10, {hx(256*MB)}
    s_mov_b32 s11, 0x00020000
    s_mov_b32 s12, 0xffff0000
    s_waitcnt lgkmcnt(0)
    buffer_load_dwordx4 v[4:7], v1, s[4:7], 0 offen
    buffer_load_dwordx4 v[8:11], v1, s[4:7], 0 offen offset:1024
    v_lshrrev_b32 v2, 6, v0
    v_readfirstlane_b32 s3, v2
    """)
    stamp(a, 0, 0, 8, 32, 16)
    if OPT.get("cpf1", 0):
        a("v_and_b32 v38, 63, v0\n s_and_b32 s44, s2, 8\n s_lshr_b32 s44, s44, 1\n s_add_u32 s44, s44, s3")
        a(code_pf("k1", 40, 34, 38, 44, 38))
    pf = OPT.get("pf1", 0)
    npf = 1 if OPT.get("cpf1", 0) else 0
    if pf:
        a(f"""
        s_lshl_b32 s13, s2, 2
        s_add_u32 s13, s13, s3
        v_and_b32 v2, 63, v0
        v_lshlrev_b32 v2, 6, v2
        """)
        for bit, (ka, nb) in enumerate([(8, 1024*6144), (40, 1024*7168), (56, 3584*2048), (24, 2*MB)]):
            if pf >> bit & 1:
                r = 24 + 4*bit
                frac = OPT.get("pf1_frac", 1) if bit < 2 else 1
                per = nb // 2048 // frac
                a(f"""
                s_load_dwordx2 s[{r}:{r+1}], s[0:1], {ka}
                s_mov_b32 s{r+2}, {hx(nb)}
                s_mov_b32 s{r+3}, 0x00020000
                s_mul_i32 s14, s13, {per}
                v_cmp_gt_u32 vcc, {per}, v2
                s_waitcnt lgkmcnt(0)
                s_and_saveexec_b64 s[16:17], vcc
                buffer_load_dword v{36+bit}, v2, s[{r}:{r+3}], s14 offen
                s_mov_b64 exec, s[16:17]
                """)
                npf += 1
    a(f"s_waitcnt vmcnt({npf})")
    for i in range(8):
        a(f"v_lshlrev_b32 v{12+2*i}, 16, v{4+i}")
        a(f"v_and_b32 v{13+2*i}, s12, v{4+i}")
    for i in range(8):
        a(f"v_add_f32 v{28+i}, v{12+2*i}, v{13+2*i}")
    for i in range(4):
        a(f"v_add_f32 v{28+i}, v{28+i}, v{32+i}")
    a("v_add_f32 v28, v28, v30\n v_add_f32 v29, v29, v31\n v_add_f32 v28, v28, v29")
    wave_sum(a, 28, 29)
    a(f"v_mul_f32 v28, {hx(f2u(1.0/1024))}, v28")
    for i in range(16):
        a(f"v_sub_f32 v{12+i}, v{12+i}, v28")
    for i in range(4):
        a(f"v_mul_f32 v{30+i}, v{12+i}, v{12+i}")
    for i in range(4, 16):
        a(f"v_fmac_f32 v{30+(i&3)}, v{12+i}, v{12+i}")
    a("v_add_f32 v30, v30, v32\n v_add_f32 v31, v31, v33\n v_add_f32 v30, v30, v31")
    wave_sum(a, 30, 31)
    a(f"v_mov_b32 v31, {hx(f2u(1e-5))}")
    a(f"v_fmac_f32 v31, {hx(f2u(1.0/1024))}, v30")
    a("v_rsq_f32 v31, v31")
    a("s_nop 0")
    for i in range(16):
        a(f"v_mul_f32 v{12+i}, v{12+i}, v31")
    for i in range(8):
        a(f"v_cvt_pk_bf16_f32 v{4+i}, v{12+2*i}, v{13+2*i}")
    a("""
    buffer_store_dwordx4 v[4:7], v1, s[8:11], 0 offen
    buffer_store_dwordx4 v[8:11], v1, s[8:11], 0 offen offset:1024
    """)
    a(f"""
    s_cmp_ge_u32 s2, 296
    s_cbranch_scc1 .Lk1_noflag
    s_cmp_lg_u32 s3, 0
    s_cbranch_scc1 .Lk1_noflag
    v_lshlrev_b32 v2, 2, v0
    s_mov_b64 exec, 15
    s_lshl_b32 s13, s2, 7
    s_add_u32 s13, s13, {hx(FLG_OFF)}
    v_mov_b32 v3, 0
    buffer_store_dword v3, v2, s[8:11], s13 offen
    s_mov_b64 exec, -1
    .Lk1_noflag:
    s_waitcnt vmcnt(0)
    """)
    stamp(a, 1, 0, 8, 32, 16)
    a("""
    s_waitcnt vmcnt(0)
    .Lk1_end:
    """)
    return a.text()

BRING = 98304
SLOTB_M = 14464
SLOTB_A = 12288
WPHI_L = 147456
K2_LDS = 156160

S_W = 3
SRD_A = 4
SRD_B = 8
SRD_WS = 12
SRD_T = 16
S_I = 20
S_JN = 21
S_TG = 22
S_CH = 23
S_CUR, S_NXT, S_PRV = 24, 25, 26
S_BPAR = 27
S_AROW = 28
S_KA = 29
S_BOFF = 30
S_M0A = 31
S_M0B = 32
S_CNT = 33
S_BIG = 34
S_T0, S_T1, S_T2, S_T3 = 36, 37, 38, 39
S_EXB = 40
S_ST = 56
S_C0, S_C1 = 48, 49

class Pipe:
    pass

def k2_dma_A(a, vA, half, slot_sreg, ks_expr_add):
    ins = []
    pre = []
    pre.append(f"s_add_u32 s{S_T0}, s{S_KA}, {ks_expr_add}")
    pre.append(f"s_cmp_lt_u32 s{S_T0}, 2048")
    pre.append(f"s_cselect_b32 s{S_T1}, s{S_AROW}, s{S_BIG}")
    pre.append(f"s_add_u32 s{S_T0}, s{S_T0}, s{S_T1}")
    if half:
        pre.append(f"s_add_u32 s{S_T0}, s{S_T0}, 262144")
    pre.append(f"s_add_u32 s{S_T1}, s{slot_sreg}, s{S_M0A}")
    pre.append(f"s_add_u32 m0, s{S_T1}, {16384*half}")
    pre.append("s_nop 0")
    ins.append("\n".join(pre) + f"\nbuffer_load_dwordx4 v{vA}, s[{SRD_A}:{SRD_A+3}], s{S_T0} offen lds")
    ins.append(f"buffer_load_dwordx4 v{vA+1}, s[{SRD_A}:{SRD_A+3}], s{S_T0} offen offset:1024 lds")
    return ins

SRD_PF = 64
SRD_PF2 = 68
S_PF, S_PFS, S_PFS2 = 72, 73, 74
V_PF, V_PF2, V_PFD = 253, 254, 255
def code_pf(tag, srd, vt, vd, swave, vlane, nw=8):
    t = f"""s_getpc_b64 s[{srd}:{srd+1}]
    .Lpc_{tag}:
    s_add_u32 s{srd}, s{srd}, .Lmid0-.Lpc_{tag}
    s_addc_u32 s{srd+1}, s{srd+1}, {0 if tag == "k1" else -1}
    v_lshlrev_b32 v{vt}, 6, v{vlane}
    v_lshl_add_u32 v{vt}, s{swave}, 12, v{vt}
    v_min_u32 v{vt}, .Lk4_end-.Lmid0, v{vt}
    v_mov_b32 v{vt+1}, s{srd+1}
    v_add_co_u32 v{vt}, vcc, s{srd}, v{vt}
    v_addc_co_u32 v{vt+1}, vcc, 0, v{vt+1}, vcc
    global_load_dword v{vd}, v[{vt}:{vt+1}], off"""
    return t

def k2_dma_B(a, vB, slot_add, e1off, rowbytes, pf=1):
    s = []
    s.append(f"s_add_u32 s{S_T1}, s{S_M0B}, s{S_BPAR}")
    s.append(f"s_add_u32 m0, s{S_T1}, {slot_add}")
    s.append(f"s_mov_b64 exec, s[{S_EXB}:{S_EXB+1}]")
    s.append(f"buffer_load_dwordx4 v{vB}, s[{SRD_B}:{SRD_B+3}], s{S_BOFF} offen lds")
    s.append(f"buffer_load_dwordx4 v{vB+1}, s[{SRD_B}:{SRD_B+3}], s{S_BOFF} offen offset:{e1off} lds")
    if OPT.get("pf2", 0):
        if pf:
            s.append(f"buffer_load_dword v{V_PFD}, v{V_PF}, s[{SRD_PF}:{SRD_PF+3}], s{S_PF} offen")
            s.append(f"s_add_u32 s{S_PF}, s{S_PF}, s{S_PFS}")
        else:
            s.append(f"buffer_load_dword v{V_PFD}, v{V_PF}, s[{SRD_PF}:{SRD_PF+3}], s{S_BIG} offen")
    s.append("s_mov_b64 exec, -1")
    s.append(f"s_add_u32 s{S_BOFF}, s{S_BOFF}, {32*rowbytes}")
    return ["\n".join(s)]

def interleave(a, mf, fill, npre, pre_bar):
    for m in mf[:npre]:
        a(m)
    a(pre_bar)
    rest = mf[npre:]
    for p, t in fill:
        if p < 0:
            a(t)
    for i, m in enumerate(rest):
        a(m)
        for p, t in fill:
            if p == i:
                a(t)
    for p, t in fill:
        if p >= len(rest):
            a(t)

_LBL = [0]
def dfill(tag, dpos, dm):
    e = OPT.get("k2_e" + tag[0], 0)
    if not e: return [(dpos[i], t) for i, t in enumerate(dm)]
    ep = [int(c) - 2 for c in str(e)]
    out = []
    for i, t in enumerate(dm):
        for pos, cc in ((ep[i], "lt"), (dpos[i], "ge")):
            _LBL[0] += 1
            if OPT.get("k2_prio", 0) == 2: cc = "ge" if cc == "lt" else "lt"
            out.append((pos, f"s_cmp_{cc}_u32 s{S_W}, 4\n s_cbranch_scc0 .Ldf{_LBL[0]}\n{t}\n.Ldf{_LBL[0]}:"))
    return out
def k2_main(a, tag, mfmas, reads, upd, vDA, vDB, slotb, e1off, rowbytes, npre, rpos, dpos):
    a(f"s_mov_b32 s{S_KA}, 0\n s_mov_b32 s{S_BPAR}, 0")
    for t in k2_dma_A(a, vDA, 0, S_CUR, 0): a(t)
    for t in k2_dma_A(a, vDA, 1, S_CUR, 0): a(t)
    npro = OPT.get("pf2_pro", 0)
    PFX = 1 if OPT.get("pf2", 0) else 0
    for t in k2_dma_B(a, vDB, 0, e1off, rowbytes, npro >= 4): a(t)
    for t in k2_dma_A(a, vDA, 0, S_NXT, 128): a(t)
    for t in k2_dma_B(a, vDB, slotb, e1off, rowbytes, npro >= 3): a(t)
    for t in k2_dma_A(a, vDA, 1, S_NXT, 128): a(t)
    for t in k2_dma_B(a, vDB, 2*slotb, e1off, rowbytes, npro >= 2): a(t)
    for t in k2_dma_A(a, vDA, 0, S_PRV, 256): a(t)
    for t in k2_dma_B(a, vDB, 3*slotb, e1off, rowbytes, npro >= 1): a(t)
    a(f"s_mov_b32 s{S_KA}, 256")
    yield "prologue"
    a(f"s_waitcnt vmcnt({12+3*PFX})\n s_barrier")
    for t in reads(0, 0, 0): a(t)
    a(f"s_mov_b32 s{S_CNT}, 16")
    if OPT.get("k2_prio", 0):
        a(f"s_cmp_{'ge' if OPT['k2_prio'] == 1 else 'lt'}_u32 s{S_W}, 4\n s_cbranch_scc0 .Lk2_{tag}_loop\n s_setprio 1")
    a(f".Lk2_{tag}_loop:")
    a("s_waitcnt lgkmcnt(0)")
    rd = reads(1, 1, slotb)
    dm = k2_dma_A(a, vDA, 1, S_PRV, 0) + k2_dma_B(a, vDB, 0, e1off, rowbytes)
    if OPT.get("k2_nodma", 0): dm = []
    if OPT.get("k2_noread", 0): rd = []
    fill = [(rpos(i), t) for i, t in enumerate(rd)] + dfill(tag, dpos, dm)
    interleave(a, mfmas(0), fill, npre, f"s_waitcnt vmcnt({8+2*PFX})\n s_barrier")
    a("s_waitcnt lgkmcnt(0)")
    rd = reads(0, 0, 0)
    dm = k2_dma_A(a, vDA, 0, S_CUR, 128) + k2_dma_B(a, vDB, slotb, e1off, rowbytes)
    if OPT.get("k2_nodma", 0): dm = []
    if OPT.get("k2_noread", 0): rd = []
    fill = [(rpos(i), t) for i, t in enumerate(rd)] + dfill(tag, dpos, dm)
    interleave(a, mfmas(1), fill, npre, upd + f"\n s_waitcnt vmcnt({8+2*PFX})\n s_barrier")
    if PFX:
        a(f"""
        s_cmp_lg_u32 s{S_CNT}, {OPT.get("pf2_sw", 11)}
        s_cbranch_scc1 .Lk2_{tag}_nosw
        s_mov_b32 s{SRD_PF}, s{SRD_PF2}
        s_mov_b32 s{SRD_PF+1}, s{SRD_PF2+1}
        s_mov_b32 s{SRD_PF+2}, s{SRD_PF2+2}
        s_mov_b32 s{S_PF}, 0
        s_mov_b32 s{S_PFS}, s{S_PFS2}
        v_mov_b32 v{V_PF}, v{V_PF2}
        .Lk2_{tag}_nosw:
        """)
    if OPT.get("cpf", 0):
        a(f"""
        s_cmp_lg_u32 s{S_CNT}, {OPT["cpf"]}
        s_cbranch_scc1 .Lk2_{tag}_nocp
        {code_pf(tag, 88, 242, V_PFD, S_W, 240)}
        .Lk2_{tag}_nocp:
        """)
    a(f"""
    s_xor_b32 s{S_BPAR}, s{S_BPAR}, {2*slotb}
    s_mov_b32 s{S_T0}, s{S_CUR}
    s_mov_b32 s{S_CUR}, s{S_NXT}
    s_mov_b32 s{S_NXT}, s{S_PRV}
    s_mov_b32 s{S_PRV}, s{S_T0}
    s_add_u32 s{S_KA}, s{S_KA}, 128
    s_sub_u32 s{S_CNT}, s{S_CNT}, 1
    s_cmp_lg_u32 s{S_CNT}, 0
    s_cbranch_scc1 .Lk2_{tag}_loop
    """)
    if OPT.get("k2_prio", 0): a("s_setprio 0")
    yield "done"

def k2_pf_setup(a, VL, VT, own_ka, own_nb, rowbytes, nl, ka2, nb2, att):
    if not OPT.get("pf2", 0): return
    r0 = OPT.get("pf2_r0", 256) - 64*OPT.get("pf2_pro", 0)
    a(f"""
    s_load_dwordx2 s[{SRD_PF}:{SRD_PF+1}], s[0:1], {own_ka}
    s_load_dwordx2 s[{SRD_PF2}:{SRD_PF2+1}], s[0:1], {ka2}
    s_mov_b32 s{SRD_PF+2}, {hx(own_nb)}
    s_mov_b32 s{SRD_PF+3}, 0x00020000
    s_mov_b32 s{SRD_PF2+2}, {hx(nb2)}
    s_mov_b32 s{SRD_PF2+3}, 0x00020000
    s_mov_b32 s{S_PF}, {hx(r0*rowbytes)}
    s_mov_b32 s{S_PFS}, {hx(64*rowbytes)}
    s_mov_b32 s{S_PFS2}, {hx(1024*nl*64)}
    s_lshl_b32 s{S_T0}, s{S_I}, 3
    s_add_u32 s{S_T0}, s{S_T0}, s{S_W}
    s_lshl_b32 s{S_T1}, s{S_JN}, 6
    s_add_u32 s{S_T1}, s{S_T1}, s{S_T0}
    s_mul_i32 s{S_T1}, s{S_T1}, {nl*64}
    s_mul_i32 s{S_T0}, s{S_T0}, {rowbytes}
    s_mul_i32 s{S_T2}, s{S_JN}, {128 if att else 448}
    s_add_u32 s{S_T0}, s{S_T0}, s{S_T2}
    v_lshlrev_b32 v{VT}, 6, v{VL}
    v_add_u32 v{V_PF2}, s{S_T1}, v{VT}
    """)
    if att:
        a(f"""
        v_lshrrev_b32 v{VT}, 1, v{VL}
        v_lshlrev_b32 v{VT}, 11, v{VT}
        v_and_b32 v{VT+1}, 1, v{VL}
        v_lshl_add_u32 v{VT}, v{VT+1}, 6, v{VT}
        """)
    a(f"""
    v_add_u32 v{V_PF}, s{S_T0}, v{VT}
    v_mov_b32 v{VT}, s{S_BIG}
    v_cmp_gt_u32 vcc, {nl}, v{VL}
    v_cndmask_b32 v{V_PF}, v{VT}, v{V_PF}, vcc
    v_cndmask_b32 v{V_PF2}, v{VT}, v{V_PF2}, vcc
    """)

def FU(): return OPT.get("fuse", 0)
def SC(): return " sc1" if FU() else ""
def MAPJN():
    if FU() or OPT.get("remap", 0):
        return f"""s_lshr_b32 s{S_JN}, s{S_T0}, 1
        s_lshl_b32 s{S_JN}, s{S_JN}, 2
        s_add_u32 s{S_JN}, s{S_JN}, s{S_T1}
        s_and_b32 s{S_T3}, s{S_T0}, 1"""
    return f"""s_lshl_b32 s{S_JN}, s{S_T0}, 1
    s_lshr_b32 s{S_T2}, s{S_T1}, 1
    s_add_u32 s{S_JN}, s{S_JN}, s{S_T2}
    s_and_b32 s{S_T3}, s{S_T1}, 1"""
S_SIG = 84
def PERM(dst, m):
    m = str(m)
    if m == "01234567": return f"s_mov_b32 s{dst}, s2" if dst != 2 else ""
    t = [f"s_mov_b32 s46, 0"]
    k = 0
    while k < 8:
        n = 1
        while k + n < 8 and int(m[k+n]) == int(m[k]) + n: n += 1
        t.append(f"s_bfe_u32 s47, s2, {hex((n << 16) | int(m[k]))}")
        if k: t.append(f"s_lshl_b32 s47, s47, {k}")
        t.append("s_or_b32 s46, s46, s47")
        k += n
    t.append(f"s_mov_b32 s{dst}, s46")
    return "\n".join(t)
def DYN():
    if OPT.get("scr", 0):
        return f"""s_and_b32 s{S_T0}, s2, 7
        s_lshl_b32 s{S_T0}, s{S_T0}, 5
        s_lshr_b32 s2, s2, 3
        s_or_b32 s2, s2, s{S_T0}"""
    if not OPT.get("dyn", 0): return ""
    return f"""v_mov_b32 v2, {163840-4}
    s_cmp_lg_u32 s{S_W}, 0
    s_cbranch_scc1 .Ldyn_wait
    s_getreg_b32 s{S_T0}, hwreg(HW_REG_XCC_ID, 0, 3)
    s_mov_b32 s{S_T3}, 0
    v_mov_b32 v3, 0
    s_mov_b64 exec, 1
    s_waitcnt lgkmcnt(0)
    .Ldyn_loop:
    s_lshl_b32 s{S_T1}, s{S_T0}, 7
    s_add_u32 s{S_T1}, s{S_T1}, {hx(FLG_OFF + 288*128)}
    v_mov_b32 v1, 1
    buffer_atomic_add v1, v3, s[{SRD_WS}:{SRD_WS+3}], s{S_T1} offen sc0 sc1
    s_waitcnt vmcnt(0)
    v_readfirstlane_b32 s{S_T2}, v1
    s_cmp_lt_u32 s{S_T2}, 32
    s_cbranch_scc1 .Ldyn_got
    s_add_u32 s{S_T0}, s{S_T0}, 1
    s_and_b32 s{S_T0}, s{S_T0}, 7
    s_add_u32 s{S_T3}, s{S_T3}, 1
    s_cmp_lt_u32 s{S_T3}, 8
    s_cbranch_scc1 .Ldyn_loop
    .Ldyn_got:
    s_lshl_b32 s{S_T2}, s{S_T2}, 3
    s_or_b32 s{S_T2}, s{S_T2}, s{S_T0}
    s_and_b32 s{S_T2}, s{S_T2}, 255
    v_mov_b32 v1, s{S_T2}
    ds_write_b32 v2, v1
    s_mov_b64 exec, -1
    s_waitcnt lgkmcnt(0)
    .Ldyn_wait:
    s_barrier
    ds_read_b32 v1, v2
    s_waitcnt lgkmcnt(0)
    v_readfirstlane_b32 s2, v1
    s_nop 3"""
def k4_early(a, VL, tag):
    if not FU(): return
    n0 = OPT.get("n0", 26)
    VB, VT = 176, 180
    a(f"""
    s_cmp_lt_u32 s3, 4
    s_cbranch_scc1 .Lk4e_{tag}
    s_load_dwordx2 s[76:77], s[0:1], 56
    s_mov_b32 s78, {hx(3584*2048)}
    s_mov_b32 s79, 0x00020000
    s_and_b32 s80, s2, 4
    s_lshr_b32 s81, s2, 6
    s_add_u32 s80, s80, s81
    s_and_b32 s82, s2, 1
    s_mul_i32 s82, s82, {n0*131072}
    s_and_b32 s81, s3, 3
    s_lshl_b32 s83, s81, 12
    s_add_u32 s83, s83, 16384
    v_lshrrev_b32 v{VT}, 4, v{VL}
    v_and_b32 v{VT+1}, 15, v{VL}
    v_lshlrev_b32 v{VT+2}, 1, v{VT}
    v_xor_b32 v{VT+1}, v{VT+1}, v{VT+2}
    s_lshl_b32 s81, s81, 4
    v_add_u32 v{VT}, s81, v{VT}
    v_lshlrev_b32 v{VT}, 11, v{VT}
    v_lshl_add_u32 v{VT}, v{VT+1}, 4, v{VT}
    s_lshl_b32 s80, s80, 8
    v_add_u32 v{VB}, s80, v{VT}
    v_xor_b32 v{VB+1}, 128, v{VB}
    v_add_u32 v{VB+2}, {2*(8192-1024)}, v{VB}
    v_add_u32 v{VB+3}, {3*(8192-1024)}, v{VB+1}
    v_add_u32 v{VB+1}, {8192-1024}, v{VB+1}
    s_waitcnt lgkmcnt(0)
    """)
    for sl in range(5):
        a(f"s_add_u32 m0, s83, {sl*32768}")
        for i in range(4):
            a(f"buffer_load_dwordx4 v{VB+i}, s[76:79], s82 offen offset:{i*1024} lds")
        a("s_add_u32 s82, s82, 131072")
    a(f".Lk4e_{tag}:")

def k2():
    a = Asm()
    VL = 240
    VT = 241
    a(f"""
    .Lmid0:
    s_cmp_ge_u32 s2, 256
    s_cbranch_scc1 {'.Lk4_end' if FU() else '.Lk2_end'}
    s_load_dwordx2 s[{SRD_A}:{SRD_A+1}], s[0:1], 88
    s_load_dwordx2 s[{SRD_WS}:{SRD_WS+1}], s[0:1], 88
    v_lshrrev_b32 v1, 6, v0
    v_and_b32 v{VL}, 63, v0
    v_readfirstlane_b32 s{S_W}, v1
    s_mov_b32 s{SRD_WS+2}, {hx(256*MB)}
    s_mov_b32 s{SRD_WS+3}, 0x00020000
    {DYN()}
    {PERM(45, OPT.get("m2", "01234567"))}
    {PERM(2, OPT.get("m4", "01234567"))}
    s_and_b32 s{S_T0}, s45, 7
    s_lshr_b32 s{S_T1}, s45, 3
    s_and_b32 s{S_I}, s{S_T1}, 7
    s_lshr_b32 s{S_T1}, s{S_T1}, 3
    {MAPJN()}
    s_and_b32 s{S_TG}, s{S_W}, 3
    s_lshr_b32 s{S_CH}, s{S_W}, 2
    s_mov_b32 s{S_CUR}, 0
    s_mov_b32 s{S_NXT}, 32768
    s_mov_b32 s{S_PRV}, 65536
    s_lshl_b32 s{S_AROW}, s{S_I}, 19
    s_mov_b32 s{S_BOFF}, 0
    s_lshl_b32 s{S_M0A}, s{S_W}, 11
    s_mov_b32 s{S_BIG}, {hx(BIG)}
    s_mov_b32 s{SRD_A+2}, {hx(4*MB)}
    s_mov_b32 s{SRD_A+3}, 0x00020000
    """)
    if OPT.get("cpf0", 0): a(code_pf("k2", 88, 242, V_PFD, S_W, 240))
    VDA, VDB = 236, 238
    a(f"""
    v_lshrrev_b32 v{VT}, 3, v{VL}
    s_lshl_b32 s{S_T0}, s{S_W}, 4
    v_add_u32 v{VT}, s{S_T0}, v{VT}
    v_lshlrev_b32 v{VT}, 11, v{VT}
    v_and_b32 v{VT+1}, 7, v{VL}
    v_lshrrev_b32 v{VT+2}, 4, v{VL}
    v_xor_b32 v{VT+1}, v{VT+1}, v{VT+2}
    v_lshl_add_u32 v{VDA}, v{VT+1}, 4, v{VT}
    v_xor_b32 v{VDA+1}, 64, v{VDA}
    v_add_u32 v{VDA+1}, {8*2048-1024}, v{VDA+1}
    """)
    if OPT.get("k2_force", 0): a(f"s_mov_b32 s{S_T3}, {2-OPT['k2_force']}")
    a(f"""
    s_cmp_eq_u32 s{S_T3}, 0
    s_cbranch_scc1 .Lk2_att
    """)
    k2_mlp(a, VL, VT, VDA, VDB)
    a("s_branch .Lk2_end")
    a(".Lk2_att:")
    k2_att(a, VL, VT, VDA, VDB)
    a(".Lk2_end:")
    if FU():
        a(f"""
        s_waitcnt vmcnt(0) lgkmcnt(0)
        s_barrier
        s_cmp_lg_u32 s3, 5
        s_cbranch_scc1 .Lk2_nosig2
        v_mov_b32 v1, 1
        v_mov_b32 v2, 0
        s_mov_b64 exec, 1
        buffer_atomic_add v1, v2, s[{SRD_WS}:{SRD_WS+3}], s{S_SIG} offen sc1
        s_mov_b64 exec, -1
        .Lk2_nosig2:
        """)
    return a.text()

def k2_mlp(a, VL, VT, VDA, VDB):
    SET = [112, 156]
    VA0, VA1, VA0C, VA1C, VB, VBC = 200, 201, 202, 203, 204, 205
    VBIAS = 206
    a(f"""
    s_load_dwordx2 s[{SRD_B}:{SRD_B+1}], s[0:1], 40
    s_load_dwordx2 s[{SRD_T}:{SRD_T+1}], s[0:1], 48
    s_mov_b32 s{SRD_B+2}, {hx(1024*7168)}
    s_mov_b32 s{SRD_B+3}, 0x00020000
    s_mov_b32 s{SRD_T+2}, 7168
    s_mov_b32 s{SRD_T+3}, 0x00020000
    s_mov_b32 s{S_EXB}, -1
    s_mov_b32 s{S_EXB+1}, 0x00ffffff
    """)
    k2_pf_setup(a, VL, VT, 40, 1024*7168, 7168, 7, 56, 3584*2048, False)
    a(f"""
    v_cmp_le_u32 vcc, 28, v{VL}
    v_cndmask_b32 v{VT}, 0, 1, vcc
    v_mul_u32_u24 v{VT+1}, 28, v{VT}
    v_sub_u32 v{VT+1}, v{VL}, v{VT+1}
    v_lshrrev_b32 v{VT+2}, 1, v{VT+1}
    v_and_b32 v{VT+1}, 1, v{VT+1}
    v_add_u32 v{VT+3}, -1, v{VT+2}
    v_cmp_gt_u32 vcc, 6, v{VT+2}
    v_cndmask_b32 v{VT+3}, v{VT+3}, v{VT+2}, vcc
    v_cmp_eq_u32 vcc, 6, v{VT+2}
    v_cndmask_b32 v{VT+3}, v{VT+3}, 12, vcc
    v_cmp_le_u32 vcc, 13, v{VT+2}
    v_cndmask_b32 v{VT+3}, v{VT+3}, 13, vcc
    v_lshlrev_b32 v{VT+3}, 5, v{VT+3}
    v_lshl_add_u32 v{VT+3}, v{VT+1}, 4, v{VT+3}
    s_lshl_b32 s{S_T0}, s{S_W}, 2
    v_add_u32 v{VT}, s{S_T0}, v{VT}
    v_mul_u32_u24 v{VT}, 7168, v{VT}
    v_add_u32 v{VT}, v{VT}, v{VT+3}
    s_mul_i32 s{S_T0}, s{S_JN}, 448
    v_add_u32 v{VDB}, s{S_T0}, v{VT}
    v_add_u32 v{VDB+1}, {2*7168-896}, v{VDB}
    s_mul_i32 s{S_M0B}, s{S_W}, 1792
    s_lshr_b32 s{S_T0}, s{S_W}, 1
    s_lshl_b32 s{S_T0}, s{S_T0}, 5
    s_add_u32 s{S_M0B}, s{S_M0B}, s{S_T0}
    s_add_u32 s{S_M0B}, s{S_M0B}, {BRING}
    """)
    a(f"""
    v_and_b32 v{VT}, 15, v{VL}
    v_lshrrev_b32 v{VT+1}, 1, v{VT}
    v_lshrrev_b32 v{VT+2}, 4, v{VL}
    v_xor_b32 v{VT+1}, v{VT+1}, v{VT+2}
    s_lshl_b32 s{S_T0}, s{S_TG}, 6
    v_add_u32 v{VT}, s{S_T0}, v{VT}
    v_lshlrev_b32 v{VT}, 7, v{VT}
    v_lshl_add_u32 v{VA0C}, v{VT+1}, 4, v{VT}
    v_xor_b32 v{VA1C}, 64, v{VA0C}
    v_mov_b32 v{VA0}, v{VA0C}
    v_mov_b32 v{VA1}, v{VA1C}
    v_bfe_u32 v{VT}, v{VL}, 2, 2
    v_lshl_add_u32 v{VT}, v{VT+2}, 3, v{VT}
    v_mul_u32_u24 v{VT}, 448, v{VT}
    v_lshl_add_u32 v{VT}, v{VT+2}, 5, v{VT}
    v_and_b32 v{VT+1}, 3, v{VL}
    v_lshl_add_u32 v{VT}, v{VT+1}, 3, v{VT}
    s_mul_i32 s{S_T0}, s{S_CH}, 224
    s_add_u32 s{S_T0}, s{S_T0}, {BRING}
    v_add_u32 v{VBC}, s{S_T0}, v{VT}
    v_mov_b32 v{VB}, v{VBC}
    """)
    a(f"""
    s_mul_i32 s{S_T0}, s{S_JN}, 448
    s_mul_i32 s{S_T1}, s{S_CH}, 192
    s_add_u32 s{S_T1}, s{S_T1}, s{S_T0}
    s_lshl_b32 s{S_T2}, s{S_CH}, 5
    s_add_u32 s{S_T2}, s{S_T2}, s{S_T0}
    v_lshlrev_b32 v{VT}, 3, v{VT+2}
    s_waitcnt lgkmcnt(0)
    """)
    stamp(a, 0, 1, SRD_WS, 248, S_ST)
    for c in range(6):
        a(f"buffer_load_dwordx2 v[{VBIAS+2*c}:{VBIAS+2*c+1}], v{VT}, s[{SRD_T}:{SRD_T+3}], s{S_T1} offen offset:{32*c}")
    a(f"buffer_load_dwordx2 v[{VBIAS+12}:{VBIAS+13}], v{VT}, s[{SRD_T}:{SRD_T+3}], s{S_T2} offen offset:384")

    def acc(c, tt): return (c*4+tt)*4
    def mfmas(s):
        b = SET[s]
        return [f"v_mfma_f32_16x16x32_bf16 {vr(acc(c,tt),4)}, {vr(b+16+4*c,4)}, {vr(b+4*tt,4)}, {vr(acc(c,tt),4)}"
                for c in range(7) for tt in range(4)]
    def reads(s, sub, bimm):
        b = SET[s]
        va = VA1 if sub else VA0
        r = []
        def w(c):
            for i in range(2):
                r.append(f"ds_read_b64_tr_b16 {vr(b+16+4*c+2*i,2)}, v{VB} offset:{bimm+i*1792+c*32}")
        w(0)
        for tt in range(4):
            r.append(f"ds_read_b128 {vr(b+4*tt,4)}, v{va} offset:{tt*2048}")
        for c in range(1, 7):
            w(c)
        return r
    upd = f"""
    s_xor_b32 s{S_T2}, s{S_BPAR}, {2*SLOTB_M}
    v_add_u32 v{VA0}, s{S_NXT}, v{VA0C}
    v_add_u32 v{VA1}, s{S_NXT}, v{VA1C}
    v_add_u32 v{VB}, s{S_T2}, v{VBC}
    """
    g = k2_main(a, "mlp", mfmas, reads, upd, VDA, VDB, SLOTB_M, 896, 7168, 4,
                lambda i: i - 1, [18, 20, 22])
    next(g)
    a(f"s_waitcnt vmcnt({22 if OPT.get('pf2', 0) else 18})")
    a(f"s_mov_b32 s{S_T0}, 0xffff0000")
    for c in range(7):
        for j in range(2):
            a(f"v_lshlrev_b32 v{acc(c,0)+2*j}, 16, v{VBIAS+2*c+j}")
            a(f"v_and_b32 v{acc(c,0)+2*j+1}, s{S_T0}, v{VBIAS+2*c+j}")
        for tt in range(1, 4):
            for r in range(4):
                a(f"v_mov_b32 v{acc(c,tt)+r}, v{acc(c,0)+r}")
    next(g)
    stamp(a, 1, 1, SRD_WS, 248, S_ST)
    c0 = -2.0*math.sqrt(2.0/math.pi)*LOG2E
    c1 = c0*0.044715
    a(f"""
    s_mov_b32 s{S_C0}, {hx(f2u(c0))}
    s_mov_b32 s{S_C1}, {hx(f2u(c1))}
    v_mov_b32 v{VT+4}, s{S_C0}
    s_lshl_b32 s{S_T0}, s{S_I}, 1
    s_lshr_b32 s{S_T1}, s{S_TG}, 1
    s_add_u32 s{S_T0}, s{S_T0}, s{S_T1}
    s_mul_i32 s{S_T0}, s{S_T0}, 144
    s_mul_i32 s{S_T1}, s{S_JN}, 7
    s_add_u32 s{S_T0}, s{S_T0}, s{S_T1}
    s_add_u32 s{S_T1}, s{S_T0}, 6
    s_mul_i32 s{S_T2}, s{S_CH}, 3
    s_add_u32 s{S_T0}, s{S_T0}, s{S_T2}
    s_lshl_b32 s{S_T0}, s{S_T0}, 13
    s_lshl_b32 s{S_T1}, s{S_T1}, 13
    s_add_u32 s{S_T0}, s{S_T0}, {hx(HO_OFF)}
    s_add_u32 s{S_T1}, s{S_T1}, {hx(HO_OFF)}
    s_lshl_b32 s{S_T2}, s{S_CH}, {9 if OPT.get("gf6", 0) == 2 else 3}
    s_add_u32 s{S_T1}, s{S_T1}, s{S_T2}
    v_lshrrev_b32 v{VT}, 4, v{VL}
    v_lshlrev_b32 v{VT}, 11, v{VT}
    v_and_b32 v{VT+1}, 15, v{VL}
    v_lshl_add_u32 v{VT}, v{VT+1}, 4, v{VT}
    s_and_b32 s{S_T2}, s{S_TG}, 1
    s_lshl_b32 s{S_T2}, s{S_T2}, 10
    v_add_u32 v{VT}, s{S_T2}, v{VT}
    s_waitcnt lgkmcnt(0)
    s_nop 7
    """)
    T = 112
    PK = OPT.get("gpk", 0)
    KC1, KC0, KON = 148, 150, 152
    if PK:
        a(f"""
        v_mov_b32 v{KC1}, s{S_C1}
        v_mov_b32 v{KC1+1}, s{S_C1}
        v_mov_b32 v{KC0}, s{S_C0}
        v_mov_b32 v{KC0+1}, s{S_C0}
        v_mov_b32 v{KON}, 1.0
        v_mov_b32 v{KON+1}, 1.0
        """)
    def gelu4(regs, tb):
        n = len(regs)
        if PK:
            P = [(tb+k, regs[k]) for k in range(0, n, 2)]
            for t, u in P: a(f"v_pk_mul_f32 {vr(t,2)}, {vr(u,2)}, {vr(u,2)}")
            for t, u in P: a(f"v_pk_fma_f32 {vr(t,2)}, {vr(t,2)}, {vr(KC1,2)}, {vr(KC0,2)}")
            for t, u in P: a(f"v_pk_mul_f32 {vr(t,2)}, {vr(t,2)}, {vr(u,2)}")
            for k in range(n): a(f"v_exp_f32 v{tb+k}, v{tb+k}")
            for t, u in P: a(f"v_pk_add_f32 {vr(t,2)}, {vr(t,2)}, {vr(KON,2)}")
            for k in range(n): a(f"v_rcp_f32 v{tb+k}, v{tb+k}")
            for t, u in P: a(f"v_pk_mul_f32 {vr(t,2)}, {vr(t,2)}, {vr(u,2)}")
            return
        for k, u in enumerate(regs): a(f"v_mul_f32 v{tb+k}, v{u}, v{u}")
        for k, u in enumerate(regs): a(f"v_fma_f32 v{tb+k}, v{tb+k}, s{S_C1}, v{VT+4}")
        for k, u in enumerate(regs): a(f"v_mul_f32 v{tb+k}, v{tb+k}, v{u}")
        for k, u in enumerate(regs): a(f"v_exp_f32 v{tb+k}, v{tb+k}")
        for k, u in enumerate(regs): a(f"v_add_f32 v{tb+k}, 1.0, v{tb+k}")
        for k, u in enumerate(regs): a(f"v_rcp_f32 v{tb+k}, v{tb+k}")
        for k, u in enumerate(regs): a(f"v_mul_f32 v{tb+k}, v{tb+k}, v{u}")
    kk = [0]
    def early():
        if FU():
            a(f"s_lshl_b32 s{S_SIG}, s{S_I}, 7\n s_add_u32 s{S_SIG}, s{S_SIG}, {hx(FLG_OFF+256*128)}")
            a("s_waitcnt vmcnt(4)\n s_barrier")
            k4_early(a, VL, "m")
    def blk6():
        for t2 in range(2):
            k = kk[0]; kk[0] += 1
            regs = [acc(6, 2*t2)+r for r in range(4)] + [acc(6, 2*t2+1)+r for r in range(4)]
            tb = T + 8*(k & 1); pb = T + 16 + 4*(k & 3)
            gelu4(regs, tb)
            for j in range(4):
                a(f"v_cvt_pk_bf16_f32 v{pb+j}, v{tb+2*j}, v{tb+2*j+1}")
            a(f"buffer_store_dwordx2 {vr(pb,2)}, v{VT}, s[{SRD_WS}:{SRD_WS+3}], s{S_T1} offen offset:{(2*t2)*256}{SC()}")
            a(f"buffer_store_dwordx2 {vr(pb+2,2)}, v{VT}, s[{SRD_WS}:{SRD_WS+3}], s{S_T1} offen offset:{(2*t2+1)*256}{SC()}")
    F6 = OPT.get("gf6", 0)
    if F6 == 1:
        blk6(); early()
    if F6 == 2:
        assert FU()
        for t2 in range(2):
            regs = [acc(6, 2*t2)+r for r in range(4)] + [acc(6, 2*t2+1)+r for r in range(4)]
            tb = T + 8*t2
            gelu4(regs, tb)
            for j in range(4):
                a(f"v_cvt_pk_bf16_f32 v{156+4*t2+j}, v{tb+2*j}, v{tb+2*j+1}")
        a(f"""
        s_lshl_b32 s{S_T2}, s{S_W}, 10
        v_lshlrev_b32 v154, 4, v{VL}
        v_add_u32 v154, s{S_T2}, v154
        v_xor_b32 v155, 4096, v154
        s_lshl_b32 s{S_SIG}, s{S_I}, 7
        s_add_u32 s{S_SIG}, s{S_SIG}, {hx(FLG_OFF+256*128)}
        s_waitcnt vmcnt(0)
        s_barrier
        s_cmp_eq_u32 s{S_CH}, 0
        s_cbranch_scc1 .Lg6_w0
        ds_write_b128 v154, v[156:159]
        s_branch .Lg6_w1
        .Lg6_w0:
        ds_write_b128 v154, v[160:163]
        .Lg6_w1:
        """)
        k4_early(a, VL, "m")
    for b in range(3):
        for tt in range(4):
            k = kk[0]; kk[0] += 1
            regs = [acc(2*b, tt)+r for r in range(4)] + [acc(2*b+1, tt)+r for r in range(4)]
            tb = T + 8*(k & 1); pb = T + 16 + 4*(k & 3)
            gelu4(regs, tb)
            for j in range(4):
                a(f"v_cvt_pk_bf16_f32 v{pb+j}, v{tb+2*j}, v{tb+2*j+1}")
            a(f"buffer_store_dwordx4 {vr(pb,4)}, v{VT}, s[{SRD_WS}:{SRD_WS+3}], s{S_T0} offen offset:{tt*256}{SC()}")
        if b == 0 and not F6: early()
        if b == 0 and F6 == 2:
            a(f"""
            s_waitcnt lgkmcnt(0)
            s_barrier
            ds_read_b128 v[164:167], v155
            """)
        if b == 1 and F6 == 2:
            a(f"""
            s_waitcnt lgkmcnt(0)
            s_cmp_eq_u32 s{S_CH}, 0
            s_cbranch_scc1 .Lg6_a0
            v_mov_b32 v168, v164
            v_mov_b32 v169, v165
            v_mov_b32 v170, v160
            v_mov_b32 v171, v161
            v_mov_b32 v172, v166
            v_mov_b32 v173, v167
            v_mov_b32 v174, v162
            v_mov_b32 v175, v163
            s_branch .Lg6_a1
            .Lg6_a0:
            v_mov_b32 v168, v156
            v_mov_b32 v169, v157
            v_mov_b32 v170, v164
            v_mov_b32 v171, v165
            v_mov_b32 v172, v158
            v_mov_b32 v173, v159
            v_mov_b32 v174, v166
            v_mov_b32 v175, v167
            .Lg6_a1:
            buffer_store_dwordx4 v[168:171], v{VT}, s[{SRD_WS}:{SRD_WS+3}], s{S_T1} offen{SC()}
            buffer_store_dwordx4 v[172:175], v{VT}, s[{SRD_WS}:{SRD_WS+3}], s{S_T1} offen offset:256{SC()}
            """)
        if b < 2:
            a(f"s_add_u32 s{S_T0}, s{S_T0}, 8192")
    if not F6: blk6()
    stamp(a, 2, 1, SRD_WS, 248, S_ST)
    if not FU():
        a("s_waitcnt vmcnt(0)")
        stamp(a, 3, 1, SRD_WS, 248, S_ST)
        a("s_waitcnt vmcnt(0)")

def mf32(d, A, B, C):
    c = vr(C, 16) if isinstance(C, int) and C >= 0 else "0"
    return f"v_mfma_f32_32x32x16_bf16 {vr(d,16)}, {vr(A,4)}, {vr(B,4)}, {c}"

def k2_att(a, VL, VT, VDA, VDB):
    ACC = dict(Q=[0, 16], K=[32, 48], V=[64, 80])
    SET = [96, 136]
    VA = [176, 177, 178, 179]; VAC = [180, 181, 182, 183]; VB, VBC = 184, 185
    a(f"""
    s_load_dwordx2 s[{SRD_B}:{SRD_B+1}], s[0:1], 8
    s_load_dwordx2 s[{SRD_T}:{SRD_T+1}], s[0:1], 16
    s_mov_b32 s{SRD_B+2}, {hx(1024*6144)}
    s_mov_b32 s{SRD_B+3}, 0x00020000
    s_mov_b32 s{SRD_T+2}, 65536
    s_mov_b32 s{SRD_T+3}, 0x00020000
    s_mov_b32 s{S_EXB}, -1
    s_mov_b32 s{S_EXB+1}, 0x0000ffff
    """)
    k2_pf_setup(a, VL, VT, 8, 1024*6144, 6144, 6, 24, 2*MB, True)
    a(f"""
    v_cmp_le_u32 vcc, 24, v{VL}
    v_cndmask_b32 v{VT}, 0, 1, vcc
    v_mul_u32_u24 v{VT+1}, 24, v{VT}
    v_sub_u32 v{VT+1}, v{VL}, v{VT+1}
    v_lshrrev_b32 v{VT+2}, 3, v{VT+1}
    v_min_u32 v{VT+2}, 2, v{VT+2}
    v_and_b32 v{VT+1}, 7, v{VT+1}
    v_lshlrev_b32 v{VT+2}, 11, v{VT+2}
    v_lshl_add_u32 v{VT+2}, v{VT+1}, 4, v{VT+2}
    s_lshl_b32 s{S_T0}, s{S_W}, 2
    v_add_u32 v{VT}, s{S_T0}, v{VT}
    v_mul_u32_u24 v{VT}, 6144, v{VT}
    s_lshl_b32 s{S_T0}, s{S_JN}, 7
    v_add_u32 v{VT}, s{S_T0}, v{VT}
    v_add_u32 v{VDB}, v{VT}, v{VT+2}
    v_xor_b32 v{VT+2}, 64, v{VT+2}
    v_add_u32 v{VDB+1}, v{VT}, v{VT+2}
    v_add_u32 v{VDB+1}, {2*6144-768}, v{VDB+1}
    s_mul_i32 s{S_M0B}, s{S_W}, 1536
    s_add_u32 s{S_M0B}, s{S_M0B}, {BRING}
    """)
    a(f"""
    v_and_b32 v{VT}, 31, v{VL}
    v_bfe_u32 v{VT+1}, v{VL}, 1, 3
    v_lshrrev_b32 v{VT+2}, 5, v{VL}
    v_xor_b32 v{VT+1}, v{VT+1}, v{VT+2}
    s_lshl_b32 s{S_T0}, s{S_TG}, 6
    v_add_u32 v{VT}, s{S_T0}, v{VT}
    v_lshlrev_b32 v{VT}, 7, v{VT}
    v_lshl_add_u32 v{VAC[0]}, v{VT+1}, 4, v{VT}
    v_xor_b32 v{VAC[1]}, 32, v{VAC[0]}
    v_xor_b32 v{VAC[2]}, 64, v{VAC[0]}
    v_xor_b32 v{VAC[3]}, 0x60, v{VAC[0]}
    v_mov_b32 v{VA[0]}, v{VAC[0]}
    v_mov_b32 v{VA[1]}, v{VAC[1]}
    v_mov_b32 v{VA[2]}, v{VAC[2]}
    v_mov_b32 v{VA[3]}, v{VAC[3]}
    v_bfe_u32 v{VT}, v{VL}, 2, 2
    v_lshl_add_u32 v{VT}, v{VT+2}, 3, v{VT}
    v_mul_u32_u24 v{VT}, 384, v{VT}
    v_bfe_u32 v{VT+1}, v{VL}, 3, 1
    v_xor_b32 v{VT+1}, s{S_CH}, v{VT+1}
    v_lshl_add_u32 v{VT}, v{VT+1}, 6, v{VT}
    v_bfe_u32 v{VT+1}, v{VL}, 4, 1
    v_lshl_add_u32 v{VT}, v{VT+1}, 5, v{VT}
    v_and_b32 v{VT+1}, 3, v{VL}
    v_lshl_add_u32 v{VT}, v{VT+1}, 3, v{VT}
    v_add_u32 v{VBC}, {BRING}, v{VT}
    v_mov_b32 v{VB}, v{VBC}
    """)
    a(f"""
    s_lshl_b32 s{S_T0}, s{S_JN}, 12
    s_lshl_b32 s{S_T1}, s{S_W}, 9
    s_add_u32 s{S_T0}, s{S_T0}, s{S_T1}
    s_add_u32 m0, s{S_T1}, {WPHI_L}
    v_lshlrev_b32 v{VT}, 4, v{VL}
    s_waitcnt lgkmcnt(0)
    """)
    stamp(a, 0, 1, SRD_WS, 248, S_ST)
    a(f"""
    s_mov_b32 exec_hi, 0
    buffer_load_dwordx4 v{VT}, s[{SRD_T}:{SRD_T+3}], s{S_T0} offen lds
    s_mov_b64 exec, -1
    """)
    def mfmas(s):
        b = SET[s]
        r = []
        for st in range(2):
            for m, nm in enumerate("QKV"):
                for tt in range(2):
                    wf = b + 16 + (st*3+m)*4
                    tf = b + (st*2+tt)*4
                    d = ACC[nm][tt]
                    if nm == "V":
                        r.append(mf32(d, tf, wf, d))
                    else:
                        r.append(mf32(d, wf, tf, d))
        return r
    def reads(s, sub, bimm):
        b = SET[s]
        r = []
        for st in range(2):
            va = VA[2*sub+st]
            def w(m):
                for i in range(2):
                    r.append(f"ds_read_b64_tr_b16 {vr(b+16+(st*3+m)*4+2*i,2)}, v{VB} offset:{bimm+st*6144+i*1536+m*128}")
            w(0)
            for tt in range(2):
                r.append(f"ds_read_b128 {vr(b+(st*2+tt)*4,4)}, v{va} offset:{tt*4096}")
            w(1); w(2)
        return r
    upd = f"s_xor_b32 s{S_T2}, s{S_BPAR}, {2*SLOTB_A}\n" + \
        "\n".join(f"v_add_u32 v{VA[k]}, s{S_NXT}, v{VAC[k]}" for k in range(4)) + \
        f"\nv_add_u32 v{VB}, s{S_T2}, v{VBC}"
    g = k2_main(a, "att", mfmas, reads, upd, VDA, VDB, SLOTB_A, 768, 6144, 2,
                lambda i: (i // 2) - 1, [7, 8, 9])
    next(g)
    for r in range(96):
        a(f"v_mov_b32 v{r}, 0")
    next(g)
    stamp(a, 1, 1, SRD_WS, 248, S_ST)
    WF = 186
    IDF = 194
    ONE = 202
    KV = [96, 112]
    ZA = [128, 144]
    P = 160
    E = [206, 220]
    EP, EM = 206, 222
    TR = 160
    MX, MN, SP, SM, TT = 241, 242, 243, 244, 245
    a(f"""
    s_mov_b32 s{S_C0}, {hx(f2u(LOG2E))}
    s_waitcnt vmcnt(0) lgkmcnt(0)
    s_barrier
    """)
    a(f"""
    v_lshrrev_b32 v{TT}, 5, v{VL}
    v_bfe_u32 v{TT+1}, v{VL}, 2, 2
    v_lshl_add_u32 v{TT+1}, v{TT}, 2, v{TT+1}
    v_lshlrev_b32 v{TT+1}, 6, v{TT+1}
    v_bfe_u32 v{TT+2}, v{VL}, 4, 1
    v_lshl_add_u32 v{TT+1}, v{TT+2}, 5, v{TT+1}
    v_and_b32 v{TT+2}, 3, v{VL}
    v_lshl_add_u32 v{TT+1}, v{TT+2}, 3, v{TT+1}
    s_lshl_b32 s{S_T0}, s{S_CH}, 11
    s_add_u32 s{S_T0}, s{S_T0}, {WPHI_L}
    v_add_u32 v{TT+1}, s{S_T0}, v{TT+1}
    """)
    for s in range(2):
        for i in range(2):
            a(f"ds_read_b64_tr_b16 {vr(WF+4*s+2*i,2)}, v{TT+1} offset:{(16*s+8*i)*64}")
    a(f"""
    v_and_b32 v{TT+2}, 31, v{VL}
    v_lshlrev_b32 v{TT}, 2, v{TT}
    v_sub_u32 v{TT+2}, v{TT+2}, v{TT}
    v_mov_b32 v{TT}, 0x3f80
    v_mov_b32 v{TT+3}, 0x3f800000
    """)
    for s in range(2):
        for k in range(4):
            base = 16*s + 8*(k >> 1) + 2*(k & 1)
            d = IDF + 4*s + k
            a(f"v_cmp_eq_u32 vcc, {base}, v{TT+2}")
            a(f"v_cndmask_b32 v{d}, 0, v{TT}, vcc")
            a(f"v_cmp_eq_u32 vcc, {base+1}, v{TT+2}")
            a(f"v_cndmask_b32 v{d}, v{d}, v{TT+3}, vcc")
    for k in range(4):
        a(f"v_mov_b32 v{ONE+k}, 0x3f803f80")

    def pack(dst, src, n=8):
        for j in range(n):
            a(f"v_cvt_pk_bf16_f32 v{dst+j}, v{src+2*j}, v{src+2*j+1}")

    def xhalf(op, v, t):
        a(f"v_mov_b32 v{t}, v{v}")
        a("s_nop 1")
        a(f"v_permlane32_swap_b32 v{v}, v{t}")
        a("s_nop 1")
        a(f"{op} v{v}, v{v}, v{t}")

    def softmax(src, outp, outm):
        pack(src, src)
        a("s_nop 1")
        a(mf32(P, WF, src, None))
        a(mf32(P, WF+4, src+4, P))
        a("s_nop 15\n s_nop 3")
        a(f"v_max3_f32 v{MX}, v{P}, v{P+1}, v{P+2}")
        a(f"v_min3_f32 v{MN}, v{P}, v{P+1}, v{P+2}")
        for k in range(3, 15, 2):
            a(f"v_max3_f32 v{MX}, v{MX}, v{P+k}, v{P+k+1}")
            a(f"v_min3_f32 v{MN}, v{MN}, v{P+k}, v{P+k+1}")
        a(f"v_max_f32 v{MX}, v{MX}, v{P+15}")
        a(f"v_min_f32 v{MN}, v{MN}, v{P+15}")
        a(f"v_mov_b32 v{TT}, v{MX}\n v_mov_b32 v{TT+1}, v{MN}\n s_nop 1")
        a(f"v_permlane32_swap_b32 v{MX}, v{TT}\n v_permlane32_swap_b32 v{MN}, v{TT+1}\n s_nop 1")
        a(f"v_max_f32 v{MX}, v{MX}, v{TT}\n v_min_f32 v{MN}, v{MN}, v{TT+1}")
        a(f"v_mul_f32 v{MX}, s{S_C0}, v{MX}\n v_mul_f32 v{MN}, s{S_C0}, v{MN}")
        APK = OPT.get("apk", 0)
        def bc(r, f="v"): return f"{f}[{r & ~1}:{(r & ~1) + 1}]", r & 1
        if APK:
            assert EP % 2 == 0 and EM % 2 == 0 and P % 2 == 0
            (c, cs), (mx, xs), (mn, ns) = bc(S_C0, "s"), bc(MX), bc(MN)
            for k in range(0, 16, 2):
                a(f"v_pk_fma_f32 {vr(EP+k,2)}, {vr(P+k,2)}, {c}, {mx} op_sel:[0,{cs},{xs}] op_sel_hi:[1,{cs},{xs}] neg_lo:[0,0,1] neg_hi:[0,0,1]")
                a(f"v_pk_fma_f32 {vr(EM+k,2)}, {vr(P+k,2)}, {c}, {mn} op_sel:[0,{cs},{ns}] op_sel_hi:[1,{cs},{ns}] neg_lo:[1,0,0] neg_hi:[1,0,0]")
        else:
            for k in range(16):
                a(f"v_fma_f32 v{EP+k}, v{P+k}, s{S_C0}, -v{MX}")
                a(f"v_fma_f32 v{EM+k}, -v{P+k}, s{S_C0}, v{MN}")
        for k in range(16):
            a(f"v_exp_f32 v{EP+k}, v{EP+k}")
            a(f"v_exp_f32 v{EM+k}, v{EM+k}")
        if APK:
            for o, E in ((0, EP), (2, EM)): a(f"v_pk_add_f32 {vr(P+o,2)}, {vr(E,2)}, {vr(E+2,2)}")
            for o, E in ((4, EP), (6, EM)): a(f"v_pk_add_f32 {vr(P+o,2)}, {vr(E+4,2)}, {vr(E+6,2)}")
            for k in (8, 12):
                for o, E in ((0, EP), (2, EM)): a(f"v_pk_add_f32 {vr(P+o,2)}, {vr(P+o,2)}, {vr(E+k,2)}")
                for o, E in ((4, EP), (6, EM)): a(f"v_pk_add_f32 {vr(P+o,2)}, {vr(P+o,2)}, {vr(E+k+2,2)}")
            for o in (0, 2): a(f"v_pk_add_f32 {vr(P+o,2)}, {vr(P+o,2)}, {vr(P+o+4,2)}")
            a(f"v_add_f32 v{SP}, v{P}, v{P+1}\n v_add_f32 v{SM}, v{P+2}, v{P+3}")
        else:
            a(f"v_add_f32 v{SP}, v{EP}, v{EP+1}\n v_add_f32 v{SM}, v{EM}, v{EM+1}")
            a(f"v_add_f32 v{TT}, v{EP+2}, v{EP+3}\n v_add_f32 v{TT+1}, v{EM+2}, v{EM+3}")
            for k in range(4, 16, 2):
                a(f"v_add_f32 v{SP}, v{SP}, v{EP+k}\n v_add_f32 v{SM}, v{SM}, v{EM+k}")
                a(f"v_add_f32 v{TT}, v{TT}, v{EP+k+1}\n v_add_f32 v{TT+1}, v{TT+1}, v{EM+k+1}")
            a(f"v_add_f32 v{SP}, v{SP}, v{TT}\n v_add_f32 v{SM}, v{SM}, v{TT+1}")
        a(f"v_mov_b32 v{TT}, v{SP}\n v_mov_b32 v{TT+1}, v{SM}\n s_nop 1")
        a(f"v_permlane32_swap_b32 v{SP}, v{TT}\n v_permlane32_swap_b32 v{SM}, v{TT+1}\n s_nop 1")
        a(f"v_add_f32 v{SP}, v{SP}, v{TT}\n v_add_f32 v{SM}, v{SM}, v{TT+1}")
        a(f"v_rcp_f32 v{SP}, v{SP}\n v_rcp_f32 v{SM}, v{SM}\n s_nop 0")
        if APK:
            (sp, ps), (sm, ms) = bc(SP), bc(SM)
            for k in range(0, 16, 2):
                a(f"v_pk_mul_f32 {vr(EP+k,2)}, {vr(EP+k,2)}, {sp} op_sel:[0,{ps}] op_sel_hi:[1,{ps}]")
                a(f"v_pk_mul_f32 {vr(EM+k,2)}, {vr(EM+k,2)}, {sm} op_sel:[0,{ms}] op_sel_hi:[1,{ms}]")
        else:
            for k in range(16):
                a(f"v_mul_f32 v{EP+k}, v{EP+k}, v{SP}")
                a(f"v_mul_f32 v{EM+k}, v{EM+k}, v{SM}")
        pack(outp, EP)
        pack(outm, EM)

    a("s_waitcnt lgkmcnt(0)")
    for tt in range(2):
        pack(ACC["V"][tt], ACC["V"][tt])
    for tt in range(2):
        src = ACC["K"][tt]
        softmax(src, src, src+8)
        for pm in range(2):
            ph = src + 8*pm
            a("s_nop 1")
            a(mf32(TR, ph, IDF, None))
            a(mf32(TR, ph+4, IDF+4, TR))
            a("s_nop 15\n s_nop 3")
            pack(EP, TR)
            a("s_nop 1")
            v = ACC["V"][tt]
            first = (tt == 0)
            a(mf32(KV[pm], EP, v, None if first else KV[pm]))
            a(mf32(ZA[pm], ONE, EP, None if first else ZA[pm]))
            a(mf32(KV[pm], EP+4, v+4, KV[pm]))
            a(mf32(ZA[pm], ONE, EP+4, ZA[pm]))
            a("s_nop 7")
    a("s_nop 15\n s_nop 3")
    VW = TT
    a(f"""
    s_lshl_b32 s{S_T0}, s{S_W}, 13
    v_lshlrev_b32 v{VW+1}, 4, v{VL}
    v_add_u32 v{VW}, s{S_T0}, v{VW+1}
    v_cmp_gt_u32 vcc, 32, v{VL}
    v_cndmask_b32 v{VW+2}, v{ZA[1]}, v{ZA[0]}, vcc
    s_lshl_b32 s{S_T0}, s{S_W}, 8
    s_add_u32 s{S_T0}, s{S_T0}, 65536
    v_lshlrev_b32 v{VW+3}, 2, v{VL}
    v_add_u32 v{VW+4}, s{S_T0}, v{VW+3}
    """)
    for i in range(8):
        a(f"ds_write_b128 v{VW}, {vr(KV[i>>2]+4*(i&3),4)} offset:{i*1024}")
    a(f"ds_write_b32 v{VW+4}, v{VW+2}")
    a(f"""
    s_lshl_b32 s{S_T0}, s{S_CH}, 15
    s_lshl_b32 s{S_T1}, s{S_TG}, 11
    s_add_u32 s{S_T0}, s{S_T0}, s{S_T1}
    v_add_u32 v{VW}, s{S_T0}, v{VW+1}
    s_lshl_b32 s{S_T0}, s{S_CH}, 10
    s_add_u32 s{S_T0}, s{S_T0}, 65536
    v_add_u32 v{VW+4}, s{S_T0}, v{VW+3}
    s_waitcnt lgkmcnt(0)
    s_barrier
    """)
    R = 96
    for k in range(4):
        for e in range(2):
            a(f"ds_read_b128 {vr(R+(k*2+e)*4,4)}, v{VW} offset:{k*8192+e*1024}")
    ZR = 128
    for k in range(4):
        a(f"ds_read_b32 v{ZR+k}, v{VW+4} offset:{k*256}")
    S_KVP, S_ZP, S_HEAD = 50, 51, 52
    a(f"""
    s_lshl_b32 s{S_HEAD}, s{S_JN}, 1
    s_add_u32 s{S_HEAD}, s{S_HEAD}, s{S_CH}
    s_lshl_b32 s{S_T0}, s{S_HEAD}, 3
    s_add_u32 s{S_T0}, s{S_T0}, s{S_I}
    s_lshl_b32 s{S_ZP}, s{S_T0}, 8
    s_add_u32 s{S_ZP}, s{S_ZP}, {hx(ZP_OFF)}
    s_lshl_b32 s{S_KVP}, s{S_T0}, 13
    s_lshl_b32 s{S_T1}, s{S_TG}, 11
    s_add_u32 s{S_KVP}, s{S_KVP}, s{S_T1}
    s_add_u32 s{S_KVP}, s{S_KVP}, {hx(KVP_OFF)}
    s_waitcnt lgkmcnt(0)
    """)
    for j in range(8):
        a(f"v_add_f32 v{R+j}, v{R+j}, v{R+8+j}")
        a(f"v_add_f32 v{R+16+j}, v{R+16+j}, v{R+24+j}")
    a(f"v_add_f32 v{ZR}, v{ZR}, v{ZR+1}\n v_add_f32 v{ZR+2}, v{ZR+2}, v{ZR+3}")
    for j in range(8):
        a(f"v_add_f32 v{R+j}, v{R+j}, v{R+16+j}")
    a(f"v_add_f32 v{ZR}, v{ZR}, v{ZR+2}")
    VO16, VO4 = 238, 239
    a(f"v_mov_b32 v{VO16}, v{VW+1}\n v_mov_b32 v{VO4}, v{VW+3}")
    for e in range(2):
        a(f"buffer_store_dwordx4 {vr(R+4*e,4)}, v{VO16}, s[{SRD_WS}:{SRD_WS+3}], s{S_KVP} offen offset:{e*1024} sc1")
    a(f"""
    s_cmp_lg_u32 s{S_TG}, 0
    s_cbranch_scc1 .Lk2_noz
    buffer_store_dword v{ZR}, v{VO4}, s[{SRD_WS}:{SRD_WS+3}], s{S_ZP} offen sc1
    .Lk2_noz:
    """)
    stamp(a, 2, 1, SRD_WS, 248, S_ST)
    softmax(ACC["Q"][0], ACC["Q"][0], ACC["Q"][0]+8)
    a(f"""
    s_waitcnt vmcnt(0) lgkmcnt(0)
    s_barrier
    s_lshl_b32 s{S_T3}, s{S_JN}, 7
    s_add_u32 s{S_T3}, s{S_T3}, {hx(FLG_OFF+272*128)}
    s_cmp_lg_u32 s{S_W}, 0
    s_cbranch_scc1 .Lk2_nosig
    v_mov_b32 v{TT}, 1
    v_mov_b32 v{TT+1}, 0
    s_mov_b64 exec, 1
    buffer_atomic_add v{TT}, v{TT+1}, s[{SRD_WS}:{SRD_WS+3}], s{S_T3} offen sc1
    s_mov_b64 exec, -1
    .Lk2_nosig:
    """)
    if FU():
        a(f"s_lshl_b32 s{S_SIG}, s{S_I}, 7\n s_add_u32 s{S_SIG}, s{S_SIG}, {hx(FLG_OFF+264*128)}")
        k4_early(a, VL, "a")
    softmax(ACC["Q"][1], ACC["Q"][1], ACC["Q"][1]+8)
    stamp(a, 3, 1, SRD_WS, 248, S_ST)
    a(f"""
    s_cmp_lg_u32 s{S_W}, 0
    s_cbranch_scc1 .Lk2_polled
    s_mov_b32 s{S_CNT}, {OPT['spin']}
    v_mov_b32 v{TT+1}, 0
    .Lk2_poll:
    buffer_load_dword v{TT}, v{TT+1}, s[{SRD_WS}:{SRD_WS+3}], s{S_T3} offen sc1
    s_waitcnt vmcnt(0)
    v_readfirstlane_b32 s{S_T0}, v{TT}
    s_sub_u32 s{S_CNT}, s{S_CNT}, 1
    s_cmp_eq_u32 s{S_CNT}, 0
    s_cbranch_scc1 .Lk2_polled
    s_cmp_lt_u32 s{S_T0}, 8
    s_cbranch_scc1 .Lk2_poll
    .Lk2_polled:
    s_barrier
    """)
    stamp(a, 4, 1, SRD_WS, 248, S_ST)
    a(f"""
    s_lshl_b32 s{S_T0}, s{S_HEAD}, 16
    s_lshl_b32 s{S_T1}, s{S_TG}, 11
    s_add_u32 s{S_T0}, s{S_T0}, s{S_T1}
    s_add_u32 s{S_T0}, s{S_T0}, {hx(KVP_OFF)}
    s_lshl_b32 s{S_T1}, s{S_HEAD}, 11
    s_add_u32 s{S_T1}, s{S_T1}, {hx(ZP_OFF)}
    """)
    L = 96
    ZL = 160
    for k in range(8):
        for e in range(2):
            a(f"buffer_load_dwordx4 {vr(L+(k*2+e)*4,4)}, v{VO16}, s[{SRD_WS}:{SRD_WS+3}], s{S_T0} offen offset:{e*1024} sc1")
        if k < 7:
            a(f"s_add_u32 s{S_T0}, s{S_T0}, 8192")
    for k in range(8):
        a(f"buffer_load_dword v{ZL+k}, v{VO4}, s[{SRD_WS}:{SRD_WS+3}], s{S_T1} offen offset:{k*256} sc1")
    KVF, ZF = 67584, 75776
    a(f"""
    s_lshl_b32 s{S_T0}, s{S_W}, 10
    s_add_u32 s{S_T0}, s{S_T0}, {KVF}
    v_add_u32 v{TT}, s{S_T0}, v{VO16}
    s_lshl_b32 s{S_T0}, s{S_W}, 7
    s_add_u32 s{S_T0}, s{S_T0}, {ZF}
    v_lshlrev_b32 v{TT+1}, 1, v{VL}
    v_add_u32 v{TT+1}, s{S_T0}, v{TT+1}
    v_lshrrev_b32 v{TT+2}, 5, v{VL}
    v_lshlrev_b32 v{TT+2}, 3, v{TT+2}
    v_add_u32 v{TT+2}, s{S_T0}, v{TT+2}
    s_lshl_b32 s{S_T0}, s{S_CH}, 12
    s_add_u32 s{S_T0}, s{S_T0}, {KVF}
    v_add_u32 v{MX}, s{S_T0}, v{VO16}
    """)
    for k in range(1, 8):
        a(f"s_waitcnt vmcnt({8 + 2*(7-k)})")
        for j in range(8):
            a(f"v_add_f32 v{L+j}, v{L+j}, v{L+8*k+j}")
    pack(L, L, 4)
    a(f"ds_write_b128 v{TT}, {vr(L,4)}")
    a("s_waitcnt vmcnt(0)")
    for k in range(4):
        a(f"v_add_f32 v{ZL+k}, v{ZL+k}, v{ZL+4+k}")
    a(f"v_add_f32 v{ZL}, v{ZL}, v{ZL+2}\n v_add_f32 v{ZL+1}, v{ZL+1}, v{ZL+3}\n v_add_f32 v{ZL}, v{ZL}, v{ZL+1}")
    a(f"v_cvt_pk_bf16_f32 v{ZL}, v{ZL}, v{ZL}")
    a(f"ds_write_b16 v{TT+1}, v{ZL}")
    a("s_waitcnt lgkmcnt(0)\n s_barrier")
    KF = 96
    ZFR = 112
    for k in range(4):
        a(f"ds_read_b128 {vr(KF+4*k,4)}, v{MX} offset:{k*1024}")
    for k in range(4):
        a(f"ds_read2_b64 {vr(ZFR+4*k,4)}, v{TT+2} offset0:{4*k} offset1:{4*k+2}")
    a(f"""
    s_lshl_b32 s{S_T0}, s{S_I}, 1
    s_lshr_b32 s{S_T1}, s{S_TG}, 1
    s_add_u32 s{S_T0}, s{S_T0}, s{S_T1}
    s_mul_i32 s{S_T0}, s{S_T0}, 144
    s_add_u32 s{S_T0}, s{S_T0}, s{S_HEAD}
    s_add_u32 s{S_T0}, s{S_T0}, 112
    s_lshl_b32 s{S_T0}, s{S_T0}, 13
    s_add_u32 s{S_T0}, s{S_T0}, {hx(HO_OFF)}
    s_and_b32 s{S_T1}, s{S_TG}, 1
    s_lshl_b32 s{S_T1}, s{S_T1}, 10
    s_add_u32 s{S_T0}, s{S_T0}, s{S_T1}
    s_add_u32 s{S_T1}, s{S_T0}, 4096
    v_lshrrev_b32 v{TT}, 5, v{VL}
    v_lshlrev_b32 v{TT}, 11, v{TT}
    v_and_b32 v{TT+1}, 31, v{VL}
    v_lshl_add_u32 v{TT}, v{TT+1}, 4, v{TT}
    s_waitcnt lgkmcnt(0)
    """)
    NUM = [128, 144]; DEN = [160, 206]
    for tt in range(2):
        q = ACC["Q"][tt]
        for k in range(4):
            a(mf32(DEN[tt], ZFR+4*k, q+4*k, None if k == 0 else DEN[tt]))
            a(mf32(NUM[tt], KF+4*k, q+4*k, None if k == 0 else NUM[tt]))
    a("s_nop 15\n s_nop 3")
    O = 32
    for tt in range(2):
        d = DEN[tt]
        a(f"v_add_f32 v{d}, {hx(f2u(1e-6))}, v{d}")
        a(f"v_rcp_f32 v{d}, v{d}")
        a("s_nop 0")
        for k in range(16):
            a(f"v_mul_f32 v{NUM[tt]+k}, v{NUM[tt]+k}, v{d}")
        ob = O + 8*tt
        for aa in range(4):
            dst = ob + 4*(aa & 1) + 2*(aa >> 1)
            for j in range(2):
                a(f"v_cvt_pk_bf16_f32 v{dst+j}, v{NUM[tt]+4*aa+2*j}, v{NUM[tt]+4*aa+2*j+1}")
        a(f"buffer_store_dwordx4 {vr(ob,4)}, v{TT}, s[{SRD_WS}:{SRD_WS+3}], s{S_T0} offen offset:{tt*512}{SC()}")
        a(f"buffer_store_dwordx4 {vr(ob+4,4)}, v{TT}, s[{SRD_WS}:{SRD_WS+3}], s{S_T1} offen offset:{tt*512}{SC()}")
    stamp(a, 5, 1, SRD_WS, 248, S_ST)
    if not FU(): a("s_waitcnt vmcnt(0)")

def k4():
    D = OPT["k4_depth"]; N0 = OPT["k4_n0"]
    a = Asm()
    SA, SB, SWS, SX = 4, 8, 12, 16
    S_MT, S_NT, S_KH, S_TG4, S_CH4 = 20, 21, 22, 23, 24
    S_AO, S_BO, S_DST, S_END, S_SW, S_SR, S_M0, S_N, S_BG = 25, 26, 27, 28, 29, 30, 31, 32, 33
    T0, T1, T2, T3 = 36, 37, 38, 39
    S_WO = 40
    S_TILE = 42
    ACCM, ACCS = 0, 32
    X, Y = 64, 88
    XR = 112
    VTOK, VW0, VW1, VTOKC, VW0C, VW1C, VDA, VDB0, VDB1, VL, VXO, VT = 128, 129, 130, 131, 132, 133, 134, 135, 136, 137, 138, 140
    a(f"""
    s_cmp_ge_u32 s2, 256
    s_cbranch_scc1 .Lk4_end
    s_load_dwordx2 s[{SA}:{SA+1}], s[0:1], 88
    s_load_dwordx2 s[{SWS}:{SWS+1}], s[0:1], 88
    s_load_dwordx2 s[{SB}:{SB+1}], s[0:1], 56
    s_load_dwordx2 s[{S_WO}:{S_WO+1}], s[0:1], 24
    s_load_dwordx2 s[{SX}:{SX+1}], s[0:1], 64
    v_lshrrev_b32 v1, 6, v0
    v_and_b32 v{VL}, 63, v0
    v_mov_b32 v{VXO}, 0
    s_and_b32 s{T0}, s2, 7
    v_readfirstlane_b32 s3, v1
    s_lshr_b32 s{T1}, s2, 3
    s_and_b32 s{S_KH}, s{T0}, 1
    s_bfe_u32 s{T2}, s{T0}, 0x10001
    s_lshl_b32 s{T2}, s{T2}, 3
    s_and_b32 s{S_MT}, s{T1}, 7
    s_add_u32 s{S_MT}, s{S_MT}, s{T2}
    s_lshr_b32 s{T2}, s{T0}, 2
    s_lshl_b32 s{T2}, s{T2}, 2
    s_lshr_b32 s{S_NT}, s{T1}, 3
    s_add_u32 s{S_NT}, s{S_NT}, s{T2}
    s_lshl_b32 s{S_TILE}, s{S_MT}, 3
    s_add_u32 s{S_TILE}, s{S_TILE}, s{S_NT}
    s_and_b32 s{S_TG4}, s3, 3
    s_lshr_b32 s{S_CH4}, s3, 2
    s_mov_b32 s{SA+2}, {hx(32*MB)}
    s_mov_b32 s{SA+3}, 0x00020000
    s_mov_b32 s{SWS+2}, {hx(256*MB)}
    s_mov_b32 s{SWS+3}, 0x00020000
    s_mov_b32 s{SB+2}, {hx(3584*2048)}
    s_mov_b32 s{SB+3}, 0x00020000
    s_mov_b32 s{SX+2}, 2048
    s_mov_b32 s{SX+3}, 0x00020000
    s_mov_b32 s{S_BG}, {hx(BIG)}
    s_mul_i32 s{S_DST}, s{S_KH}, {N0}
    s_cmp_eq_u32 s{S_KH}, 0
    s_cselect_b32 s{S_END}, {N0}, 72
    s_cselect_b32 s{S_N}, {N0}, {56-N0}
    s_mul_i32 s{S_AO}, s{S_MT}, {144*8192}
    s_lshl_b32 s{T0}, s{S_DST}, 14
    s_add_u32 s{S_AO}, s{S_AO}, s{T0}
    s_add_u32 s{S_AO}, s{S_AO}, {hx(HO_OFF-2048)}
    s_lshl_b32 s{S_BO}, s{S_DST}, 17
    s_lshl_b32 s{S_M0}, s3, 12
    s_mov_b32 s{S_SW}, 0
    s_mov_b32 s{S_SR}, 0
    """)
    a(f"""
    s_lshl_b32 s{T0}, s3, 11
    v_lshlrev_b32 v{VT}, 4, v{VL}
    v_add_u32 v{VDA}, s{T0}, v{VT}
    v_lshrrev_b32 v{VT}, 4, v{VL}
    v_and_b32 v{VT+1}, 15, v{VL}
    v_lshlrev_b32 v{VT+2}, 2, v{VT}
    v_xor_b32 v{VT+1}, v{VT+1}, v{VT+2}
    s_lshl_b32 s{T0}, s3, 3
    v_add_u32 v{VT}, s{T0}, v{VT}
    v_lshlrev_b32 v{VT}, 11, v{VT}
    v_lshl_add_u32 v{VT}, v{VT+1}, 4, v{VT}
    s_lshl_b32 s{T0}, s{S_NT}, 8
    v_add_u32 v{VDB0}, s{T0}, v{VT}
    v_add_u32 v{VDB1}, {4*2048-1024}, v{VDB0}
    """)
    a(f"""
    v_lshrrev_b32 v{VT}, 5, v{VL}
    v_and_b32 v{VT+1}, 31, v{VL}
    s_lshl_b32 s{T0}, s{S_TG4}, 5
    v_add_u32 v{VT+1}, s{T0}, v{VT+1}
    v_lshlrev_b32 v{VT+1}, 4, v{VT+1}
    v_lshl_add_u32 v{VTOKC}, v{VT}, 12, v{VT+1}
    v_bfe_u32 v{VT+1}, v{VL}, 2, 2
    v_lshl_add_u32 v{VT+2}, v{VT}, 2, v{VT+1}
    v_lshlrev_b32 v{VT+2}, 8, v{VT+2}
    s_lshl_b32 s{T0}, s{S_CH4}, 1
    v_xor_b32 v{VT+1}, s{T0}, v{VT+1}
    v_lshl_add_u32 v{VT+2}, v{VT+1}, 6, v{VT+2}
    v_bfe_u32 v{VT+1}, v{VL}, 4, 1
    v_lshl_add_u32 v{VT+2}, v{VT+1}, 5, v{VT+2}
    v_and_b32 v{VT+1}, 3, v{VL}
    v_lshl_add_u32 v{VW0C}, v{VT+1}, 3, v{VT+2}
    v_xor_b32 v{VW1C}, 64, v{VW0C}
    v_mov_b32 v{VTOK}, v{VTOKC}
    v_mov_b32 v{VW0}, v{VW0C}
    v_mov_b32 v{VW1}, v{VW1C}
    s_waitcnt lgkmcnt(0)
    """)
    stamp(a, 0, 2, SWS, 144, 56)
    a(f"""
    s_cmp_eq_u32 s{S_KH}, 0
    s_cbranch_scc1 .Lk4_nob
    s_lshl_b32 s{T0}, s{S_NT}, 8
    s_lshl_b32 s{T1}, s{S_CH4}, 7
    s_add_u32 s{T0}, s{T0}, s{T1}
    v_lshlrev_b32 v{VT+1}, 3, v{VT}
    """)
    for ct in range(2):
        for aa in range(4):
            k = ct*4+aa
            a(f"buffer_load_dwordx2 {vr(Y+2*k,2)}, v{VT+1}, s[{SX}:{SX+3}], s{T0} offen offset:{ct*64+aa*16}")
    a(f"""
    s_load_dwordx2 s[{SX}:{SX+1}], s[0:1], 0
    s_lshl_b32 s{T1}, s{S_MT}, 7
    s_lshl_b32 s{T2}, s{S_TG4}, 5
    s_add_u32 s{T1}, s{T1}, s{T2}
    v_lshrrev_b32 v{VT+1}, 3, v{VL}
    v_add_u32 v{VT+1}, s{T1}, v{VT+1}
    v_lshlrev_b32 v{VT+1}, 11, v{VT+1}
    v_and_b32 v{VT+2}, 7, v{VL}
    v_lshl_add_u32 v{VT+1}, v{VT+2}, 4, v{VT+1}
    v_add_u32 v{VXO}, s{T0}, v{VT+1}
    s_mov_b32 s{T1}, 16384
    s_mov_b32 s{T2}, 32768
    s_mov_b32 s{T3}, 49152
    s_waitcnt lgkmcnt(0)
    s_mov_b32 s{SX+2}, {hx(4*MB)}
    buffer_load_dwordx4 {vr(XR,4)}, v{VXO}, s[{SX}:{SX+3}], 0 offen
    buffer_load_dwordx4 {vr(XR+4,4)}, v{VXO}, s[{SX}:{SX+3}], s{T1} offen
    buffer_load_dwordx4 {vr(XR+8,4)}, v{VXO}, s[{SX}:{SX+3}], s{T2} offen
    buffer_load_dwordx4 {vr(XR+12,4)}, v{VXO}, s[{SX}:{SX+3}], s{T3} offen
    .Lk4_nob:
    """)
    def dma(sw_check, lab=None):
        s = []
        if sw_check:
            s.append(f"s_cmp_eq_u32 s{S_DST}, 56\n s_cbranch_scc0 {lab}")
            s.append(f"s_mov_b32 s{SB}, s{S_WO}\n s_mov_b32 s{SB+1}, s{S_WO+1}\n s_mov_b32 s{SB+2}, {hx(2*MB)}\n s_mov_b32 s{S_BO}, 0")
            s.append(f"{lab}:")
        s.append(f"s_cmp_lt_u32 s{S_DST}, s{S_END}")
        s.append(f"s_cselect_b32 s{T0}, s{S_AO}, s{S_BG}")
        s.append(f"s_cselect_b32 s{T1}, s{S_BO}, s{S_BG}")
        s.append(f"s_add_u32 m0, s{S_SW}, s{S_M0}")
        s.append(f"s_add_u32 s{S_AO}, s{S_AO}, 16384")
        s.append(f"buffer_load_dwordx4 v{VDB0}, s[{SB}:{SB+3}], s{T1} offen lds")
        p = ["\n".join(s)]
        p.append(f"buffer_load_dwordx4 v{VDB1}, s[{SB}:{SB+3}], s{T1} offen offset:1024 lds")
        p.append(f"buffer_load_dwordx4 v{VDA}, s[{SA}:{SA+3}], s{T0} offen offset:2048 lds")
        p.append(f"""buffer_load_dwordx4 v{VDA}, s[{SA}:{SA+3}], s{T0} offen offset:3072 lds
        s_add_u32 s{S_BO}, s{S_BO}, {64*2048}
        s_add_u32 s{S_DST}, s{S_DST}, 1
        s_add_u32 s{S_SW}, s{S_SW}, 32768
        s_cmp_ge_u32 s{S_SW}, {32768*D}
        s_cselect_b32 s{S_SW}, 0, s{S_SW}""")
        return p
    for d in range(D):
        for t in dma(False): a(t)
    a(f"""
    s_cmp_eq_u32 s{S_KH}, 0
    s_cbranch_scc1 .Lk4_z
    s_waitcnt vmcnt({4*D+4})
    s_mov_b32 s{T0}, 0xffff0000
    """)
    for k in range(16):
        a(f"v_lshlrev_b32 v{ACCM+2*k}, 16, v{Y+k}")
        a(f"v_and_b32 v{ACCM+2*k+1}, s{T0}, v{Y+k}")
    for k in range(32):
        a(f"v_mov_b32 v{ACCS+k}, 0")
    a("s_branch .Lk4_i\n .Lk4_z:")
    for k in range(32):
        a(f"v_mov_b32 v{ACCM+k}, 0")
    a(".Lk4_i:")
    def reads(b, blk):
        r = []
        for s in range(2):
            for ct in range(2):
                w = b + 8 + (s*2+ct)*4
                for hf in range(2):
                    r.append(f"ds_read_b64_tr_b16 {vr(w+2*hf,2)}, v{VW1 if ct else VW0} offset:{(4*blk+s+2*hf)*4096}")
                if ct == 0:
                    r.append(f"ds_read_b128 {vr(b+4*s,4)}, v{VTOK} offset:{(4*blk+2*s)*4096+2048}")
        return r
    def mf(b, acc):
        return [mf32(acc+16*ct, b+8+(s*2+ct)*4, b+4*s, acc+16*ct) for s in range(2) for ct in range(2)]
    a(f"s_waitcnt vmcnt({4*(D-1)})\n s_barrier")
    for t in reads(X, 0): a(t)
    def loop(tag, acc, sw):
        a(f".Lk4_{tag}:")
        for t in reads(Y, 1): a(t)
        a("s_waitcnt lgkmcnt(10)")
        for t in mf(X, acc): a(t)
        a(f"""
        s_add_u32 s{S_SR}, s{S_SR}, 32768
        s_cmp_ge_u32 s{S_SR}, {32768*D}
        s_cselect_b32 s{S_SR}, 0, s{S_SR}
        s_waitcnt lgkmcnt(0)
        v_add_u32 v{VTOK}, s{S_SR}, v{VTOKC}
        v_add_u32 v{VW0}, s{S_SR}, v{VW0C}
        v_add_u32 v{VW1}, s{S_SR}, v{VW1C}
        s_waitcnt vmcnt({4*(D-2)})
        s_barrier
        """)
        for t in reads(X, 0): a(t)
        dm = dma(sw, f".Lk4_{tag}_sw")
        m = mf(Y, acc)
        for i in range(4):
            a(m[i]); a(dm[i])
        a(f"""
        s_sub_u32 s{S_N}, s{S_N}, 1
        s_cmp_lg_u32 s{S_N}, 0
        s_cbranch_scc1 .Lk4_{tag}
        """)
    loop("lm", ACCM, True)
    a(f"""
    s_lshl_b32 s{T2}, s{S_TILE}, 16
    s_lshl_b32 s{T3}, s3, 13
    s_add_u32 s{T2}, s{T2}, s{T3}
    s_add_u32 s{T2}, s{T2}, {hx(MP_OFF)}
    s_add_u32 s{T3}, s{T2}, 4096
    s_lshl_b32 s{S_TILE}, s{S_TILE}, 7
    s_add_u32 s{S_TILE}, s{S_TILE}, {hx(FLG_OFF)}
    v_lshlrev_b32 v{VT}, 4, v{VL}
    s_cmp_eq_u32 s{S_KH}, 0
    s_cbranch_scc0 .Lk4_p1
    """)
    stamp(a, 1, 2, SWS, 144, 56)
    a("s_nop 15\n s_nop 3")
    for i in range(8):
        a(f"buffer_store_dwordx4 {vr(ACCM+4*i,4)}, v{VT}, s[{SWS}:{SWS+3}], s{T2 if i<4 else T3} offen offset:{(i&3)*1024} sc1")
    a(f"""
    s_waitcnt vmcnt(0) lgkmcnt(0)
    s_barrier
    s_cmp_lg_u32 s3, 0
    s_cbranch_scc1 .Lk4_end
    v_mov_b32 v{VT}, 1
    v_mov_b32 v{VT+1}, 0
    s_mov_b64 exec, 1
    buffer_store_dword v{VT}, v{VT+1}, s[{SWS}:{SWS+3}], s{S_TILE} offen sc1
    s_mov_b64 exec, -1
    """)
    stamp(a, 2, 2, SWS, 144, 56)
    a(f"""
    s_waitcnt vmcnt(0)
    s_branch .Lk4_end
    .Lk4_p1:
    s_mov_b32 s{S_N}, 16
    s_mov_b32 s50, s{T2}
    s_mov_b32 s51, s{T3}
    """)
    loop("ls", ACCS, False)
    stamp(a, 1, 2, SWS, 144, 56)
    a(f"""
    s_load_dwordx2 s[{SX}:{SX+1}], s[0:1], 72
    s_waitcnt vmcnt(0)
    s_cmp_lg_u32 s3, 0
    s_cbranch_scc1 .Lk4_polled
    s_mov_b32 s{S_N}, {OPT['spin']}
    v_mov_b32 v{VT+1}, 0
    .Lk4_poll:
    buffer_load_dword v{VT+2}, v{VT+1}, s[{SWS}:{SWS+3}], s{S_TILE} offen sc1
    s_waitcnt vmcnt(0)
    v_readfirstlane_b32 s{T0}, v{VT+2}
    s_sub_u32 s{S_N}, s{S_N}, 1
    s_cmp_eq_u32 s{S_N}, 0
    s_cbranch_scc1 .Lk4_polled
    s_cmp_eq_u32 s{T0}, 0
    s_cbranch_scc1 .Lk4_poll
    .Lk4_polled:
    s_waitcnt lgkmcnt(0)
    s_barrier
    """)
    stamp(a, 2, 2, SWS, 144, 56)
    PB = 64
    for i in range(8):
        a(f"buffer_load_dwordx4 {vr(PB+4*i,4)}, v{VT}, s[{SWS}:{SWS+3}], s{50 if i<4 else 51} offen offset:{(i&3)*1024} sc1")
    VWR, VRD = VT+1, VT+2
    a(f"""
    s_mul_i32 s{T0}, s3, 4608
    v_and_b32 v{VWR}, 31, v{VL}
    v_mul_u32_u24 v{VWR}, 144, v{VWR}
    v_lshrrev_b32 v{VT+3}, 5, v{VL}
    v_lshl_add_u32 v{VWR}, v{VT+3}, 3, v{VWR}
    v_add_u32 v{VWR}, s{T0}, v{VWR}
    v_lshrrev_b32 v{VRD}, 3, v{VL}
    v_mul_u32_u24 v{VRD}, 144, v{VRD}
    v_and_b32 v{VT+3}, 7, v{VL}
    v_lshl_add_u32 v{VRD}, v{VT+3}, 4, v{VRD}
    v_add_u32 v{VRD}, s{T0}, v{VRD}
    s_mov_b32 s{T0}, {hx(f2u(-LOG2E))}
    s_mov_b32 s{T1}, 16384
    s_mov_b32 s{T2}, 32768
    s_mov_b32 s{T3}, 49152
    s_mov_b32 s52, 0xffff0000
    """)
    TM = 96
    for i in range(0, 8, 2):
        a(f"s_waitcnt vmcnt({6-i})")
        n = 8
        m = [ACCM+4*i+k for k in range(n)]
        p = [PB+4*i+k for k in range(n)]
        s_ = [ACCS+4*i+k for k in range(n)]
        t = [TM+k for k in range(n)]
        for k in range(n): a(f"v_add_f32 v{m[k]}, v{m[k]}, v{p[k]}")
        for k in range(n): a(f"v_mul_f32 v{t[k]}, s{T0}, v{m[k]}")
        for k in range(n): a(f"v_exp_f32 v{t[k]}, v{t[k]}")
        for k in range(n): a(f"v_mul_f32 v{m[k]}, v{m[k]}, v{s_[k]}")
        for k in range(n): a(f"v_add_f32 v{t[k]}, 1.0, v{t[k]}")
        for k in range(n): a(f"v_rcp_f32 v{t[k]}, v{t[k]}")
        a("s_nop 0")
        for k in range(n): a(f"v_mul_f32 v{m[k]}, v{m[k]}, v{t[k]}")
        pk = TM + 8 + (i & 2)*2
        for k in range(4): a(f"v_cvt_pk_bf16_f32 v{pk+k}, v{m[2*k]}, v{m[2*k+1]}")
        for k in range(2):
            ii = i + k
            a(f"ds_write_b64 v{VWR}, {vr(pk+2*k,2)} offset:{(ii>>2)*64+(ii&3)*16}")
    a("s_waitcnt lgkmcnt(0)")
    for i in range(4):
        a(f"ds_read_b128 {vr(PB+4*i,4)}, v{VRD} offset:{i*1152}")
    so = ["0", f"s{T1}", f"s{T2}", f"s{T3}"]
    for i in range(4):
        a(f"s_waitcnt lgkmcnt({3-i})")
        for k in range(4):
            y = PB+4*i+k; x = XR+4*i+k; t = TM + 4*(k & 3)
            a(f"v_lshlrev_b32 v{t}, 16, v{y}")
            a(f"v_and_b32 v{t+1}, s52, v{y}")
            a(f"v_lshlrev_b32 v{t+2}, 16, v{x}")
            a(f"v_and_b32 v{t+3}, s52, v{x}")
            a(f"v_add_f32 v{t}, v{t}, v{t+2}")
            a(f"v_add_f32 v{t+1}, v{t+1}, v{t+3}")
            a(f"v_cvt_pk_bf16_f32 v{y}, v{t}, v{t+1}")
        a(f"buffer_store_dwordx4 {vr(PB+4*i,4)}, v{VXO}, s[{SX}:{SX+3}], {so[i]} offen")
    stamp(a, 3, 2, SWS, 144, 56)
    a("s_waitcnt vmcnt(0)")
    a(".Lk4_end:")
    return a.text()

def build(path):
    import k4b
    k4b.G.OPT.update(OPT)
    ks = [("ln_kernel", k1(), 40, 40, 48),
          ("mid_kernel", k2(), 256, 256, 96),
          ("fin_kernel", k4(), 152, 152, 64) if OPT.get("k4v", 2) == 1 else ("fin_kernel", k4b.k4(), 208, 208, 96)]
    if FU():
        ks = [ks[0], ("mid_kernel", ks[1][1] + ks[2][1], 256, 256, 96)]
    ks = [(l, hazard.fix(b, OPT.get("v", 0)), x, y, z) for (l, b, x, y, z) in ks]
    ls = [("ln_kernel", (512,1,1), (256,1,1), 0),
          ("mid_kernel", (256,1,1), (512,1,1), K2_LDS),
          ("fin_kernel", (256,1,1), (512,1,1), 32768*OPT["k4_depth"] if OPT.get("k4v", 2) == 1 else k4b.K4_LDS)]
    if FU():
        ls = [ls[0], ("mid_kernel", (256,1,1), (512,1,1), k4b.K4_LDS)]
    import re
    for (l, b, nv, acc, ns) in ks:
        mv = max([int(x) for x in re.findall(r"\bv(\d+)\b", b)] + [int(x) for x in re.findall(r"\bv\[\d+:(\d+)\]", b)])
        ms = max([int(x) for x in re.findall(r"\bs(\d+)\b", b)] + [int(x) for x in re.findall(r"\bs\[\d+:(\d+)\]", b)])
        assert mv < nv and ms < ns, (l, mv, ms)
    open(path, "w").write(build_file(ks, ls))

if __name__ == "__main__":
    out = sys.argv[1]
    for kv in sys.argv[2:]:
        k, v = kv.split("=")
        OPT[k] = int(v)
    build(out)
```
